```python
import torch

def _softmax(x, axis=-1):
    return torch.softmax(x, dim=axis)

def _gelu(x):
    return torch.nn.functional.gelu(x, approximate='tanh')

def _silu(x):
    return torch.nn.functional.silu(x)

def _sigmoid(x):
    return torch.sigmoid(x)

def _layernorm(x, axis=-1, eps=1e-05):
    m = x.mean(dim=axis, keepdim=True)
    v = x.var(dim=axis, keepdim=True, unbiased=False)
    return (x - m) / torch.sqrt(v + eps)

def _scatter_add(tgt, idx, src, axis=0):
    return tgt.clone().index_add_(axis, idx, src)

def _segment_sum(src, seg, n):
    out = torch.zeros((n,) + src.shape[1:], dtype=src.dtype)
    return out.index_add_(0, seg, src)

def _pad(x, pw):
    flat = tuple((v for pair in reversed(pw) for v in pair))
    return torch.nn.functional.pad(x, flat)
kernel_name = 'adaLN_cond__memory_aug_recurrent_mem_tr__dense_activation_gelu__prompt'

def setup_inputs():

    _w = lambda a: (lambda t: t.to(torch.bfloat16) if t.is_floating_point() else t)(torch.as_tensor(a))

    def _A_setup():
        B, S, Dm = (1, 2048, 448)
        H, Dh = (16, 256)
        M, seg = (8, 32)
        seg = min(seg, S)
        S = S // seg * seg
        return {'x': _w((lambda *s: torch.randn(*s, dtype=torch.bfloat16) * 0.05)(B, S, Dm)), 'mem0': _w((lambda *s: torch.randn(*s, dtype=torch.bfloat16) * 0.8)(B, M, Dm)), 'Wq': _w((lambda *s: torch.randn(*s, dtype=torch.bfloat16) * 0.8)(Dm, H, Dh) * Dm ** (-0.5)), 'Wk': _w((lambda *s: torch.randn(*s, dtype=torch.bfloat16) * 0.8)(Dm, H, Dh) * Dm ** (-0.5)), 'Wv': _w((lambda *s: torch.randn(*s, dtype=torch.bfloat16) * 0.8)(Dm, H, Dh) * Dm ** (-0.5)), 'Wo': _w((lambda *s: torch.randn(*s, dtype=torch.bfloat16) * 0.8)(H, Dh, Dm) * (H * Dh) ** (-0.5)), 'seg_len': seg}
    _A_in = _A_setup()

    def _B_setup():
        B, S, D, F = (1, 2048, 448, 1792)
        return {'x': _w((lambda *s: torch.randn(*s, dtype=torch.bfloat16) * 0.05)(B, S, D)), 'w1': _w((lambda *s: torch.randn(*s, dtype=torch.bfloat16) * 0.8)(D, F) * D ** (-0.5)), 'b1': _w((lambda *s: torch.randn(*s, dtype=torch.bfloat16) * 12.8)(F) * 0.01), 'w2': _w((lambda *s: torch.randn(*s, dtype=torch.bfloat16) * 0.8)(F, D) * F ** (-0.5)), 'b2': _w((lambda *s: torch.randn(*s, dtype=torch.bfloat16) * 12.8)(D) * 0.01)}
    _B_in = _B_setup()
    return {'A_x': _A_in['x'], 'A_mem0': _A_in['mem0'], 'A_Wq': _A_in['Wq'], 'A_Wk': _A_in['Wk'], 'A_Wv': _A_in['Wv'], 'A_Wo': _A_in['Wo'], 'A_seg_len': _A_in['seg_len'], 'B_x': _B_in['x'], 'B_w1': _B_in['w1'], 'B_b1': _B_in['b1'], 'B_w2': _B_in['w2'], 'B_b2': _B_in['b2'], 'c': _w((lambda *s: torch.randn(*s, dtype=torch.bfloat16) * 0.1)(1, 448) * 8.0), 'w_mod': _w((lambda *s: torch.randn(*s, dtype=torch.bfloat16) * 0.1)(448, 6 * 448) * 448 ** (-0.5) * 8.0)}

def reference(A_x, A_mem0, A_Wq, A_Wk, A_Wv, A_Wo, A_seg_len, B_x, B_w1, B_b1, B_w2, B_b2, c, w_mod):

    def _A_ref(x, mem0, Wq, Wk, Wv, Wo, seg_len):
        B, S, Dm = x.shape
        H, Dh = (Wq.shape[1], Wq.shape[2])
        M = mem0.shape[1]
        scale = Dh ** (-0.5)
        n_seg = S // seg_len
        L = M + seg_len
        idx = torch.arange(L)
        mask = (idx[:, None] < M) | (idx[:, None] >= idx[None, :])
        mem = mem0
        outs = []
        for s in range(n_seg):
            xs = x[:, s * seg_len:(s + 1) * seg_len, :].clone()
            h = torch.concatenate([mem, xs], axis=1)
            q = torch.einsum('btd,dhe->bhte', h, Wq)
            k = torch.einsum('btd,dhe->bhte', h, Wk)
            v = torch.einsum('btd,dhe->bhte', h, Wv)
            scores = torch.einsum('bhqe,bhke->bhqk', q, k) * scale
            scores = torch.where(mask[None, None], scores, -1000000000.0)
            p = _softmax(scores, axis=-1)
            o = torch.einsum('bhqk,bhke->bhqe', p, v)
            o = torch.einsum('bhte,hed->btd', o, Wo)
            mem = o[:, :M, :].clone()
            outs.append(o[:, M:, :])
        return torch.concatenate(outs, axis=1)

    def _B_ref(x, w1, b1, w2, b2):
        h = torch.einsum('bsd,df->bsf', x, w1) + b1
        h = _gelu(h)
        return torch.einsum('bsf,fd->bsd', h, w2) + b2
    x = A_x
    mod = (_silu(c) @ w_mod).reshape(c.shape[0], 6, 1, -1)
    sa, ca, ga, sb, cb, gb = (mod[:, 0].clone(), mod[:, 1].clone(), mod[:, 2].clone(), mod[:, 3].clone(), mod[:, 4].clone(), mod[:, 5].clone())
    h = _layernorm(x, axis=-1) * (1 + ca) + sa
    x = x + ga * _A_ref(h, A_mem0, A_Wq, A_Wk, A_Wv, A_Wo, A_seg_len)
    h = _layernorm(x, axis=-1) * (1 + cb) + sb
    x = x + gb * _B_ref(h, B_w1, B_b1, B_w2, B_b2)
    return x
```

```python
from layout import *

class Kern:
    def __init__(self, name, grid, block=256, lds=0, vgpr=128, agpr=0, sgpr=96):
        self.name = name; self.grid = grid; self.block = block; self.lds = lds
        self.vgpr = vgpr; self.agpr = agpr; self.sgpr = sgpr
        self.L = []
        self._lab = 0
    def __call__(self, s):
        for line in s.strip('\n').split('\n'):
            line = line.strip()
            if line: self.L.append('    ' + line)
    def lab(self, s): self.L.append(s + ':')
    def newlab(self, p='L'):
        self._lab += 1
        return '%s_%s_%d' % (p, self.name.replace('_kernel', ''), self._lab)
    def nop(self, n):
        while n > 0:
            k = min(n, 16); self('s_nop %d' % (k - 1)); n -= k
    def text(self):
        acc = (self.vgpr + 3) // 4 * 4
        nfv = acc + self.agpr if self.agpr else self.vgpr
        t = ['.text', '.globl %s' % self.name, '.p2align 8', '.type %s,@function' % self.name, self.name + ':']
        t += self.L
        t += ['    s_endpgm']
        d = ['.section .rodata,"a"', '.p2align 6', '.amdhsa_kernel %s' % self.name,
             '  .amdhsa_next_free_vgpr %d' % nfv, '  .amdhsa_next_free_sgpr %d' % self.sgpr,
             '  .amdhsa_accum_offset %d' % acc, '  .amdhsa_group_segment_fixed_size 0',
             '  .amdhsa_kernarg_size 136', '  .amdhsa_user_sgpr_count 2',
             '  .amdhsa_user_sgpr_kernarg_segment_ptr 1', '  .amdhsa_system_sgpr_workgroup_id_x 1',
             '.end_amdhsa_kernel']
        return '\n'.join(t + d) + '\n'
    def launch_line(self):
        return '; @launch kernel=%s grid=(%d,1,1) block=(%d,1,1) lds=%d' % (self.name, self.grid, self.block, self.lds)
    def ldarg(self, sreg, key):
        self('s_load_dwordx2 s[%d:%d], s[0:1], %d' % (sreg, sreg + 1, KA[key]))
    def addoff(self, sdst, ssrc, off):
        self('s_add_u32 s%d, s%d, 0x%x' % (sdst, ssrc, off))
        self('s_addc_u32 s%d, s%d, 0' % (sdst + 1, ssrc + 1))
    def sdiv(self, sq, sn, d, maxn, stmp=None):
        for sh in range(8, 31):
            m = (1 << sh) // d + 1
            if m * maxn < (1 << 32) and all((x * m) >> sh == x // d for x in range(maxn + 1)):
                self('s_mul_i32 s%d, s%d, %d' % (sq, sn, m))
                self('s_lshr_b32 s%d, s%d, %d' % (sq, sq, sh))
                return
        raise Exception('no magic')

def vr(a, n=1):
    return 'v%d' % a if n == 1 else 'v[%d:%d]' % (a, a + n - 1)
def ar(a, n=1):
    return 'a%d' % a if n == 1 else 'a[%d:%d]' % (a, a + n - 1)
def sr(a, n=1):
    return 's%d' % a if n == 1 else 's[%d:%d]' % (a, a + n - 1)

HEADER = open('adaLN_cond__memory_aug_recurrent_mem_tr__dense_activation_gelu__prompt.s.ref').read().split('; Override launch geometry')[0]

def emit(kerns, launches, path):
    out = HEADER
    for k in launches: out += k.launch_line() + '\n'
    out += '.amdgcn_target "amdgcn-amd-amdhsa--gfx950"\n'
    for k in kerns: out += k.text()
    open(path, 'w').write(out)
```

```python
from fw import *
from k_chain import xlane, LOG2E
from k_prep import rnd_bf16

def k_attn():
    k = Kern('attn_kernel', grid=64, lds=49152, vgpr=256, agpr=128, sgpr=96)
    Lend = k.newlab('end')
    k('s_cmp_ge_u32 s2, 64'); k('s_cbranch_scc1 %s' % Lend)
    k.ldarg(4, 'ws'); k.ldarg(6, 'x')
    k('v_and_b32 v1, 63, v0'); k('v_lshrrev_b32 v2, 6, v0'); k('s_nop 0')
    k('v_readfirstlane_b32 s10, v2')
    k('v_and_b32 v2, 15, v1'); k('v_lshrrev_b32 v3, 4, v1')
    k('v_lshlrev_b32 v9, 4, v1')
    k('v_add_u32 v5, 4096, v9'); k('v_add_u32 v6, 8192, v9'); k('v_add_u32 v7, 12288, v9')
    VA4 = (9, 5, 6, 7)
    k('v_cmp_gt_u32 s[40:41], 32, v1')
    k('v_lshlrev_b32 v10, 2, v3')
    for r in range(4):
        k('v_add_u32 v11, %d, v10' % r)
        k('v_cmp_le_u32 s[%d:%d], v11, v2' % (42 + 2 * r, 43 + 2 * r))
    k('s_waitcnt lgkmcnt(0)')
    k('s_lshl_b32 s20, s2, 14'); k('s_add_u32 s20, s20, 0x%x' % WS['MEMF'])
    k('s_add_u32 s30, s4, s20'); k('s_addc_u32 s31, s5, 0')
    k('s_mul_i32 s20, s2, %d' % (2 * 14 * 1024)); k('s_add_u32 s20, s20, 0x%x' % WS['HF'])
    k('s_add_u32 s32, s4, s20'); k('s_addc_u32 s33, s5, 0')
    k('s_add_u32 s34, s32, %d' % (14 * 1024)); k('s_addc_u32 s35, s33, 0')
    HA = 64
    for jt, sb in enumerate((30, 32, 34)):
        for kk in range(14):
            k('global_load_dwordx4 %s, v%d, s[%d:%d] offset:%d' % (vr(HA + (jt * 14 + kk) * 4, 4), VA4[kk // 4], sb, sb + 1, (kk % 4) * 1024))
    k('s_mul_i32 s20, s2, %d' % (2 * 16 * 14 * 1024)); k('s_mul_i32 s21, s10, %d' % (4 * 14 * 1024)); k('s_add_u32 s20, s20, s21')
    k('s_add_u32 s20, s20, 0x%x' % WS['BXF'])
    k('s_add_u32 s36, s4, s20'); k('s_addc_u32 s37, s5, 0')
    def bload(n):
        u, it = n // 2, n % 2
        off = u * 14 * 1024 + it * 16 * 14 * 1024
        k('s_add_u32 s38, s36, %d' % off); k('s_addc_u32 s39, s37, 0')
        for kk in range(14):
            k('global_load_dwordx4 %s, v%d, s[38:39] offset:%d' % (ar((n & 1) * 56 + 4 * kk, 4), VA4[kk // 4], (kk % 4) * 1024))
    k('s_lshl_b32 s20, s10, 13'); k('v_add_u32 v12, s20, v9')
    k('s_lshl_b32 s20, s10, 12'); k('s_add_u32 s20, s20, 32768'); k('v_add_u32 v13, s20, v9')
    SC = 32
    T = 44
    bload(0)
    k('v_mov_b32 v60, 0xf149f2ca')
    k('v_mov_b32 v61, 0x%08x' % LOG2E)
    for n in range(8):
        u, it = n // 2, n % 2
        if n < 7:
            bload(n + 1); k('s_waitcnt vmcnt(14)')
        else:
            k('s_waitcnt vmcnt(0)')
        njt = 2 if it == 0 else 3
        for kk in range(14):
            for jt in range(njt):
                c = '0' if kk == 0 else vr(SC + 4 * jt, 4)
                k('v_mfma_f32_16x16x32_bf16 %s, %s, %s, %s' % (vr(SC + 4 * jt, 4), vr(HA + (jt * 14 + kk) * 4, 4), ar((n & 1) * 56 + 4 * kk, 4), c))
        k.nop(10)
        sc = [SC + i for i in range(4 * njt)]
        for r in range(4): k('v_cndmask_b32 v%d, v60, v%d, s[40:41]' % (SC + r, SC + r))
        dj = 1 + it
        for r in range(4): k('v_cndmask_b32 v%d, v60, v%d, s[%d:%d]' % (SC + 4 * dj + r, SC + 4 * dj + r, 42 + 2 * r, 43 + 2 * r))
        k('v_max3_f32 v%d, v%d, v%d, v%d' % (T, sc[0], sc[1], sc[2]))
        i = 3
        while i < len(sc):
            if i + 1 < len(sc): k('v_max3_f32 v%d, v%d, v%d, v%d' % (T, T, sc[i], sc[i + 1])); i += 2
            else: k('v_max_f32 v%d, v%d, v%d' % (T, T, sc[i])); i += 1
        xlane(k, 'v_max_f32', T, T + 1)
        k('v_mul_f32 v%d, v61, v%d' % (T, T))
        for r in sc: k('v_fma_f32 v%d, v%d, v61, -v%d' % (r, r, T))
        for r in sc: k('v_exp_f32 v%d, v%d' % (r, r))
        k('s_nop 0')
        k('v_add_f32 v%d, v%d, v%d' % (T, sc[0], sc[1]))
        for r in sc[2:]: k('v_add_f32 v%d, v%d, v%d' % (T, T, r))
        xlane(k, 'v_add_f32', T, T + 1)
        k('v_rcp_f32 v%d, v%d' % (T, T)); k('s_nop 0')
        for r in sc: k('v_mul_f32 v%d, v%d, v%d' % (r, r, T))
        PK = 48
        k('v_cvt_pk_bf16_f32 v%d, v%d, v%d' % (PK, sc[4], sc[5])); k('v_cvt_pk_bf16_f32 v%d, v%d, v%d' % (PK + 1, sc[6], sc[7]))
        if njt == 3:
            k('v_cvt_pk_bf16_f32 v%d, v%d, v%d' % (PK + 2, sc[8], sc[9])); k('v_cvt_pk_bf16_f32 v%d, v%d, v%d' % (PK + 3, sc[10], sc[11]))
        else:
            k('v_mov_b32 v%d, 0' % (PK + 2)); k('v_mov_b32 v%d, 0' % (PK + 3))
        k('v_cvt_pk_bf16_f32 v%d, v%d, v%d' % (PK + 4, sc[0], sc[1])); k('v_cvt_pk_bf16_f32 v%d, v%d, v%d' % (PK + 5, sc[2], sc[3]))
        k('ds_write_b128 v12, %s offset:%d' % (vr(PK, 4), (u * 2 + it) * 1024))
        k('ds_write_b64 v13, %s offset:%d' % (vr(PK + 4, 2), ((u >> 1) * 2 + it) * 1024 + (u & 1) * 8))
        k('s_waitcnt lgkmcnt(0)')
    k('s_barrier')
    OA = 64
    AF = 120
    BF = 176
    k('s_mul_i32 s20, s2, %d' % (16 * 28 * 1024)); k('s_mul_i32 s21, s10, %d' % (7 * 1024)); k('s_add_u32 s20, s20, s21')
    k('s_add_u32 s20, s20, 0x%x' % WS['UF']); k('s_add_u32 s36, s4, s20'); k('s_addc_u32 s37, s5, 0')
    k('s_mul_i32 s20, s2, %d' % (8 * 28 * 1024)); k('s_add_u32 s20, s20, s21')
    k('s_add_u32 s20, s20, 0x%x' % WS['UMF']); k('s_add_u32 s50, s4, s20'); k('s_addc_u32 s51, s5, 0')
    items = [('x', h) for h in range(16)] + [('m', p) for p in range(8)]
    def aload(idx):
        kind, j = items[idx]
        sb = 36 if kind == 'x' else 50
        k('s_add_u32 s38, s%d, %d' % (sb, j * 28 * 1024)); k('s_addc_u32 s39, s%d, 0' % (sb + 1))
        for d in range(7):
            k('global_load_dwordx4 %s, v%d, s[38:39] offset:%d' % (vr(AF + (idx & 1) * 28 + 4 * d, 4), VA4[d // 4], (d % 4) * 1024))
        base = j * 2048 + (0 if kind == 'x' else 32768)
        for it in range(2):
            k('ds_read_b128 %s, v9 offset:%d' % (vr(BF + (idx & 1) * 8 + 4 * it, 4), base + it * 1024))
    aload(0)
    for idx in range(24):
        if idx < 23:
            aload(idx + 1); k('s_waitcnt vmcnt(7) lgkmcnt(2)')
        else:
            k('s_waitcnt vmcnt(0) lgkmcnt(0)')
        for d in range(7):
            for it in range(2):
                a = OA + (d * 2 + it) * 4
                c = '0' if idx == 0 else vr(a, 4)
                k('v_mfma_f32_16x16x32_bf16 %s, %s, %s, %s' % (vr(a, 4), vr(AF + (idx & 1) * 28 + 4 * d, 4), vr(BF + (idx & 1) * 8 + 4 * it, 4), c))
    k.nop(10)
    k('s_lshl_b32 s20, s2, 5'); k('v_add_u32 v10, s20, v2'); k('v_mul_u32_u24 v10, 896, v10')
    k('s_mul_i32 s21, s10, 224'); k('v_lshl_add_u32 v10, v3, 3, v10'); k('v_add_u32 v10, s21, v10')
    k('v_add_u32 v11, %d, v10' % (16 * 896))
    k('s_mul_i32 s21, s10, 448'); k('v_lshlrev_b32 v12, 4, v3'); k('v_add_u32 v12, s21, v12')
    k.addoff(22, 4, WS['MOD'] + 2 * 448 * 4); k.addoff(24, 4, WS['X1'])
    XR = 120; GR = 160
    for d in range(7):
        k('global_load_dwordx4 %s, v12, s[22:23] offset:%d' % (vr(GR + 4 * d, 4), d * 64))
        for it in range(2):
            k('global_load_dwordx2 %s, v%d, s[6:7] offset:%d' % (vr(XR + (d * 2 + it) * 2, 2), 10 + it, d * 32))
    k('s_waitcnt vmcnt(0)')
    for d in range(7):
        for it in range(2):
            a = OA + (d * 2 + it) * 4; x = XR + (d * 2 + it) * 2; t = 32
            rnd_bf16(k, (a, a + 1), a, a + 1, t); rnd_bf16(k, (a + 2, a + 3), a + 2, a + 3, t)
            for r in range(4): k('v_mul_f32 v%d, v%d, v%d' % (a + r, a + r, GR + 4 * d + r))
            rnd_bf16(k, (a, a + 1), a, a + 1, t); rnd_bf16(k, (a + 2, a + 3), a + 2, a + 3, t)
            for j in range(2):
                k('v_lshlrev_b32 v%d, 16, v%d' % (t, x + j)); k('v_and_b32 v%d, 0xffff0000, v%d' % (t + 1, x + j))
                k('v_add_f32 v%d, v%d, v%d' % (a + 2 * j, a + 2 * j, t)); k('v_add_f32 v%d, v%d, v%d' % (a + 2 * j + 1, a + 2 * j + 1, t + 1))
            k('v_cvt_pk_bf16_f32 v%d, v%d, v%d' % (x, a, a + 1)); k('v_cvt_pk_bf16_f32 v%d, v%d, v%d' % (x + 1, a + 2, a + 3))
            k('global_store_dwordx2 v%d, %s, s[24:25] offset:%d' % (10 + it, vr(x, 2), d * 32))
    k.lab(Lend)
    return k
```

```python
from fw import *

LOG2E = 0x3fb8aa3b
S_FAST = 44
S_TO = 45
TO_LIMIT = 1 << 21

def pub_store(k, instr):
    Lf, Le = k.newlab('pf'), k.newlab('pe')
    k('s_cmp_eq_u32 s%d, 1' % S_FAST); k('s_cbranch_scc1 %s' % Lf)
    k(instr + ' sc1'); k('s_branch %s' % Le)
    k.lab(Lf); k(instr); k.lab(Le)

def maxchain(k, regs, t):
    regs = list(regs)
    k('v_max_u32 v%d, v%d, v%d' % (t, regs[0], regs[1]))
    i = 2
    while i < len(regs):
        if i + 1 < len(regs):
            k('v_max3_u32 v%d, v%d, v%d, v%d' % (t, t, regs[i], regs[i + 1])); i += 2
        else:
            k('v_max_u32 v%d, v%d, v%d' % (t, t, regs[i])); i += 1

def poll(k, issue, regs, t, Lbail):
    Lp = k.newlab('poll')
    k.lab(Lp)
    issue()
    k('s_add_u32 s%d, s%d, 1' % (S_TO, S_TO))
    k('s_cmp_gt_u32 s%d, %d' % (S_TO, TO_LIMIT)); k('s_cbranch_scc1 %s' % Lbail)
    k('s_waitcnt vmcnt(0)')
    maxchain(k, regs, t)
    k('v_cmp_eq_u32 vcc, -1, v%d' % t)
    k('s_nop 1')
    k('s_cbranch_vccnz %s' % Lp)

def xlane(k, op, v, t):
    for pl in ('v_permlane16_swap_b32', 'v_permlane32_swap_b32'):
        k('v_mov_b32 v%d, v%d' % (t, v)); k('v_mov_b32 v%d, v%d' % (t + 1, v))
        k('s_nop 1')
        k('%s v%d, v%d' % (pl, t, t + 1))
        k('s_nop 1')
        k('%s v%d, v%d, v%d' % (op, v, t, t + 1))

RED = 114688
STAMP = False
DBGOFF = 128 << 20
def stamp(k, idx):
    if not STAMP: return
    k('s_memtime s[%d:%d]' % (50 + 2 * idx, 51 + 2 * idx))
def stamp_flush(k, n, srole_off):
    if not STAMP: return
    k('s_waitcnt lgkmcnt(0)')
    k('s_lshr_b32 s70, s2, 3'); k('s_lshl_b32 s70, s70, 2'); k('s_add_u32 s70, s70, s10'); k('s_lshl_b32 s70, s70, 6'); k('s_add_u32 s70, s70, s36'); k('s_lshl_b32 s70, s70, 6')
    k('s_add_u32 s70, s70, 0x%x' % DBGOFF)
    k('s_add_u32 s72, s4, s70'); k('s_addc_u32 s73, s5, 0')
    k('s_mov_b64 exec, 1')
    k('v_mov_b32 v62, 0')
    for i in range(n):
        k('v_mov_b32 v61, s%d' % (50 + 2 * i))
        k('global_store_dword v62, v61, s[72:73] offset:%d' % (4 * i))
    k('s_mov_b64 exec, -1')
def k_chain():
    k = Kern('chain_kernel', grid=256, lds=RED + 24576, vgpr=256, agpr=256, sgpr=96)
    Lend, LO = k.newlab('end'), k.newlab('O')
    k('s_and_b32 s3, s2, 7'); k('s_cmp_lg_u32 s3, 0'); k('s_cbranch_scc1 %s' % Lend)
    k('s_cmp_ge_u32 s2, 240'); k('s_cbranch_scc1 %s' % Lend)
    k('s_lshr_b32 s3, s2, 3')
    k.ldarg(4, 'ws'); k.ldarg(6, 'dbg')
    k('v_and_b32 v1, 63, v0')
    k('v_lshrrev_b32 v2, 6, v0')
    k('s_nop 0')
    k('v_readfirstlane_b32 s10, v2')
    k('v_and_b32 v2, 15, v1')
    k('v_lshrrev_b32 v3, 4, v1')
    k('v_and_b32 v4, 7, v1')
    k('s_mov_b32 s%d, 0' % S_TO)
    k('s_getreg_b32 s20, hwreg(HW_REG_XCC_ID)')
    k('s_and_b32 s20, s20, 0xff'); k('s_add_u32 s20, s20, 1')
    k('s_waitcnt lgkmcnt(0)')
    k('v_mov_b32 v5, s20'); k('s_lshl_b32 s21, s3, 2'); k('v_mov_b32 v6, s21')
    k('s_mov_b64 exec, 1')
    k('global_store_dword v6, v5, s[6:7] sc1')
    k('s_mov_b64 exec, -1')
    k('v_min_u32 v6, 29, v1'); k('v_lshlrev_b32 v6, 2, v6')
    Lx = k.newlab('xp')
    k.lab(Lx)
    k('global_load_dword v5, v6, s[6:7] sc1')
    k('s_add_u32 s%d, s%d, 1' % (S_TO, S_TO))
    k('s_cmp_gt_u32 s%d, %d' % (S_TO, TO_LIMIT)); k('s_cbranch_scc1 %s' % Lend)
    k('s_waitcnt vmcnt(0)')
    k('v_cmp_eq_u32 vcc, 0, v5'); k('s_nop 1'); k('s_cbranch_vccnz %s' % Lx)
    k('v_cmp_ne_u32 vcc, s20, v5'); k('s_nop 1')
    k('s_cmp_eq_u64 vcc, 0'); k('s_cselect_b32 s%d, 1, 0' % S_FAST)
    k('v_lshlrev_b32 v9, 4, v1')
    k('v_add_u32 v5, 4096, v9'); k('v_add_u32 v6, 8192, v9'); k('v_add_u32 v7, 12288, v9')
    k('v_cmp_gt_u32 s[40:41], 32, v1')
    k('v_cmp_gt_u32 s[42:43], 8, v2')
    k('s_cmp_ge_u32 s3, 16'); k('s_cbranch_scc1 %s' % LO)
    MF = 64
    def memloads():
        for kk in range(14):
            k('global_load_dwordx4 %s, v%d, s[30:31] offset:%d sc1' % (vr(MF + 4 * kk, 4), (9, 5, 6, 7)[kk // 4], (kk % 4) * 1024))
    ACC = 32
    def mfrag(f): return ar(4 * f, 4) if f < 64 else vr(120 + 4 * (f - 64), 4)
    k('s_mul_i32 s21, s3, %d' % (448 * 448 * 2)); k('s_add_u32 s21, s21, 0x%x' % WS['MT'])
    k('s_add_u32 s22, s4, s21'); k('s_addc_u32 s23, s5, 0')
    k('s_mul_i32 s24, s10, 112')
    k('v_add_u32 v10, s24, v2'); k('v_mul_u32_u24 v10, 896, v10'); k('v_lshl_add_u32 v10, v3, 4, v10')
    for tt in range(7):
        for kk in range(14):
            k('global_load_dwordx4 %s, v10, s[22:23] offset:%d' % (mfrag(tt * 14 + kk), kk * 64))
        if tt < 6: k('v_add_u32 v10, 14336, v10')
        k('s_waitcnt vmcnt(14)')
    k('s_mul_i32 s24, s10, %d' % (7 * 512))
    k('v_lshlrev_b32 v11, 3, v1'); k('v_add_u32 v11, s24, v11')
    k('v_add_u32 v12, %d, v11' % (28 * 512))
    k('s_mul_i32 s24, s10, 3072'); k('s_add_u32 s24, s24, %d' % RED)
    k('v_add_u32 v14, s24, v9'); k('v_add_u32 v15, %d, v9' % RED)
    k.addoff(30, 4, WS['MEMF']); k.addoff(32, 4, WS['HP']); k.addoff(48, 4, WS['MEMP'])
    k('s_mul_i32 s24, s3, %d' % P_HEAD); k('s_add_u32 s24, s24, 0x%x' % WS['P'])
    k('s_add_u32 s34, s4, s24'); k('s_addc_u32 s35, s5, 0')
    k('v_lshlrev_b32 v16, 3, v1')
    k('s_mov_b32 s36, 0')
    k('s_mov_b32 s37, 0')
    k('s_waitcnt vmcnt(0)')
    LS, LSn = k.newlab('S'), k.newlab('Sn')
    k.lab(LS)
    stamp(k, 0)
    poll(k, memloads, range(MF, MF + 56), 60, Lend)
    stamp(k, 1)
    def hload(n):
        jt, q = n // 4, n % 4
        t0, t1 = 2 * q, min(2 * q + 1, 6)
        if jt == 0:
            k('global_load_dwordx2 %s, v11, s[48:49] offset:%d sc1' % (vr(MF + 4 * n, 2), t0 * 512))
            k('global_load_dwordx2 %s, v11, s[48:49] offset:%d sc1' % (vr(MF + 4 * n + 2, 2), t1 * 512))
        else:
            va = 11 if jt == 1 else 12
            k('global_load_dwordx2 %s, v%d, s[32:33] offset:%d' % (vr(MF + 4 * n, 2), va, t0 * 512))
            k('global_load_dwordx2 %s, v%d, s[32:33] offset:%d' % (vr(MF + 4 * n + 2, 2), va, t1 * 512))
    for kk in range(14):
        for tt in range(7):
            c = '0' if kk == 0 else vr(ACC + 4 * tt, 4)
            k('v_mfma_f32_16x16x32_bf16 %s, %s, %s, %s' % (vr(ACC + 4 * tt, 4), mfrag(tt * 14 + kk), vr(MF + 4 * kk, 4), c))
        if kk < 12: hload(kk)
    k.nop(10)
    stamp(k, 2)
    for q in range(4):
        a = ACC + 8 * q
        k('v_cvt_pk_bf16_f32 v%d, v%d, v%d' % (a, a, a + 1))
        k('v_cvt_pk_bf16_f32 v%d, v%d, v%d' % (a + 1, a + 2, a + 3))
        if q < 3:
            k('v_cvt_pk_bf16_f32 v%d, v%d, v%d' % (a + 2, a + 4, a + 5))
            k('v_cvt_pk_bf16_f32 v%d, v%d, v%d' % (a + 3, a + 6, a + 7))
        else:
            k('v_mov_b32 v%d, 0' % (a + 2)); k('v_mov_b32 v%d, 0' % (a + 3))
    k('s_waitcnt vmcnt(0)')
    k('s_nop 1')
    SA = [ACC + 4, ACC + 12, ACC + 20]
    for q in range(4):
        for jt in range(3):
            c = '0' if q == 0 else vr(SA[jt], 4)
            k('v_mfma_f32_16x16x32_bf16 %s, %s, %s, %s' % (vr(SA[jt], 4), vr(MF + 4 * (jt * 4 + q), 4), vr(ACC + 8 * q, 4), c))
    k('v_add_u32 v17, s37, v14')
    k.nop(10)
    for jt in range(3): k('ds_write_b128 v17, %s offset:%d' % (vr(SA[jt], 4), jt * 1024))
    stamp(k, 3)
    k('s_waitcnt lgkmcnt(0)'); k('s_barrier')
    stamp(k, 4)
    k('s_cmp_lg_u32 s10, 0'); k('s_cbranch_scc1 %s' % LSn)
    k('v_add_u32 v17, s37, v15')
    for w in range(1, 4):
        for jt in range(3):
            k('ds_read_b128 %s, v17 offset:%d' % (vr(MF + 12 * (w - 1) + 4 * jt, 4), w * 3072 + jt * 1024))
    k('s_waitcnt lgkmcnt(0)')
    for w in range(1, 4):
        for jt in range(3):
            for r in range(4):
                k('v_add_f32 v%d, v%d, v%d' % (SA[jt] + r, SA[jt] + r, MF + 12 * (w - 1) + 4 * jt + r))
    sc = [SA[jt] + r for jt in range(3) for r in range(4)]
    k('v_mov_b32 v60, 0xf149f2ca')
    for r in range(4): k('v_cndmask_b32 v%d, v60, v%d, s[40:41]' % (SA[0] + r, SA[0] + r))
    T = MF + 40
    k('v_max3_f32 v%d, v%d, v%d, v%d' % (T, sc[0], sc[1], sc[2]))
    for i in range(3, 11, 2): k('v_max3_f32 v%d, v%d, v%d, v%d' % (T, T, sc[i], sc[i + 1]))
    k('v_max_f32 v%d, v%d, v%d' % (T, T, sc[11]))
    xlane(k, 'v_max_f32', T, T + 1)
    k('v_mul_f32 v%d, 0x%08x, v%d' % (T, LOG2E, T))
    k('v_mov_b32 v%d, 0x%08x' % (T + 3, LOG2E))
    for r in sc: k('v_fma_f32 v%d, v%d, v%d, -v%d' % (r, r, T + 3, T))
    for r in sc: k('v_exp_f32 v%d, v%d' % (r, r))
    k('s_nop 0')
    k('v_add_f32 v%d, v%d, v%d' % (T, sc[0], sc[1]))
    for r in sc[2:]: k('v_add_f32 v%d, v%d, v%d' % (T, T, r))
    xlane(k, 'v_add_f32', T, T + 1)
    k('v_rcp_f32 v%d, v%d' % (T, T))
    k('s_nop 0')
    for r in sc: k('v_mul_f32 v%d, v%d, v%d' % (r, r, T))
    PK = MF + 48
    k('v_cvt_pk_bf16_f32 v%d, v%d, v%d' % (PK, sc[4], sc[5])); k('v_cvt_pk_bf16_f32 v%d, v%d, v%d' % (PK + 1, sc[6], sc[7]))
    k('v_cvt_pk_bf16_f32 v%d, v%d, v%d' % (PK + 2, sc[8], sc[9])); k('v_cvt_pk_bf16_f32 v%d, v%d, v%d' % (PK + 3, sc[10], sc[11]))
    k('v_cvt_pk_bf16_f32 v%d, v%d, v%d' % (PK + 4, sc[0], sc[1])); k('v_cvt_pk_bf16_f32 v%d, v%d, v%d' % (PK + 5, sc[2], sc[3]))
    pub_store(k, 'global_store_dwordx4 v9, %s, s[34:35]' % vr(PK, 4))
    pub_store(k, 'global_store_dwordx2 v16, %s, s[34:35] offset:1024' % vr(PK + 4, 2))
    k('s_nop 1')
    k.lab(LSn)
    stamp(k, 5)
    stamp_flush(k, 6, 0)
    k('s_add_u32 s30, s30, %d' % MEM_STRIDE); k('s_addc_u32 s31, s31, 0')
    k('s_add_u32 s48, s48, %d' % MEM_STRIDE); k('s_addc_u32 s49, s49, 0')
    k('s_add_u32 s32, s32, %d' % (2 * 28 * 512)); k('s_addc_u32 s33, s33, 0')
    k('s_add_u32 s34, s34, %d' % P_STEP); k('s_addc_u32 s35, s35, 0')
    k('s_xor_b32 s37, s37, 12288')
    k('s_add_u32 s36, s36, 1'); k('s_cmp_lt_u32 s36, 63'); k('s_cbranch_scc1 %s' % LS)
    k('s_branch %s' % Lend)
    k.lab(LO)
    k('s_sub_u32 s3, s3, 16')
    def nfrag(f): return ar(4 * f, 4) if f < 64 else vr(176 + 4 * (f - 64), 4)
    UTF = 120
    VM = 152
    VA = 168
    OA = 32
    LT = 40
    UO = 20
    k.addoff(22, 4, WS['NT'])
    k('s_mul_i32 s24, s10, %d' % (4 * 448)); k('s_lshl_b32 s25, s3, 5'); k('s_add_u32 s24, s24, s25')
    k('v_add_u32 v10, s24, v2')
    k('v_mul_u32_u24 v11, 896, v10'); k('v_lshl_add_u32 v11, v3, 4, v11')
    k('s_mul_i32 s26, s10, 28672'); k('v_add_u32 v12, s26, v9')
    for u in range(4):
        for dt in range(2):
            k('v_add_u32 v13, %d, v11' % ((u * 448 + dt * 16) * 896))
            if u < 3:
                for kk in range(14):
                    k('global_load_dwordx4 %s, v13, s[22:23] offset:%d' % (nfrag((u * 2 + dt) * 14 + kk), kk * 64))
                k('s_waitcnt vmcnt(14)')
            else:
                for kk in range(14):
                    k('global_load_dwordx4 %s, v13, s[22:23] offset:%d' % (vr(MF + 4 * kk, 4), kk * 64))
                k('s_waitcnt vmcnt(0)')
                for kk in range(14):
                    k('ds_write_b128 v12, %s offset:%d' % (vr(MF + 4 * kk, 4), (dt * 14 + kk) * 1024))
                k('s_waitcnt lgkmcnt(0)')
    k('s_mul_i32 s24, s10, %d' % (4 * 28)); k('s_lshl_b32 s25, s3, 1'); k('s_add_u32 s24, s24, s25'); k('s_lshl_b32 s24, s24, 10')
    k('v_add_u32 v%d, s24, v9' % UO)
    for u in range(1, 4): k('v_add_u32 v%d, %d, v%d' % (UO + u, 28 * 1024, UO + u - 1))
    k('s_mul_i32 s24, s10, %d' % (2 * 28)); k('s_add_u32 s24, s24, s25'); k('s_lshl_b32 s24, s24, 10')
    k('v_add_u32 v%d, s24, v9' % (UO + 4)); k('v_add_u32 v%d, %d, v%d' % (UO + 5, 28 * 1024, UO + 4))
    k('v_lshrrev_b32 v15, 1, v3'); k('v_lshl_add_u32 v15, v15, 4, v2'); k('v_lshlrev_b32 v15, 4, v15')
    k('v_and_b32 v14, 1, v3'); k('v_lshl_add_u32 v15, v14, 3, v15')
    k('s_lshl_b32 s25, s3, 10'); k('s_lshl_b32 s26, s10, 9'); k('s_add_u32 s25, s25, s26'); k('v_add_u32 v15, s25, v15')
    k('v_lshlrev_b32 v14, 3, v1'); k('v_add_u32 v14, s25, v14')
    k('v_lshlrev_b32 v16, 3, v1')
    k('s_lshl_b32 s24, s10, 11'); k('s_add_u32 s24, s24, %d' % RED); k('v_add_u32 v17, s24, v9')
    k('s_lshl_b32 s24, s10, 10'); k('s_add_u32 s24, s24, %d' % RED); k('v_add_u32 v18, s24, v9')
    k.addoff(30, 4, WS['MEMF']); k.addoff(32, 4, WS['UF']); k.addoff(38, 4, WS['UMF']); k.addoff(46, 4, WS['MEMF'] + MEM_STRIDE); k.addoff(48, 4, WS['MEMP'] + MEM_STRIDE)
    k('s_mul_i32 s24, s10, %d' % (4 * P_HEAD)); k('s_add_u32 s24, s24, 0x%x' % (WS['P'] + 4096))
    k('s_add_u32 s34, s4, s24'); k('s_addc_u32 s35, s5, 0')
    k('s_mov_b32 s36, 0'); k('s_mov_b32 s37, 0')
    k('s_waitcnt vmcnt(0)')
    LOl, LOn, LOu = k.newlab('Ol'), k.newlab('On'), k.newlab('Ou')
    k.lab(LOl)
    stamp(k, 0)
    k('s_cmp_eq_u32 s36, 63'); k('s_cbranch_scc1 %s' % LOu)
    for u in range(4):
        for dt in range(2):
            n = u * 2 + dt
            k('global_load_dwordx4 %s, v%d, s[32:33] offset:%d' % (vr(UTF + 4 * n, 4), UO + u, dt * 1024))
    k.lab(LOu)
    poll(k, memloads, range(MF, MF + 56), 60, Lend)
    stamp(k, 1)
    def finish(n):
        u, dt = n // 2, n % 2
        a = VA + 4 * (n & 1)
        d = VM + ((u >> 1) * 2 + dt) * 4 + 2 * (u & 1)
        k('v_cvt_pk_bf16_f32 v%d, v%d, v%d' % (d, a, a + 1))
        k('v_cvt_pk_bf16_f32 v%d, v%d, v%d' % (d + 1, a + 2, a + 3))
        if u & 1:
            k('global_store_dwordx4 v%d, %s, s[38:39] offset:%d' % (UO + 4 + (u >> 1), vr(d - 2, 4), dt * 1024))
    for n in range(8):
        u, dt = n // 2, n % 2
        a = VA + 4 * (n & 1)
        if u == 3:
            for j in range(4): k('ds_read_b128 %s, v12 offset:%d' % (vr(LT + 4 * j, 4), (dt * 14 + j) * 1024))
        for kk in range(14):
            c = '0' if kk == 0 else vr(a, 4)
            if u < 3:
                b = nfrag((u * 2 + dt) * 14 + kk)
            else:
                b = vr(LT + 4 * (kk % 4), 4)
                k('s_waitcnt lgkmcnt(%d)' % min(3, 13 - kk))
            k('v_mfma_f32_16x16x32_bf16 %s, %s, %s, %s' % (vr(a, 4), vr(MF + 4 * kk, 4), b, c))
            if u == 3 and kk + 4 < 14:
                k('ds_read_b128 %s, v12 offset:%d' % (vr(LT + 4 * (kk % 4), 4), (dt * 14 + kk + 4) * 1024))
            if kk == 10 and n > 0: finish(n - 1)
    k.nop(10)
    finish(7)
    stamp(k, 2)
    k('s_cmp_eq_u32 s36, 63'); k('s_cbranch_scc1 %s' % Lend)
    PX = MF
    PM = MF + 16
    def ploads():
        for u in range(4):
            k('global_load_dwordx4 %s, v9, s[34:35] offset:%d sc1' % (vr(PX + 4 * u, 4), u * P_HEAD - 4096))
            k('global_load_dwordx2 %s, v16, s[34:35] offset:%d sc1' % (vr(PM + 2 * u, 2), u * P_HEAD + 1024 - 4096))
    poll(k, ploads, range(MF, MF + 24), 60, Lend)
    stamp(k, 3)
    for u in range(4):
        for dt in range(2):
            c = '0' if u == 0 else vr(OA + 4 * dt, 4)
            k('v_mfma_f32_16x16x32_bf16 %s, %s, %s, %s' % (vr(OA + 4 * dt, 4), vr(UTF + 4 * (u * 2 + dt), 4), vr(PX + 4 * u, 4), c))
    for pr in range(2):
        for dt in range(2):
            k('v_mfma_f32_16x16x32_bf16 %s, %s, %s, %s' % (vr(OA + 4 * dt, 4), vr(VM + (pr * 2 + dt) * 4, 4), vr(PM + 4 * pr, 4), vr(OA + 4 * dt, 4)))
    k('v_add_u32 v19, s37, v17')
    k.nop(10)
    k('ds_write_b128 v19, %s' % vr(OA, 4)); k('ds_write_b128 v19, %s offset:1024' % vr(OA + 4, 4))
    k('s_waitcnt lgkmcnt(0)'); k('s_barrier')
    stamp(k, 4)
    k('s_cmp_ge_u32 s10, 2'); k('s_cbranch_scc1 %s' % LOn)
    k('v_add_u32 v19, s37, v18')
    for w in range(4): k('ds_read_b128 %s, v19 offset:%d' % (vr(LT + 4 * w, 4), w * 2048))
    k('s_waitcnt lgkmcnt(0)')
    for r in range(4):
        k('v_add_f32 v%d, v%d, v%d' % (LT + r, LT + r, LT + 4 + r))
        k('v_add_f32 v%d, v%d, v%d' % (LT + 8 + r, LT + 8 + r, LT + 12 + r))
        k('v_add_f32 v%d, v%d, v%d' % (LT + r, LT + r, LT + 8 + r))
    k('v_cvt_pk_bf16_f32 v%d, v%d, v%d' % (LT + 4, LT, LT + 1)); k('v_cvt_pk_bf16_f32 v%d, v%d, v%d' % (LT + 5, LT + 2, LT + 3))
    pub_store(k, 'global_store_dwordx2 v15, %s, s[46:47]' % vr(LT + 4, 2))
    pub_store(k, 'global_store_dwordx2 v14, %s, s[48:49]' % vr(LT + 4, 2))
    k.lab(LOn)
    stamp(k, 5)
    stamp_flush(k, 6, 0)
    k('s_add_u32 s30, s30, %d' % MEM_STRIDE); k('s_addc_u32 s31, s31, 0')
    k('s_add_u32 s46, s46, %d' % MEM_STRIDE); k('s_addc_u32 s47, s47, 0')
    k('s_add_u32 s48, s48, %d' % MEM_STRIDE); k('s_addc_u32 s49, s49, 0')
    k('s_add_u32 s32, s32, %d' % (16 * 28 * 1024)); k('s_addc_u32 s33, s33, 0')
    k('s_add_u32 s34, s34, %d' % P_STEP); k('s_addc_u32 s35, s35, 0')
    k('s_add_u32 s38, s38, %d' % UM_STEP); k('s_addc_u32 s39, s39, 0')
    k('s_xor_b32 s37, s37, 8192')
    k('s_add_u32 s36, s36, 1'); k('s_branch %s' % LOl)
    k.lab(Lend)
    return k
```

```python
from fw import *
from k_prep import rnd_bf16

def setbase(k, sdst, spec, sws, sbatch):
    kind, key, bstride = spec
    if kind == 'ws':
        k.addoff(sdst, sws, key)
    if bstride:
        k('s_mul_i32 s40, s%d, %d' % (sbatch, bstride))
        k('s_add_u32 s%d, s%d, s40' % (sdst, sdst)); k('s_addc_u32 s%d, s%d, 0' % (sdst + 1, sdst + 1))

def k_gemm(name, A, lda, B, ldb, C, ldc, K, MT, NT, WM, WN, tiles_m, tiles_n, batch=1, epi='plain', scale=None):
    TM, TN = 32 * MT * WM, 32 * NT * WN
    PA, PB = TM * 8 // 256, TN * 8 // 256
    BS = (TM + TN) * 144
    NC = K // 64
    tot = tiles_m * tiles_n * batch
    vAo = 8; vBo = vAo + PA
    vst = (vBo + PB + 12 + 3) // 4 * 4
    vmisc = vBo + PB
    v_lwa, v_lwb, v_fa, v_fb, v_lwa_c, v_lwb_c, v_fa_c, v_fb_c = range(vmisc, vmisc + 8)
    vfr = vst + (PA + PB) * 4
    nfr = (MT + NT) * 4
    vend = vfr + 2 * nfr
    vtmp = vst
    nv = max(vend, vtmp + 64)
    k = Kern(name, grid=tot, lds=2 * BS, vgpr=nv, agpr=MT * NT * 16, sgpr=64)
    Lend, Lloop, Lnold, Lnow = k.newlab('end'), k.newlab('loop'), k.newlab('nold'), k.newlab('now')
    k('s_cmp_ge_u32 s2, %d' % tot); k('s_cbranch_scc1 %s' % Lend)
    k.ldarg(4, 'ws')
    if A[0] == 'arg': k.ldarg(6, A[1])
    if B[0] == 'arg': k.ldarg(8, B[1])
    if C[0] == 'arg': k.ldarg(10, C[1])
    if epi == 'ffn1': k.ldarg(12, 'b1')
    if epi == 'ffn2': k.ldarg(12, 'b2')
    if batch > 1:
        k.sdiv(20, 2, tiles_m * tiles_n, tot - 1)
        k('s_mul_i32 s21, s20, %d' % (tiles_m * tiles_n)); k('s_sub_u32 s21, s2, s21')
    else:
        k('s_mov_b32 s20, 0'); k('s_mov_b32 s21, s2')
    k.sdiv(22, 21, tiles_n, tiles_m * tiles_n - 1)
    k('s_mul_i32 s23, s22, %d' % tiles_n); k('s_sub_u32 s23, s21, s23')
    k('v_and_b32 v1, 63, v0')
    k('v_lshrrev_b32 v2, 6, v0')
    k('s_nop 0')
    k('v_readfirstlane_b32 s24, v2')
    k('s_waitcnt lgkmcnt(0)')
    setbase(k, 6, A, 4, 20); setbase(k, 8, B, 4, 20); setbase(k, 10, C, 4, 20)
    if WN == 1: k('s_mov_b32 s25, s24'); k('s_mov_b32 s26, 0')
    elif WM == 1: k('s_mov_b32 s25, 0'); k('s_mov_b32 s26, s24')
    else: k('s_lshr_b32 s25, s24, 1'); k('s_and_b32 s26, s24, 1')
    k('v_lshrrev_b32 v2, 3, v0')
    k('v_and_b32 v3, 7, v0')
    k('v_lshlrev_b32 v3, 4, v3')
    k('s_mul_i32 s27, s22, %d' % TM)
    k('s_mul_i32 s28, s23, %d' % TN)
    k('s_mov_b32 s29, %d' % lda); k('s_mov_b32 s30, %d' % ldb)
    k('v_add_u32 v4, s27, v2'); k('v_mul_lo_u32 v4, v4, s29'); k('v_add_u32 v%d, v4, v3' % vAo)
    for i in range(1, PA): k('v_add_u32 v%d, %d, v%d' % (vAo + i, 32 * lda, vAo + i - 1))
    k('v_add_u32 v4, s28, v2'); k('v_mul_lo_u32 v4, v4, s30'); k('v_add_u32 v%d, v4, v3' % vBo)
    for i in range(1, PB): k('v_add_u32 v%d, %d, v%d' % (vBo + i, 32 * ldb, vBo + i - 1))
    k('v_mul_u32_u24 v4, 144, v2'); k('v_add_u32 v%d, v4, v3' % v_lwa)
    k('v_add_u32 v%d, %d, v%d' % (v_lwb, TM * 144, v_lwa))
    k('v_and_b32 v4, 31, v1'); k('v_lshrrev_b32 v5, 5, v1'); k('v_lshlrev_b32 v5, 4, v5')
    k('s_mul_i32 s31, s25, %d' % (32 * MT)); k('v_add_u32 v6, s31, v4'); k('v_mul_u32_u24 v6, 144, v6'); k('v_add_u32 v%d, v6, v5' % v_fa)
    k('s_mul_i32 s31, s26, %d' % (32 * NT)); k('v_add_u32 v6, s31, v4'); k('v_mul_u32_u24 v6, 144, v6'); k('v_add_u32 v6, v6, v5')
    k('v_add_u32 v%d, %d, v6' % (v_fb, TM * 144))
    for i in range(MT * NT * 16): k('v_accvgpr_write_b32 a%d, 0' % i)
    def loads():
        for i in range(PA): k('global_load_dwordx4 %s, v%d, s[6:7]' % (vr(vst + 4 * i, 4), vAo + i))
        for i in range(PB): k('global_load_dwordx4 %s, v%d, s[8:9]' % (vr(vst + 4 * (PA + i), 4), vBo + i))
        k('s_add_u32 s6, s6, 128'); k('s_addc_u32 s7, s7, 0')
        k('s_add_u32 s8, s8, 128'); k('s_addc_u32 s9, s9, 0')
    def writes(va, vb):
        for i in range(PA): k('ds_write_b128 v%d, %s offset:%d' % (va, vr(vst + 4 * i, 4), i * 4608))
        for i in range(PB): k('ds_write_b128 v%d, %s offset:%d' % (vb, vr(vst + 4 * (PA + i), 4), i * 4608))
    loads()
    k('s_waitcnt vmcnt(0)')
    writes(v_lwa, v_lwb)
    k('s_mov_b32 s32, 0')
    k('s_mov_b32 s33, 0')
    k('s_mov_b32 s34, %d' % BS)
    k('s_waitcnt lgkmcnt(0)'); k('s_barrier')
    k.lab(Lloop)
    k('s_cmp_ge_u32 s32, %d' % (NC - 1)); k('s_cbranch_scc1 %s' % Lnold)
    loads()
    k.lab(Lnold)
    k('v_add_u32 v%d, s33, v%d' % (v_fa_c, v_fa)); k('v_add_u32 v%d, s33, v%d' % (v_fb_c, v_fb))
    k('v_add_u32 v%d, s34, v%d' % (v_lwa_c, v_lwa)); k('v_add_u32 v%d, s34, v%d' % (v_lwb_c, v_lwb))
    def rd(ks):
        base = vfr + (ks & 1) * nfr
        for mt in range(MT): k('ds_read_b128 %s, v%d offset:%d' % (vr(base + 4 * mt, 4), v_fa_c, mt * 4608 + ks * 32))
        for nt in range(NT): k('ds_read_b128 %s, v%d offset:%d' % (vr(base + 4 * (MT + nt), 4), v_fb_c, nt * 4608 + ks * 32))
    rd(0)
    for ks in range(4):
        if ks < 3:
            rd(ks + 1); k('s_waitcnt lgkmcnt(%d)' % (MT + NT))
        else:
            k('s_waitcnt lgkmcnt(0)')
        base = vfr + (ks & 1) * nfr
        for mt in range(MT):
            for nt in range(NT):
                a = (mt * NT + nt) * 16
                k('v_mfma_f32_32x32x16_bf16 %s, %s, %s, %s' % (ar(a, 16), vr(base + 4 * (MT + nt), 4), vr(base + 4 * mt, 4), ar(a, 16)))
    k('s_cmp_ge_u32 s32, %d' % (NC - 1)); k('s_cbranch_scc1 %s' % Lnow)
    k('s_waitcnt vmcnt(0)')
    writes(v_lwa_c, v_lwb_c)
    k.lab(Lnow)
    k('s_waitcnt lgkmcnt(0)'); k('s_barrier')
    k('s_mov_b32 s35, s33'); k('s_mov_b32 s33, s34'); k('s_mov_b32 s34, s35')
    k('s_add_u32 s32, s32, 1')
    k('s_cmp_lt_u32 s32, %d' % NC); k('s_cbranch_scc1 %s' % Lloop)
    k.nop(16)
    k('v_and_b32 v4, 31, v1'); k('v_lshrrev_b32 v5, 5, v1')
    k('s_mul_i32 s31, s25, %d' % (32 * MT)); k('s_add_u32 s31, s31, s27')
    k('v_add_u32 v4, s31, v4')
    k('s_mul_i32 s36, s26, %d' % (32 * NT)); k('s_add_u32 s36, s36, s28')
    k('v_lshlrev_b32 v5, 2, v5'); k('v_add_u32 v5, s36, v5')
    k('s_mov_b32 s37, %d' % ldc)
    k('v_mul_lo_u32 v6, v4, s37')
    k('v_lshl_add_u32 v6, v5, 1, v6')
    if epi == 'bxf':
        k('v_lshrrev_b32 v6, 4, v4'); k('v_mul_u32_u24 v6, 224, v6')
        k('s_lshr_b32 s38, s36, 5'); k('v_add_u32 v6, s38, v6')
        k('v_lshlrev_b32 v6, 6, v6'); k('v_and_b32 v7, 15, v4'); k('v_add_u32 v6, v6, v7')
        k('v_lshlrev_b32 v6, 4, v6'); k('v_lshrrev_b32 v7, 5, v1'); k('v_lshl_add_u32 v6, v7, 3, v6')
    if epi == 'uf':
        k('s_lshr_b32 s38, s36, 5'); k('s_mul_i32 s38, s38, 448')
        k('v_lshrrev_b32 v6, 4, v4'); k('v_add_u32 v6, s38, v6')
        k('v_lshlrev_b32 v6, 6, v6'); k('v_and_b32 v7, 15, v4'); k('v_add_u32 v6, v6, v7')
        k('v_lshrrev_b32 v7, 5, v1'); k('v_lshl_add_u32 v6, v7, 4, v6')
        k('v_lshlrev_b32 v6, 4, v6')
    if epi in ('ffn1', 'ffn2'):
        k('v_lshlrev_b32 v7, 1, v5')
    if epi == 'ffn2':
        k.addoff(14, 4, WS['MOD'] + 5 * 448 * 4)
        k.addoff(16, 4, WS['X1'])
        k('v_lshlrev_b32 v2, 2, v5')
    tset = 0
    for mt in range(MT):
        for nt in range(NT):
            for q in range(4):
                t = vtmp + (tset % 4) * 16; tset += 1
                a = (mt * NT + nt) * 16 + 4 * q
                noff = 32 * nt + 8 * q
                if epi in ('ffn1', 'ffn2'):
                    k('global_load_dwordx2 %s, v7, s[12:13] offset:%d' % (vr(t + 4, 2), noff * 2))
                if epi == 'ffn2':
                    k('global_load_dwordx4 %s, v2, s[14:15] offset:%d' % (vr(t + 8, 4), noff * 4))
                    k('global_load_dwordx2 %s, v6, s[16:17] offset:%d' % (vr(t + 6, 2), noff * 2))
                for r in range(4): k('v_accvgpr_read_b32 v%d, a%d' % (t + r, a + r))
                if epi in ('bxf', 'uf'):
                    k('v_cvt_pk_bf16_f32 v%d, v%d, v%d' % (t + 4, t, t + 1))
                    k('v_cvt_pk_bf16_f32 v%d, v%d, v%d' % (t + 5, t + 2, t + 3))
                    if epi == 'bxf':
                        k('global_store_dwordx2 v6, %s, s[10:11] offset:%d' % (vr(t + 4, 2), nt * 1024 + q * 256))
                    else:
                        if nt == 0:
                            k('global_store_dwordx2 v6, %s, s[10:11] offset:%d' % (vr(t + 4, 2), (q & 1) * 512 + (q >> 1) * 8))
                        else:
                            k('v_add_u32 v7, %d, v6' % (nt * 448 * 1024))
                            k('global_store_dwordx2 v7, %s, s[10:11] offset:%d' % (vr(t + 4, 2), (q & 1) * 512 + (q >> 1) * 8))
                elif epi == 'plain':
                    if scale is not None:
                        for r in range(4): k('v_mul_f32 v%d, 0x%08x, v%d' % (t + r, scale, t + r))
                    k('v_cvt_pk_bf16_f32 v%d, v%d, v%d' % (t + 4, t, t + 1))
                    k('v_cvt_pk_bf16_f32 v%d, v%d, v%d' % (t + 5, t + 2, t + 3))
                    k('global_store_dwordx2 v6, %s, s[10:11] offset:%d' % (vr(t + 4, 2), noff * 2))
                else:
                    rnd_bf16(k, (t, t + 1), t, t + 1, t + 12); rnd_bf16(k, (t + 2, t + 3), t + 2, t + 3, t + 12)
                    k('s_waitcnt vmcnt(0)')
                    for j in range(2):
                        k('v_lshlrev_b32 v%d, 16, v%d' % (t + 12, t + 4 + j)); k('v_and_b32 v%d, 0xffff0000, v%d' % (t + 13, t + 4 + j))
                        k('v_add_f32 v%d, v%d, v%d' % (t + 2 * j, t + 2 * j, t + 12)); k('v_add_f32 v%d, v%d, v%d' % (t + 2 * j + 1, t + 2 * j + 1, t + 13))
                    rnd_bf16(k, (t, t + 1), t, t + 1, t + 12); rnd_bf16(k, (t + 2, t + 3), t + 2, t + 3, t + 12)
                    if epi == 'ffn1':
                        for r in range(4):
                            z = t + r; u = t + 12
                            k('v_mul_f32 v%d, v%d, v%d' % (u, z, z))
                            k('v_mov_b32 v%d, 0x3d372713' % (u + 1))
                            k('v_fma_f32 v%d, v%d, v%d, 1.0' % (u, u, u + 1))
                            k('v_mul_f32 v%d, v%d, v%d' % (u, u, z))
                            k('v_mul_f32 v%d, 0x%08x, v%d' % (u, 0xc0135761, u))
                            k('v_exp_f32 v%d, v%d' % (u, u))
                            k('s_nop 0')
                            k('v_add_f32 v%d, 1.0, v%d' % (u, u))
                            k('v_rcp_f32 v%d, v%d' % (u, u))
                            k('s_nop 0')
                            k('v_mul_f32 v%d, v%d, v%d' % (z, z, u))
                    else:
                        for r in range(4): k('v_mul_f32 v%d, v%d, v%d' % (t + r, t + r, t + 8 + r))
                        rnd_bf16(k, (t, t + 1), t, t + 1, t + 12); rnd_bf16(k, (t + 2, t + 3), t + 2, t + 3, t + 12)
                        for j in range(2):
                            k('v_lshlrev_b32 v%d, 16, v%d' % (t + 12, t + 6 + j)); k('v_and_b32 v%d, 0xffff0000, v%d' % (t + 13, t + 6 + j))
                            k('v_add_f32 v%d, v%d, v%d' % (t + 2 * j, t + 2 * j, t + 12)); k('v_add_f32 v%d, v%d, v%d' % (t + 2 * j + 1, t + 2 * j + 1, t + 13))
                    k('v_cvt_pk_bf16_f32 v%d, v%d, v%d' % (t + 14, t, t + 1))
                    k('v_cvt_pk_bf16_f32 v%d, v%d, v%d' % (t + 15, t + 2, t + 3))
                    k('global_store_dwordx2 v6, %s, s[10:11] offset:%d' % (vr(t + 14, 2), noff * 2))
        if mt < MT - 1:
            k('v_add_u32 v6, %d, v6' % ({'bxf': 2 * 224 * 1024, 'uf': 2 * 1024}.get(epi, 32 * ldc)))
    k.lab(Lend)
    return k
```

```python
from fw import *

def k_prep0():
    NMOD, NTR, NFILL = 21, 840, 64
    tot = NMOD + NTR + NFILL
    k = Kern('prep0_kernel', grid=tot, lds=64*144, vgpr=96, sgpr=96)
    Lend, Ltr, Lfill = k.newlab('end'), k.newlab('tr'), k.newlab('fill')
    k('s_cmp_ge_u32 s2, %d' % tot); k('s_cbranch_scc1 %s' % Lend)
    k.ldarg(4, 'c'); k.ldarg(6, 'wmod'); k.ldarg(8, 'ws'); k.ldarg(12, 'Wo'); k.ldarg(14, 'w1'); k.ldarg(16, 'w2'); k.ldarg(18, 'mem0')
    k('v_and_b32 v1, 63, v0')
    k('v_lshrrev_b32 v2, 6, v0')
    k('s_nop 0')
    k('v_readfirstlane_b32 s10, v2')
    k('s_waitcnt lgkmcnt(0)')
    k('s_cmp_ge_u32 s2, %d' % NMOD); k('s_cbranch_scc1 %s' % Ltr)
    k('s_mul_i32 s11, s10, 112')
    k('v_add_u32 v2, s11, v1')
    k('v_min_u32 v3, 47, v1')
    k('v_add_u32 v3, 64, v3')
    k('v_add_u32 v3, s11, v3')
    k('v_lshlrev_b32 v2, 1, v2'); k('v_lshlrev_b32 v3, 1, v3')
    k('global_load_ushort v4, v2, s[4:5]')
    k('global_load_ushort v5, v3, s[4:5]')
    k('s_mul_i32 s20, s11, 5376')
    k('s_lshl_b32 s21, s2, 8')
    k('s_add_u32 s20, s20, s21')
    k('v_lshlrev_b32 v6, 2, v1')
    k('v_add_u32 v6, s20, v6')
    k('s_waitcnt vmcnt(0)')
    for r in (4, 5):
        k('v_lshlrev_b32 v%d, 16, v%d' % (r, r))
        k('v_mul_f32 v7, 0xbfb8aa3b, v%d' % r)
        k('v_exp_f32 v7, v7')
        k('s_nop 0')
        k('v_add_f32 v7, 1.0, v7')
        k('v_rcp_f32 v7, v7')
        k('s_nop 0')
        k('v_mul_f32 v%d, v%d, v7' % (r, r))
    k('v_cvt_pk_bf16_f32 v7, v4, v5')
    k('v_lshlrev_b32 v4, 16, v7')
    k('v_and_b32 v5, 0xffff0000, v7')
    k('v_mov_b32 v8, 0'); k('v_mov_b32 v9, 0')
    for b in range(2):
        for i in range(56):
            k('global_load_dword v%d, v6, s[6:7]' % (16 + i))
            k('v_add_u32 v6, 5376, v6')
        for i in range(56):
            kk = b * 56 + i
            src, lane = (4, kk) if kk < 64 else (5, kk - 64)
            k('v_readlane_b32 s%d, v%d, %d' % (24 + i, src, lane))
        k('s_waitcnt vmcnt(0)')
        for i in range(56):
            k('v_lshlrev_b32 v10, 16, v%d' % (16 + i))
            k('v_and_b32 v11, 0xffff0000, v%d' % (16 + i))
            k('v_fmac_f32 v8, s%d, v10' % (24 + i))
            k('v_fmac_f32 v9, s%d, v11' % (24 + i))
    k('v_lshlrev_b32 v10, 3, v0')
    k('ds_write_b64 v10, v[8:9]')
    k('s_waitcnt lgkmcnt(0)')
    k('s_barrier')
    k('s_cmp_lg_u32 s10, 0'); k('s_cbranch_scc1 %s' % Lend)
    k('ds_read_b64 v[12:13], v10 offset:512')
    k('ds_read_b64 v[14:15], v10 offset:1024')
    k('ds_read_b64 v[16:17], v10 offset:1536')
    k('s_waitcnt lgkmcnt(0)')
    for r in (12, 14, 16):
        k('v_add_f32 v8, v8, v%d' % r); k('v_add_f32 v9, v9, v%d' % (r + 1))
    k('v_cvt_pk_bf16_f32 v7, v8, v9')
    k('v_lshlrev_b32 v8, 16, v7'); k('v_and_b32 v9, 0xffff0000, v7')
    k('v_add_f32 v12, 1.0, v8'); k('v_add_f32 v13, 1.0, v9')
    k('v_cvt_pk_bf16_f32 v7, v12, v13')
    k('v_lshlrev_b32 v12, 16, v7'); k('v_and_b32 v13, 0xffff0000, v7')
    k('s_lshl_b32 s21, s2, 7')
    k('v_lshlrev_b32 v14, 1, v1'); k('v_add_u32 v14, s21, v14')
    k('v_subrev_u32 v15, 448, v14')
    k('v_cmp_gt_u32 vcc, 448, v15')
    k('s_nop 1')
    k('s_mov_b64 s[22:23], vcc')
    k('v_subrev_u32 v15, 1792, v14')
    k('v_cmp_gt_u32 vcc, 448, v15')
    k('s_nop 1')
    k('s_or_b64 vcc, vcc, s[22:23]')
    k('s_nop 1')
    k('v_cndmask_b32 v8, v8, v12, vcc'); k('v_cndmask_b32 v9, v9, v13, vcc')
    k('v_lshlrev_b32 v14, 2, v14')
    k('global_store_dwordx2 v14, v[8:9], s[8:9] offset:%d' % WS['MOD'])
    k('s_branch %s' % Lend)
    k.lab(Ltr)
    k('s_cmp_ge_u32 s2, %d' % (NMOD + NTR)); k('s_cbranch_scc1 %s' % Lfill)
    L1, L2, Lc = k.newlab('t1'), k.newlab('t2'), k.newlab('tc')
    k('s_sub_u32 s20, s2, %d' % NMOD)
    k('s_cmp_ge_u32 s20, 448'); k('s_cbranch_scc1 %s' % L1)
    k.sdiv(21, 20, 28, 447)
    k('s_mul_i32 s22, s21, 28'); k('s_sub_u32 s20, s20, s22')
    k.sdiv(23, 20, 7, 27)
    k('s_mul_i32 s22, s23, 7'); k('s_sub_u32 s24, s20, s22')
    k('s_mul_i32 s22, s21, 229376')
    k('s_add_u32 s30, s12, s22'); k('s_addc_u32 s31, s13, 0')
    k('s_add_u32 s22, s22, 0x%x' % WS['WOT'])
    k('s_add_u32 s32, s8, s22'); k('s_addc_u32 s33, s9, 0')
    k('s_mov_b32 s25, %d' % (448 * 2)); k('s_mov_b32 s26, %d' % (256 * 2))
    k('s_branch %s' % Lc)
    k.lab(L1)
    k('s_cmp_ge_u32 s20, 644'); k('s_cbranch_scc1 %s' % L2)
    k('s_sub_u32 s20, s20, 448')
    k.sdiv(23, 20, 28, 195)
    k('s_mul_i32 s22, s23, 28'); k('s_sub_u32 s24, s20, s22')
    k('s_mov_b32 s30, s14'); k('s_mov_b32 s31, s15')
    k.addoff(32, 8, WS['W1T'])
    k('s_mov_b32 s25, %d' % (1792 * 2)); k('s_mov_b32 s26, %d' % (448 * 2))
    k('s_branch %s' % Lc)
    k.lab(L2)
    k('s_sub_u32 s20, s20, 644')
    k.sdiv(23, 20, 7, 195)
    k('s_mul_i32 s22, s23, 7'); k('s_sub_u32 s24, s20, s22')
    k('s_mov_b32 s30, s16'); k('s_mov_b32 s31, s17')
    k.addoff(32, 8, WS['W2T'])
    k('s_mov_b32 s25, %d' % (448 * 2)); k('s_mov_b32 s26, %d' % (1792 * 2))
    k.lab(Lc)
    k('v_lshrrev_b32 v2, 3, v0')
    k('v_and_b32 v3, 7, v0')
    k('s_lshl_b32 s27, s23, 6')
    k('s_lshl_b32 s28, s24, 6')
    k('v_add_u32 v4, s27, v2')
    k('v_mul_lo_u32 v4, v4, s25')
    k('v_lshlrev_b32 v5, 4, v3')
    k('s_lshl_b32 s29, s28, 1')
    k('v_add3_u32 v4, v4, v5, s29')
    k('s_lshl_b32 s34, s25, 5')
    k('v_add_u32 v6, s34, v4')
    k('global_load_dwordx4 v[16:19], v4, s[30:31]')
    k('global_load_dwordx4 v[20:23], v6, s[30:31]')
    k('v_mul_u32_u24 v7, 144, v2')
    k('v_add_u32 v7, v7, v5')
    k('s_waitcnt vmcnt(0)')
    k('ds_write_b128 v7, v[16:19]')
    k('ds_write_b128 v7, v[20:23] offset:4608')
    k('s_waitcnt lgkmcnt(0)')
    k('s_barrier')
    k('v_mul_u32_u24 v7, %d, v3' % (8 * 144))
    k('v_lshl_add_u32 v7, v2, 1, v7')
    for p in range(2):
        for i in range(8):
            k('ds_read_u16 v%d, v7 offset:%d' % (32 + p * 8 + i, i * 144 + p * 64))
    k('v_add_u32 v4, s28, v2')
    k('v_mul_lo_u32 v4, v4, s26')
    k('s_lshl_b32 s29, s27, 1')
    k('v_add3_u32 v4, v4, v5, s29')
    k('s_lshl_b32 s34, s26, 5')
    k('v_add_u32 v6, s34, v4')
    k('s_waitcnt lgkmcnt(0)')
    for j in range(8):
        k('v_lshl_or_b32 v%d, v%d, 16, v%d' % (24 + j, 33 + 2 * j, 32 + 2 * j))
    k('global_store_dwordx4 v4, v[24:27], s[32:33]')
    k('global_store_dwordx4 v6, v[28:31], s[32:33]')
    k('s_branch %s' % Lend)
    k.lab(Lfill)
    Lf1 = k.newlab('f1'); Lf2 = k.newlab('f2')
    k('s_sub_u32 s20, s2, %d' % (NMOD + NTR))
    k('v_lshlrev_b32 v2, 4, v0')
    k('s_lshl_b32 s21, s20, 14')
    k('s_add_u32 s22, s21, 0x%x' % WS['MEMF'])
    k('s_add_u32 s30, s8, s22'); k('s_addc_u32 s31, s9, 0')
    k('s_add_u32 s22, s21, 0x%x' % WS['MEMP'])
    k('s_add_u32 s34, s8, s22'); k('s_addc_u32 s35, s9, 0')
    k('s_lshl_b32 s21, s20, 15')
    k('s_add_u32 s21, s21, 0x%x' % WS['P'])
    k('s_add_u32 s32, s8, s21'); k('s_addc_u32 s33, s9, 0')
    for r in range(4, 8): k('v_mov_b32 v%d, -1' % r)
    k('s_cmp_eq_u32 s20, 0'); k('s_cbranch_scc1 %s' % Lf1)
    k('v_mov_b32 v3, v2')
    for i in range(4):
        k('global_store_dwordx4 v3, v[4:7], s[30:31]')
        k('global_store_dwordx4 v3, v[4:7], s[34:35]')
        if i < 3: k('v_add_u32 v3, 4096, v3')
    k('s_branch %s' % Lf2)
    k.lab(Lf1)
    k('v_and_b32 v8, 7, v1'); k('v_mul_u32_u24 v8, 896, v8')
    k('v_lshrrev_b32 v9, 4, v1')
    k('v_lshl_add_u32 v10, v9, 4, v8')
    k('v_lshrrev_b32 v11, 6, v0')
    k('v_lshl_add_u32 v10, v11, 6, v10')
    k('v_mov_b32 v3, v2')
    for i in range(4):
        if i == 3:
            k('v_cmp_gt_u32 vcc, 128, v0'); k('s_and_saveexec_b64 s[22:23], vcc')
        k('global_load_dwordx4 v[12:15], v10, s[18:19] offset:%d' % (i * 256))
        k('s_waitcnt vmcnt(0)')
        k('global_store_dwordx4 v3, v[12:15], s[30:31]')
        k('v_add_u32 v3, 4096, v3')
    k('s_mov_b64 exec, s[22:23]')
    k('v_lshl_add_u32 v10, v9, 3, v8')
    k('v_lshl_add_u32 v10, v11, 5, v10')
    k('v_lshlrev_b32 v3, 3, v0')
    for i in range(7):
        k('global_load_dwordx2 v[12:13], v10, s[18:19] offset:%d' % (i * 128))
        k('s_waitcnt vmcnt(0)')
        k('global_store_dwordx2 v3, v[12:13], s[34:35]')
        k('v_add_u32 v3, 2048, v3')
    k.lab(Lf2)
    for i in range(8):
        k('global_store_dwordx4 v2, v[4:7], s[32:33]')
        if i < 7: k('v_add_u32 v2, 4096, v2')
    k.lab(Lend)
    return k

def wave_allreduce_add(k, v, t):
    for n in (8, 4, 2, 1):
        k('s_nop 1')
        k('v_add_f32_dpp v%d, v%d, v%d row_ror:%d row_mask:0xf bank_mask:0xf' % (v, v, v, n))
    for op in ('v_permlane16_swap_b32', 'v_permlane32_swap_b32'):
        k('v_mov_b32 v%d, v%d' % (t, v)); k('v_mov_b32 v%d, v%d' % (t + 1, v))
        k('s_nop 1')
        k('%s v%d, v%d' % (op, t, t + 1))
        k('s_nop 1')
        k('v_add_f32 v%d, v%d, v%d' % (v, t, t + 1))

def rnd_bf16(k, dsts, a, b, t):
    k('v_cvt_pk_bf16_f32 v%d, v%d, v%d' % (t, a, b))
    k('v_lshlrev_b32 v%d, 16, v%d' % (dsts[0], t))
    k('v_and_b32 v%d, 0xffff0000, v%d' % (dsts[1], t))

def k_ln(name, src_is_input, src_off, dst_off, sh_idx, opc_idx, extra=False):
    k = Kern(name, grid=512, vgpr=64, sgpr=48)
    Lend = k.newlab('end')
    k('s_cmp_ge_u32 s2, 512'); k('s_cbranch_scc1 %s' % Lend)
    k.ldarg(4, 'x'); k.ldarg(8, 'ws')
    k('v_and_b32 v1, 63, v0')
    k('v_lshrrev_b32 v2, 6, v0')
    k('s_lshl_b32 s10, s2, 2')
    k('v_add_u32 v2, s10, v2')
    k('v_mul_u32_u24 v2, 896, v2')
    k('v_min_u32 v3, 55, v1')
    k('v_lshl_add_u32 v2, v3, 4, v2')
    k('v_lshlrev_b32 v4, 5, v3')
    k('s_waitcnt lgkmcnt(0)')
    if not src_is_input:
        k.addoff(4, 8, src_off)
    k.addoff(12, 8, dst_off)
    k('global_load_dwordx4 v[8:11], v2, s[4:5]')
    k.addoff(14, 8, WS['MOD'] + sh_idx * 448 * 4)
    k.addoff(16, 8, WS['MOD'] + opc_idx * 448 * 4)
    k('global_load_dwordx4 v[32:35], v4, s[14:15]')
    k('global_load_dwordx4 v[36:39], v4, s[14:15] offset:16')
    k('global_load_dwordx4 v[40:43], v4, s[16:17]')
    k('global_load_dwordx4 v[44:47], v4, s[16:17] offset:16')
    k('v_cmp_gt_u32 s[20:21], 56, v1')
    k('s_waitcnt vmcnt(4)')
    for i in range(4):
        k('v_lshlrev_b32 v%d, 16, v%d' % (16 + 2 * i, 8 + i))
        k('v_and_b32 v%d, 0xffff0000, v%d' % (17 + 2 * i, 8 + i))
    k('v_add_f32 v24, v16, v17')
    for i in range(2, 8): k('v_add_f32 v24, v24, v%d' % (16 + i))
    k('v_cndmask_b32 v24, 0, v24, s[20:21]')
    wave_allreduce_add(k, 24, 26)
    k('v_mul_f32 v24, 0x%08x, v24' % 0x3b124925)
    k('v_mov_b32 v25, 0')
    for i in range(8):
        k('v_sub_f32 v28, v%d, v24' % (16 + i))
        k('v_fmac_f32 v25, v28, v28')
    k('v_cndmask_b32 v25, 0, v25, s[20:21]')
    wave_allreduce_add(k, 25, 26)
    k('v_mul_f32 v25, 0x%08x, v25' % 0x3b124925)
    rnd_bf16(k, (24, 25), 24, 25, 26)
    k('v_add_f32 v25, 0x3727c5ac, v25')
    rnd_bf16(k, (25, 26), 25, 25, 27)
    k('v_sqrt_f32 v25, v25')
    k('s_nop 0')
    rnd_bf16(k, (25, 26), 25, 25, 27)
    k('v_rcp_f32 v26, v25')
    k('s_nop 0')
    k('s_waitcnt vmcnt(0)')
    for i in range(0, 8, 2):
        a, b = 16 + i, 17 + i
        k('v_sub_f32 v%d, v%d, v24' % (a, a)); k('v_sub_f32 v%d, v%d, v24' % (b, b))
        rnd_bf16(k, (a, b), a, b, 27)
        for r in (a, b):
            k('v_mul_f32 v28, v%d, v26' % r)
            k('v_fma_f32 v29, -v28, v25, v%d' % r)
            k('v_fma_f32 v%d, v29, v26, v28' % r)
        rnd_bf16(k, (a, b), a, b, 27)
        k('v_mul_f32 v%d, v%d, v%d' % (a, a, 40 + i)); k('v_mul_f32 v%d, v%d, v%d' % (b, b, 41 + i))
        rnd_bf16(k, (a, b), a, b, 27)
        k('v_add_f32 v%d, v%d, v%d' % (a, a, 32 + i)); k('v_add_f32 v%d, v%d, v%d' % (b, b, 33 + i))
        k('v_cvt_pk_bf16_f32 v%d, v%d, v%d' % (48 + i // 2, a, b))
    if extra:
        k('v_lshrrev_b32 v52, 6, v0'); k('v_add_u32 v52, s10, v52')
        k('v_lshrrev_b32 v53, 4, v52'); k('v_and_b32 v54, 15, v52')
        k('v_mul_u32_u24 v55, 14, v53'); k('v_lshrrev_b32 v56, 2, v3'); k('v_add_u32 v55, v55, v56')
        k('v_lshlrev_b32 v55, 6, v55'); k('v_and_b32 v56, 3, v3'); k('v_lshl_add_u32 v55, v56, 4, v55'); k('v_add_u32 v55, v55, v54')
        k('v_lshlrev_b32 v55, 4, v55')
        k('v_mul_u32_u24 v57, 28, v53'); k('v_lshrrev_b32 v56, 1, v3'); k('v_add_u32 v57, v57, v56')
        k('v_lshlrev_b32 v57, 6, v57'); k('v_and_b32 v56, 1, v3'); k('v_lshl_add_u32 v57, v56, 5, v57'); k('v_add_u32 v57, v57, v54')
        k('v_lshlrev_b32 v57, 3, v57')
        k.addoff(22, 8, WS['HF']); k.addoff(24, 8, WS['HP'])
    k('s_mov_b64 exec, s[20:21]')
    k('global_store_dwordx4 v2, v[48:51], s[12:13]')
    if extra:
        k('global_store_dwordx4 v55, v[48:51], s[22:23]')
        k('global_store_dwordx2 v57, v[48:49], s[24:25]')
        k('global_store_dwordx2 v57, v[50:51], s[24:25] offset:128')
    k.lab(Lend)
    return k
```

```python
def _al(x, a=4096): return (x + a - 1) // a * a
WS = {}
_off = 0
def _add(name, nbytes):
    global _off
    WS[name] = _off
    _off = _al(_off + nbytes)
_add('MOD', 6*448*4)
_add('H', 2048*448*2)
_add('WOT', 16*448*256*2)
_add('W1T', 1792*448*2)
_add('W2T', 448*1792*2)
_add('MT', 16*448*448*2)
_add('NT', 16*448*448*2)
_add('BXF', 2048*7168*2)
_add('UF', 7168*2048*2)
_add('MEMF', 64*16384)
_add('MEMP', 64*16384)
_add('HP', 2048*448*2)
_add('HF', 2048*448*2)
_add('P', 64*32768)
_add('UMF', 64*8*28*1024)
_add('X1', 2048*448*2)
_add('H2', 2048*448*2)
_add('HID', 2048*1792*2)
WS_TOTAL = _off
MEM_STRIDE = 16384
P_STEP = 32768
P_HEAD = 2048
UM_STEP = 8*28*1024
KA = dict(x=0, mem0=8, Wq=16, Wk=24, Wv=32, Wo=40, seg=48, Bx=56, w1=64, b1=72, w2=80, b2=88, c=96, wmod=104, out=112, dbg=120, ws=128)
if __name__ == '__main__':
    for k, v in WS.items(): print(k, hex(v))
    print(WS_TOTAL)
```

```python
import sys
from fw import *
from k_prep import *
from k_gemm import *
from k_chain import *
from k_attn import *
import k_chain as KC, os
KC.STAMP = bool(os.environ.get('STAMP'))
kerns = []
kerns.append(k_prep0())
kerns.append(k_ln('ln1_kernel', True, 0, WS['H'], 0, 1, extra=True))
kerns.append(k_gemm('g1_kernel', ('arg','Wk',512), 8192, ('arg','Wq',512), 8192, ('ws',WS['MT'],448*448*2), 896, 256, 7,1,2,2, 1,7, batch=16, scale=0x3d800000))
kerns.append(k_gemm('g2_kernel', ('ws',WS['WOT'],448*256*2), 512, ('arg','Wv',512), 8192, ('ws',WS['NT'],448*448*2), 896, 256, 7,1,2,2, 1,7, batch=16))
kerns.append(k_gemm('g3_kernel', ('ws',WS['H'],0), 896, ('ws',WS['MT'],0), 896, ('ws',WS['BXF'],0), 7168*2, 448, 2,2,2,2, 16,56, epi='bxf'))
kerns.append(k_gemm('g4_kernel', ('ws',WS['NT'],0), 896, ('ws',WS['H'],0), 896, ('ws',WS['UF'],0), 2048*2, 448, 2,2,2,2, 56,16, epi='uf'))
kerns.append(k_chain())
kerns.append(k_attn())
kerns.append(k_ln('ln2_kernel', False, WS['X1'], WS['H2'], 3, 4))
kerns.append(k_gemm('f1_kernel', ('ws',WS['H2'],0), 896, ('ws',WS['W1T'],0), 896, ('ws',WS['HID'],0), 1792*2, 448, 2,2,2,2, 16,14, epi='ffn1'))
kerns.append(k_gemm('f2_kernel', ('ws',WS['HID'],0), 3584, ('ws',WS['W2T'],0), 3584, ('arg','out',0), 896, 1792, 1,1,2,2, 32,7, epi='ffn2'))
launches = list(kerns)
emit(kerns, launches, sys.argv[1] if len(sys.argv) > 1 else 'adaLN_cond__memory_aug_recurrent_mem_tr__dense_activation_gelu__prompt.s')
```

```python
from layout import *

class Kern:
    def __init__(self, name, grid, block=256, lds=0, vgpr=128, agpr=0, sgpr=96):
        self.name = name; self.grid = grid; self.block = block; self.lds = lds
        self.vgpr = vgpr; self.agpr = agpr; self.sgpr = sgpr
        self.L = []
        self._lab = 0
    def __call__(self, s):
        for line in s.strip('\n').split('\n'):
            line = line.strip()
            if line: self.L.append('    ' + line)
    def lab(self, s): self.L.append(s + ':')
    def newlab(self, p='L'):
        self._lab += 1
        return '%s_%s_%d' % (p, self.name.replace('_kernel', ''), self._lab)
    def nop(self, n):
        while n > 0:
            k = min(n, 16); self('s_nop %d' % (k - 1)); n -= k
    def text(self):
        acc = (self.vgpr + 3) // 4 * 4
        nfv = acc + self.agpr if self.agpr else self.vgpr
        t = ['.text', '.globl %s' % self.name, '.p2align 8', '.type %s,@function' % self.name, self.name + ':']
        t += self.L
        t += ['    s_endpgm']
        d = ['.section .rodata,"a"', '.p2align 6', '.amdhsa_kernel %s' % self.name,
             '  .amdhsa_next_free_vgpr %d' % nfv, '  .amdhsa_next_free_sgpr %d' % self.sgpr,
             '  .amdhsa_accum_offset %d' % acc, '  .amdhsa_group_segment_fixed_size 0',
             '  .amdhsa_kernarg_size 136', '  .amdhsa_user_sgpr_count 2',
             '  .amdhsa_user_sgpr_kernarg_segment_ptr 1', '  .amdhsa_system_sgpr_workgroup_id_x 1',
             '.end_amdhsa_kernel']
        return '\n'.join(t + d) + '\n'
    def launch_line(self):
        return '; @launch kernel=%s grid=(%d,1,1) block=(%d,1,1) lds=%d' % (self.name, self.grid, self.block, self.lds)
    def ldarg(self, sreg, key):
        self('s_load_dwordx2 s[%d:%d], s[0:1], %d' % (sreg, sreg + 1, KA[key]))
    def addoff(self, sdst, ssrc, off):
        self('s_add_u32 s%d, s%d, 0x%x' % (sdst, ssrc, off))
        self('s_addc_u32 s%d, s%d, 0' % (sdst + 1, ssrc + 1))
    def sdiv(self, sq, sn, d, maxn, stmp=None):
        for sh in range(8, 31):
            m = (1 << sh) // d + 1
            if m * maxn < (1 << 32) and all((x * m) >> sh == x // d for x in range(maxn + 1)):
                self('s_mul_i32 s%d, s%d, %d' % (sq, sn, m))
                self('s_lshr_b32 s%d, s%d, %d' % (sq, sq, sh))
                return
        raise Exception('no magic')

def vr(a, n=1):
    return 'v%d' % a if n == 1 else 'v[%d:%d]' % (a, a + n - 1)
def ar(a, n=1):
    return 'a%d' % a if n == 1 else 'a[%d:%d]' % (a, a + n - 1)
def sr(a, n=1):
    return 's%d' % a if n == 1 else 's[%d:%d]' % (a, a + n - 1)

HEADER = open('adaLN_cond__memory_aug_recurrent_mem_tr__dense_activation_gelu__prompt.s.ref').read().split('; Override launch geometry')[0]

def emit(kerns, launches, path):
    out = HEADER
    for k in launches: out += k.launch_line() + '\n'
    out += '.amdgcn_target "amdgcn-amd-amdhsa--gfx950"\n'
    for k in kerns: out += k.text()
    open(path, 'w').write(out)


def merge(name, subs):
    tot = sum(x.grid for x in subs)
    k = Kern(name, grid=tot, block=subs[0].block, lds=max(x.lds for x in subs), vgpr=max(x.vgpr for x in subs),
             agpr=max(x.agpr for x in subs), sgpr=max(x.sgpr for x in subs))
    labs = [k.newlab('sub') for _ in subs]
    for x, l in zip(subs, labs):
        k('s_cmp_lt_u32 s2, %d' % x.grid); k('s_cbranch_scc1 %s' % l)
        k('s_sub_u32 s2, s2, %d' % x.grid)
    k('s_endpgm')
    for x, l in zip(subs, labs):
        k.lab(l)
        k.L += x.L
        k('s_endpgm')
    return k
```

```python
from fw import *
from k_chain import xlane, LOG2E
from k_prep import rnd_bf16

def k_attn():
    k = Kern('attn_kernel', grid=128, lds=24576, vgpr=256, agpr=128, sgpr=96)
    Lend = k.newlab('end')
    k('s_cmp_ge_u32 s2, 128'); k('s_cbranch_scc1 %s' % Lend)
    k('s_and_b32 s60, s2, 1'); k('s_lshr_b32 s2, s2, 1')
    k.ldarg(4, 'ws'); k.ldarg(6, 'x')
    k('v_and_b32 v1, 63, v0'); k('v_lshrrev_b32 v2, 6, v0'); k('s_nop 0')
    k('v_readfirstlane_b32 s10, v2')
    k('v_and_b32 v2, 15, v1'); k('v_lshrrev_b32 v3, 4, v1')
    k('v_lshlrev_b32 v9, 4, v1')
    k('v_add_u32 v5, 4096, v9'); k('v_add_u32 v6, 8192, v9'); k('v_add_u32 v7, 12288, v9')
    VA4 = (9, 5, 6, 7)
    k('v_cmp_gt_u32 s[40:41], 32, v1')
    k('v_lshlrev_b32 v10, 2, v3')
    for r in range(4):
        k('v_add_u32 v11, %d, v10' % r)
        k('v_cmp_le_u32 s[%d:%d], v11, v2' % (42 + 2 * r, 43 + 2 * r))
    k('s_waitcnt lgkmcnt(0)')
    k('s_lshl_b32 s20, s2, 13'); k('s_add_u32 s20, s20, 0x%x' % WS['MEMF'])
    k('v_and_b32 v14, 7, v1'); k('v_lshlrev_b32 v14, 4, v14'); k('v_lshl_add_u32 v14, v3, 7, v14'); k('v_add_u32 v15, 4096, v14')
    k('s_add_u32 s30, s4, s20'); k('s_addc_u32 s31, s5, 0')
    k('s_mul_i32 s20, s2, %d' % (2 * 14 * 1024)); k('s_add_u32 s20, s20, 0x%x' % WS['HF'])
    k('s_add_u32 s32, s4, s20'); k('s_addc_u32 s33, s5, 0')
    k('s_add_u32 s34, s32, %d' % (14 * 1024)); k('s_addc_u32 s35, s33, 0')
    k('s_mul_i32 s20, s2, %d' % (2 * 16 * 14 * 1024)); k('s_mul_i32 s21, s10, %d' % (4 * 14 * 1024)); k('s_add_u32 s20, s20, s21')
    k('s_mul_i32 s21, s60, %d' % (16 * 14 * 1024)); k('s_add_u32 s20, s20, s21')
    k('s_add_u32 s20, s20, 0x%x' % WS['BXF'])
    k('s_add_u32 s36, s4, s20'); k('s_addc_u32 s37, s5, 0')
    k('s_lshl_b32 s20, s10, 12'); k('v_add_u32 v12, s20, v9')
    k('s_lshl_b32 s20, s10, 11'); k('s_add_u32 s20, s20, 16384'); k('v_add_u32 v13, s20, v9')
    k('s_mul_i32 s20, s2, %d' % (16 * 28 * 1024)); k('s_mul_i32 s21, s10, %d' % (7 * 1024)); k('s_add_u32 s20, s20, s21')
    k('s_add_u32 s20, s20, 0x%x' % WS['UF']); k('s_add_u32 s52, s4, s20'); k('s_addc_u32 s53, s5, 0')
    k('s_mul_i32 s20, s2, %d' % (8 * 28 * 1024)); k('s_add_u32 s20, s20, s21')
    k('s_add_u32 s20, s20, 0x%x' % WS['UMF']); k('s_add_u32 s50, s4, s20'); k('s_addc_u32 s51, s5, 0')
    k('v_mov_b32 v60, 0xf149f2ca')
    k('v_mov_b32 v61, 0x%08x' % LOG2E)
    Lit1 = k.newlab('it1')
    k('s_cmp_eq_u32 s60, 1'); k('s_cbranch_scc1 %s' % Lit1)
    HA = 64
    def body(it):
        njt = 2 + it
        def bload(u):
            k('s_add_u32 s38, s36, %d' % (u * 14 * 1024)); k('s_addc_u32 s39, s37, 0')
            for kk in range(14):
                k('global_load_dwordx4 %s, v%d, s[38:39] offset:%d' % (ar((u & 1) * 56 + 4 * kk, 4), VA4[kk // 4], (kk % 4) * 1024))
        bload(0)
        for jt, sb in list(enumerate((30, 32, 34)))[:njt]:
            for kk in range(14):
                if jt == 0:
                    k('global_load_dwordx4 %s, v%d, s[%d:%d] offset:%d' % (vr(HA + kk * 4, 4), 14 + kk // 8, sb, sb + 1, (kk % 8) * 512))
                else:
                    k('global_load_dwordx4 %s, v%d, s[%d:%d] offset:%d' % (vr(HA + (jt * 14 + kk) * 4, 4), VA4[kk // 4], sb, sb + 1, (kk % 4) * 1024))
        SC = 32; T = 44
        for u in range(4):
            if u < 3:
                bload(u + 1); k('s_waitcnt vmcnt(14)')
            else:
                k('s_waitcnt vmcnt(0)')
            for kk in range(14):
                for jt in range(njt):
                    c = '0' if kk == 0 else vr(SC + 4 * jt, 4)
                    k('v_mfma_f32_16x16x32_bf16 %s, %s, %s, %s' % (vr(SC + 4 * jt, 4), vr(HA + (jt * 14 + kk) * 4, 4), ar((u & 1) * 56 + 4 * kk, 4), c))
            k.nop(10)
            sc = [SC + i for i in range(4 * njt)]
            for r in range(4): k('v_cndmask_b32 v%d, v60, v%d, s[40:41]' % (SC + r, SC + r))
            dj = 1 + it
            for r in range(4): k('v_cndmask_b32 v%d, v60, v%d, s[%d:%d]' % (SC + 4 * dj + r, SC + 4 * dj + r, 42 + 2 * r, 43 + 2 * r))
            k('v_max3_f32 v%d, v%d, v%d, v%d' % (T, sc[0], sc[1], sc[2]))
            i = 3
            while i < len(sc):
                if i + 1 < len(sc): k('v_max3_f32 v%d, v%d, v%d, v%d' % (T, T, sc[i], sc[i + 1])); i += 2
                else: k('v_max_f32 v%d, v%d, v%d' % (T, T, sc[i])); i += 1
            xlane(k, 'v_max_f32', T, T + 1)
            k('v_mul_f32 v%d, v61, v%d' % (T, T))
            for r in sc: k('v_fma_f32 v%d, v%d, v61, -v%d' % (r, r, T))
            for r in sc: k('v_exp_f32 v%d, v%d' % (r, r))
            k('s_nop 0')
            k('v_add_f32 v%d, v%d, v%d' % (T, sc[0], sc[1]))
            for r in sc[2:]: k('v_add_f32 v%d, v%d, v%d' % (T, T, r))
            xlane(k, 'v_add_f32', T, T + 1)
            k('v_rcp_f32 v%d, v%d' % (T, T)); k('s_nop 0')
            for r in sc: k('v_mul_f32 v%d, v%d, v%d' % (r, r, T))
            PK = 48
            k('v_cvt_pk_bf16_f32 v%d, v%d, v%d' % (PK, sc[4], sc[5])); k('v_cvt_pk_bf16_f32 v%d, v%d, v%d' % (PK + 1, sc[6], sc[7]))
            if njt == 3:
                k('v_cvt_pk_bf16_f32 v%d, v%d, v%d' % (PK + 2, sc[8], sc[9])); k('v_cvt_pk_bf16_f32 v%d, v%d, v%d' % (PK + 3, sc[10], sc[11]))
            else:
                k('v_mov_b32 v%d, 0' % (PK + 2)); k('v_mov_b32 v%d, 0' % (PK + 3))
            k('v_cvt_pk_bf16_f32 v%d, v%d, v%d' % (PK + 4, sc[0], sc[1])); k('v_cvt_pk_bf16_f32 v%d, v%d, v%d' % (PK + 5, sc[2], sc[3]))
            k('ds_write_b128 v12, %s offset:%d' % (vr(PK, 4), u * 1024))
            k('ds_write_b64 v13, %s offset:%d' % (vr(PK + 4, 2), (u >> 1) * 1024 + (u & 1) * 8))
            k('s_waitcnt lgkmcnt(0)')
        OA = 64; AF = 96; NB = 4; BF = 224
        items = [('x', h) for h in range(16)] + [('m', p) for p in range(8)]
        def aload(idx):
            kind, j = items[idx]
            sb = 52 if kind == 'x' else 50
            k('s_add_u32 s38, s%d, %d' % (sb, j * 28 * 1024)); k('s_addc_u32 s39, s%d, 0' % (sb + 1))
            for d in range(7):
                k('global_load_dwordx4 %s, v%d, s[38:39] offset:%d' % (vr(AF + (idx % NB) * 28 + 4 * d, 4), VA4[d // 4], (d % 4) * 1024))
        def bread(idx):
            kind, j = items[idx]
            base = j * 1024 + (0 if kind == 'x' else 16384)
            k('ds_read_b128 %s, v9 offset:%d' % (vr(BF + (idx & 1) * 4, 4), base))
        for i in range(NB - 1): aload(i)
        k('s_barrier')
        bread(0)
        for idx in range(24):
            if idx + NB - 1 < 24: aload(idx + NB - 1)
            if idx < 23: bread(idx + 1)
            infl = min(23, idx + NB - 1) - idx
            k('s_waitcnt vmcnt(%d) lgkmcnt(%d)' % (7 * infl, 1 if idx < 23 else 0))
            for d in range(7):
                a = OA + d * 4
                c = '0' if idx == 0 else vr(a, 4)
                k('v_mfma_f32_16x16x32_bf16 %s, %s, %s, %s' % (vr(a, 4), vr(AF + (idx % NB) * 28 + 4 * d, 4), vr(BF + (idx & 1) * 4, 4), c))
        k.nop(10)
        k('s_lshl_b32 s20, s2, 5'); k('s_add_u32 s20, s20, %d' % (16 * it)); k('v_add_u32 v10, s20, v2'); k('v_mul_u32_u24 v10, 896, v10')
        k('s_mul_i32 s21, s10, 224'); k('v_lshl_add_u32 v10, v3, 3, v10'); k('v_add_u32 v10, s21, v10')
        k('s_mul_i32 s21, s10, 448'); k('v_lshlrev_b32 v12, 4, v3'); k('v_add_u32 v12, s21, v12')
        k.addoff(22, 4, WS['MOD'] + 2 * 448 * 4); k.addoff(24, 4, WS['X1'])
        XR = 120; GR = 160
        for d in range(7):
            k('global_load_dwordx4 %s, v12, s[22:23] offset:%d' % (vr(GR + 4 * d, 4), d * 64))
            k('global_load_dwordx2 %s, v10, s[6:7] offset:%d' % (vr(XR + d * 2, 2), d * 32))
        k('s_waitcnt vmcnt(0)')
        for d in range(7):
            a = OA + d * 4; x = XR + d * 2; t = 32
            rnd_bf16(k, (a, a + 1), a, a + 1, t); rnd_bf16(k, (a + 2, a + 3), a + 2, a + 3, t)
            for r in range(4): k('v_mul_f32 v%d, v%d, v%d' % (a + r, a + r, GR + 4 * d + r))
            rnd_bf16(k, (a, a + 1), a, a + 1, t); rnd_bf16(k, (a + 2, a + 3), a + 2, a + 3, t)
            for j in range(2):
                k('v_lshlrev_b32 v%d, 16, v%d' % (t, x + j)); k('v_and_b32 v%d, 0xffff0000, v%d' % (t + 1, x + j))
                k('v_add_f32 v%d, v%d, v%d' % (a + 2 * j, a + 2 * j, t)); k('v_add_f32 v%d, v%d, v%d' % (a + 2 * j + 1, a + 2 * j + 1, t + 1))
            k('v_cvt_pk_bf16_f32 v%d, v%d, v%d' % (x, a, a + 1)); k('v_cvt_pk_bf16_f32 v%d, v%d, v%d' % (x + 1, a + 2, a + 3))
            k('global_store_dwordx2 v10, %s, s[24:25] offset:%d' % (vr(x, 2), d * 32))
    body(0)
    k('s_branch %s' % Lend)
    k.lab(Lit1)
    body(1)
    k.lab(Lend)
    return k
```

```python
from fw import *

LOG2E = 0x3fb8aa3b
S_FAST = 44
S_TO = 45
TO_LIMIT = 1 << 21

def pub_store(k, instr):
    Lf, Le = k.newlab('pf'), k.newlab('pe')
    k('s_cmp_eq_u32 s%d, 1' % S_FAST); k('s_cbranch_scc1 %s' % Lf)
    k(instr + ' sc1'); k('s_branch %s' % Le)
    k.lab(Lf); k(instr); k.lab(Le)

def maxchain(k, regs, t):
    regs = list(regs)
    k('v_max_u32 v%d, v%d, v%d' % (t, regs[0], regs[1]))
    i = 2
    while i < len(regs):
        if i + 1 < len(regs):
            k('v_max3_u32 v%d, v%d, v%d, v%d' % (t, t, regs[i], regs[i + 1])); i += 2
        else:
            k('v_max_u32 v%d, v%d, v%d' % (t, t, regs[i])); i += 1

def poll(k, issue, regs, t, Lbail):
    Lp = k.newlab('poll')
    k.lab(Lp)
    issue()
    k('s_add_u32 s%d, s%d, 1' % (S_TO, S_TO))
    k('s_cmp_gt_u32 s%d, %d' % (S_TO, TO_LIMIT)); k('s_cbranch_scc1 %s' % Lbail)
    k('s_waitcnt vmcnt(0)')
    maxchain(k, regs, t)
    k('v_cmp_eq_u32 vcc, -1, v%d' % t)
    k('s_nop 1')
    k('s_cbranch_vccnz %s' % Lp)

def xlane(k, op, v, t):
    for pl in ('v_permlane16_swap_b32', 'v_permlane32_swap_b32'):
        k('v_mov_b32 v%d, v%d' % (t, v)); k('v_mov_b32 v%d, v%d' % (t + 1, v))
        k('s_nop 1')
        k('%s v%d, v%d' % (pl, t, t + 1))
        k('s_nop 1')
        k('%s v%d, v%d, v%d' % (op, v, t, t + 1))

RED = 114688
STAMP = False
DBGOFF = 128 << 20
def stamp(k, idx):
    if not STAMP: return
    k('s_memtime s[%d:%d]' % (50 + 2 * idx, 51 + 2 * idx))
def stamp_flush(k, n, srole_off):
    if not STAMP: return
    k('s_waitcnt lgkmcnt(0)')
    k('s_lshr_b32 s70, s2, 3'); k('s_lshl_b32 s70, s70, 2'); k('s_add_u32 s70, s70, s10'); k('s_lshl_b32 s70, s70, 6'); k('s_add_u32 s70, s70, s36'); k('s_lshl_b32 s70, s70, 6')
    k('s_add_u32 s70, s70, 0x%x' % DBGOFF)
    k('s_add_u32 s72, s4, s70'); k('s_addc_u32 s73, s5, 0')
    k('s_mov_b64 exec, 1')
    k('v_mov_b32 v63, 0')
    for i in range(n):
        k('v_mov_b32 v60, s%d' % (50 + 2 * i))
        k('global_store_dword v63, v60, s[72:73] offset:%d' % (4 * i))
    k('s_mov_b64 exec, -1')
MB = RED + 24576
def k_chain(worker=None):
    k = Kern('chain_kernel', grid=256, lds=MB + 14336, vgpr=256, agpr=256, sgpr=96)
    Lend, LO = k.newlab('end'), k.newlab('O')
    Lw = k.newlab('wk')
    k('s_and_b32 s3, s2, 7'); k('s_cmp_lg_u32 s3, 0'); k('s_cbranch_scc1 %s' % (Lw if worker else Lend))
    k('s_cmp_ge_u32 s2, 240'); k('s_cbranch_scc1 %s' % Lend)
    k('s_lshr_b32 s3, s2, 3')
    k.ldarg(4, 'ws'); k.ldarg(6, 'dbg')
    k('v_and_b32 v1, 63, v0')
    k('v_lshrrev_b32 v2, 6, v0')
    k('s_nop 0')
    k('v_readfirstlane_b32 s10, v2')
    k('v_and_b32 v2, 15, v1')
    k('v_lshrrev_b32 v3, 4, v1')
    k('s_mov_b32 s%d, 0' % S_TO)
    k('s_getreg_b32 s20, hwreg(HW_REG_XCC_ID)')
    k('s_and_b32 s20, s20, 0xff'); k('s_add_u32 s20, s20, 1')
    k('s_waitcnt lgkmcnt(0)')
    k('v_mov_b32 v5, s20'); k('s_lshl_b32 s21, s3, 2'); k('v_mov_b32 v6, s21')
    k('s_mov_b64 exec, 1')
    k('global_store_dword v6, v5, s[6:7] sc1')
    k('s_mov_b64 exec, -1')
    k('v_min_u32 v6, 29, v1'); k('v_lshlrev_b32 v6, 2, v6')
    Lx = k.newlab('xp')
    k.lab(Lx)
    k('global_load_dword v5, v6, s[6:7] sc1')
    k('s_add_u32 s%d, s%d, 1' % (S_TO, S_TO))
    k('s_cmp_gt_u32 s%d, %d' % (S_TO, TO_LIMIT)); k('s_cbranch_scc1 %s' % Lend)
    k('s_waitcnt vmcnt(0)')
    k('v_cmp_eq_u32 vcc, 0, v5'); k('s_nop 1'); k('s_cbranch_vccnz %s' % Lx)
    k('v_cmp_ne_u32 vcc, s20, v5'); k('s_nop 1')
    k('s_cmp_eq_u64 vcc, 0'); k('s_cselect_b32 s%d, 1, 0' % S_FAST)
    k('v_lshlrev_b32 v9, 4, v1')
    k('s_lshl_b32 s21, s10, 10'); k('v_add_u32 v5, s21, v9')
    k('s_add_u32 s22, s10, 4'); k('s_min_u32 s22, s22, 6'); k('s_lshl_b32 s22, s22, 10'); k('v_add_u32 v6, s22, v9')
    k('v_lshrrev_b32 v7, 5, v1'); k('v_lshlrev_b32 v7, 10, v7')
    k('v_bfe_u32 v8, v1, 3, 2'); k('v_lshl_add_u32 v7, v8, 8, v7')
    k('v_and_b32 v8, 7, v1'); k('v_lshl_add_u32 v7, v8, 4, v7'); k('v_add_u32 v7, %d, v7' % MB)
    k('s_lshl_b32 s21, s21, 1'); k('v_add_u32 v8, s21, v7')
    k('s_lshl_b32 s22, s22, 1'); k('v_add_u32 v4, s22, v7')
    k('v_add_u32 v18, %d, v9' % MB)
    k('v_cmp_gt_u32 s[40:41], 32, v1')
    k('v_cmp_gt_u32 s[42:43], 8, v2')
    k('s_and_b64 s[48:49], s[40:41], s[42:43]')
    for r in range(64, 68): k('v_mov_b32 v%d, 0' % r)
    k('v_lshlrev_b32 v19, 4, v0'); k('v_add_u32 v19, %d, v19' % MB)
    for j in range(4):
        if j == 3:
            k('v_cmp_gt_u32 vcc, 128, v0'); k('s_and_saveexec_b64 s[22:23], vcc')
        k('ds_write_b128 v19, v[64:67] offset:%d' % (j * 4096))
    k('s_mov_b64 exec, -1')
    k('s_waitcnt lgkmcnt(0)'); k('s_barrier')
    MF = 64
    Q = 112
    def qloads():
        k('global_load_dwordx4 %s, v5, s[30:31] sc1' % vr(Q, 4))
        k('global_load_dwordx4 %s, v6, s[30:31] sc1' % vr(Q + 4, 4))
    def gather_mem():
        poll(k, qloads, range(Q, Q + 8), 60, Lend)
        k('ds_write_b128 v8, %s' % vr(Q, 4)); k('ds_write_b128 v4, %s' % vr(Q + 4, 4))
        k('s_waitcnt lgkmcnt(0)'); k('s_barrier')
    def mread(kk): k('ds_read_b128 %s, v18 offset:%d' % (vr(MF + 4 * kk, 4), kk * 1024))
    k('s_cmp_ge_u32 s3, 16'); k('s_cbranch_scc1 %s' % LO)
    ACC = 32
    def mfrag(f): return ar(4 * f, 4) if f < 64 else vr(120 + 4 * (f - 64), 4)
    k('s_mul_i32 s21, s3, %d' % (448 * 448 * 2)); k('s_add_u32 s21, s21, 0x%x' % WS['MT'])
    k('s_add_u32 s22, s4, s21'); k('s_addc_u32 s23, s5, 0')
    k('s_mul_i32 s24, s10, 112')
    k('v_add_u32 v10, s24, v2'); k('v_mul_u32_u24 v10, 896, v10'); k('v_lshl_add_u32 v10, v3, 4, v10')
    for tt in range(7):
        for kk in range(14):
            k('global_load_dwordx4 %s, v10, s[22:23] offset:%d' % (mfrag(tt * 14 + kk), kk * 64))
        if tt < 6: k('v_add_u32 v10, 14336, v10')
        k('s_waitcnt vmcnt(14)')
    k('s_mul_i32 s24, s10, %d' % (7 * 512))
    k('v_lshlrev_b32 v11, 3, v1'); k('v_add_u32 v11, s24, v11')
    k('v_add_u32 v12, %d, v11' % (28 * 512))
    k('v_lshrrev_b32 v13, 1, v3'); k('v_lshl_add_u32 v13, v13, 4, v2'); k('v_lshlrev_b32 v13, 4, v13')
    k('v_and_b32 v14, 1, v3'); k('v_lshl_add_u32 v13, v14, 3, v13'); k('v_add_u32 v13, s24, v13'); k('v_add_u32 v13, %d, v13' % MB)
    k('s_mul_i32 s24, s10, 3072'); k('s_add_u32 s24, s24, %d' % RED)
    k('v_add_u32 v14, s24, v9'); k('v_add_u32 v15, %d, v9' % RED)
    k.addoff(30, 4, WS['MEMF']); k.addoff(32, 4, WS['HP'])
    k.addoff(34, 4, WS['P'])
    k('v_lshlrev_b32 v16, 4, v2'); k('v_lshl_add_u32 v16, v3, 7, v16')
    k('s_lshr_b32 s24, s3, 1'); k('s_lshl_b32 s24, s24, 8'); k('s_and_b32 s25, s3, 1'); k('s_lshl_b32 s25, s25, 3')
    k('s_add_u32 s24, s24, s25'); k('s_add_u32 s24, s24, 8192'); k('v_add_u32 v19, s24, v16')
    k('s_lshl_b32 s24, s3, 9'); k('v_add_u32 v16, s24, v16')
    k('v_mov_b32 v61, 0xf149f2ca')
    k('v_mov_b32 v62, 0x%08x' % LOG2E)
    k('s_mov_b32 s36, 0')
    k('s_mov_b32 s37, 0')
    k('s_waitcnt vmcnt(0)')
    LS, LSn = k.newlab('S'), k.newlab('Sn')
    k.lab(LS)
    stamp(k, 0)
    gather_mem()
    stamp(k, 1)
    HN = {1: 0, 2: 4, 0: 8}
    def hload(n):
        jt = (1, 2, 0)[n // 4]; q = n % 4
        t0, t1 = 2 * q, min(2 * q + 1, 6)
        if jt == 0:
            k('ds_read_b64 %s, v13 offset:%d' % (vr(MF + 4 * n, 2), t0 * 512))
            k('ds_read_b64 %s, v13 offset:%d' % (vr(MF + 4 * n + 2, 2), t1 * 512))
        else:
            va = 11 if jt == 1 else 12
            k('global_load_dwordx2 %s, v%d, s[32:33] offset:%d' % (vr(MF + 4 * n, 2), va, t0 * 512))
            k('global_load_dwordx2 %s, v%d, s[32:33] offset:%d' % (vr(MF + 4 * n + 2, 2), va, t1 * 512))
    for kk in range(14): mread(kk)
    for kk in range(14):
        if kk < 8: k('s_waitcnt lgkmcnt(%d)' % min(13 - kk, 15))
        elif kk == 8: k('s_waitcnt lgkmcnt(0)')
        for tt in range(7):
            c = '0' if kk == 0 else vr(ACC + 4 * tt, 4)
            k('v_mfma_f32_16x16x32_bf16 %s, %s, %s, %s' % (vr(ACC + 4 * tt, 4), mfrag(tt * 14 + kk), vr(MF + 4 * kk, 4), c))
        if kk < 12: hload(kk)
    k('v_add_u32 v17, s37, v14')
    k.nop(6)
    stamp(k, 2)
    for q in range(4):
        a = ACC + 8 * q
        k('v_cvt_pk_bf16_f32 v%d, v%d, v%d' % (a, a, a + 1))
        k('v_cvt_pk_bf16_f32 v%d, v%d, v%d' % (a + 1, a + 2, a + 3))
        if q < 3:
            k('v_cvt_pk_bf16_f32 v%d, v%d, v%d' % (a + 2, a + 4, a + 5))
            k('v_cvt_pk_bf16_f32 v%d, v%d, v%d' % (a + 3, a + 6, a + 7))
        else:
            k('v_mov_b32 v%d, 0' % (a + 2)); k('v_mov_b32 v%d, 0' % (a + 3))
    k('s_waitcnt vmcnt(0) lgkmcnt(0)')
    k('s_nop 1')
    SA = [ACC + 4, ACC + 12, ACC + 20]
    for q in range(4):
        for jt in range(3):
            c = '0' if q == 0 else vr(SA[jt], 4)
            k('v_mfma_f32_16x16x32_bf16 %s, %s, %s, %s' % (vr(SA[jt], 4), vr(MF + 4 * (HN[jt] + q), 4), vr(ACC + 8 * q, 4), c))
    k.nop(8)
    for jt in range(3): k('ds_write_b128 v17, %s offset:%d' % (vr(SA[jt], 4), jt * 1024))
    stamp(k, 3)
    k('s_waitcnt lgkmcnt(0)'); k('s_barrier')
    stamp(k, 4)
    k('s_cmp_lg_u32 s10, 0'); k('s_cbranch_scc1 %s' % LSn)
    k('v_add_u32 v17, s37, v15')
    for w in range(1, 4):
        for jt in range(3):
            k('ds_read_b128 %s, v17 offset:%d' % (vr(MF + 12 * (w - 1) + 4 * jt, 4), w * 3072 + jt * 1024))
    for w in range(1, 4):
        k('s_waitcnt lgkmcnt(%d)' % (3 * (3 - w)))
        for jt in range(3):
            for r in (0, 2):
                k('v_pk_add_f32 %s, %s, %s' % (vr(SA[jt] + r, 2), vr(SA[jt] + r, 2), vr(MF + 12 * (w - 1) + 4 * jt + r, 2)))
    sc = [SA[jt] + r for jt in range(3) for r in range(4)]
    for r in range(4): k('v_cndmask_b32 v%d, v61, v%d, s[40:41]' % (SA[0] + r, SA[0] + r))
    T = MF + 40
    k('v_max3_f32 v%d, v%d, v%d, v%d' % (T, sc[4], sc[5], sc[6]))
    k('v_max3_f32 v%d, v%d, v%d, v%d' % (T + 1, sc[7], sc[8], sc[9]))
    k('v_max3_f32 v%d, v%d, v%d, v%d' % (T + 2, sc[10], sc[11], sc[0]))
    k('v_max3_f32 v%d, v%d, v%d, v%d' % (T + 3, sc[1], sc[2], sc[3]))
    k('v_max3_f32 v%d, v%d, v%d, v%d' % (T, T, T + 1, T + 2))
    k('v_max_f32 v%d, v%d, v%d' % (T, T, T + 3))
    xlane(k, 'v_max_f32', T, T + 1)
    k('v_mul_f32 v%d, v62, v%d' % (T, T))
    for r in sc: k('v_fma_f32 v%d, v%d, v62, -v%d' % (r, r, T))
    for r in sc: k('v_exp_f32 v%d, v%d' % (r, r))
    k('s_nop 0')
    for j in range(3): k('v_pk_add_f32 %s, %s, %s' % (vr(T + 2 * j, 2), vr(SA[j], 2), vr(SA[j] + 2, 2)))
    k('v_pk_add_f32 %s, %s, %s' % (vr(T, 2), vr(T, 2), vr(T + 2, 2)))
    k('v_pk_add_f32 %s, %s, %s' % (vr(T, 2), vr(T, 2), vr(T + 4, 2)))
    k('v_add_f32 v%d, v%d, v%d' % (T, T, T + 1))
    xlane(k, 'v_add_f32', T, T + 1)
    k('v_rcp_f32 v%d, v%d' % (T, T))
    k('s_nop 0')
    k('v_mov_b32 v%d, v%d' % (T + 1, T))
    for jt in range(3):
        for r in (0, 2): k('v_pk_mul_f32 %s, %s, %s' % (vr(SA[jt] + r, 2), vr(SA[jt] + r, 2), vr(T, 2)))
    PK = MF + 48
    k('v_cvt_pk_bf16_f32 v%d, v%d, v%d' % (PK, sc[4], sc[5])); k('v_cvt_pk_bf16_f32 v%d, v%d, v%d' % (PK + 1, sc[6], sc[7]))
    k('v_cvt_pk_bf16_f32 v%d, v%d, v%d' % (PK + 2, sc[8], sc[9])); k('v_cvt_pk_bf16_f32 v%d, v%d, v%d' % (PK + 3, sc[10], sc[11]))
    k('v_cvt_pk_bf16_f32 v%d, v%d, v%d' % (PK + 4, sc[0], sc[1])); k('v_cvt_pk_bf16_f32 v%d, v%d, v%d' % (PK + 5, sc[2], sc[3]))
    Lf, Le = k.newlab('pf'), k.newlab('pe')
    k('s_cmp_eq_u32 s%d, 1' % S_FAST); k('s_cbranch_scc1 %s' % Lf)
    k('s_mov_b64 exec, s[42:43]')
    k('global_store_dwordx4 v16, %s, s[34:35] sc1' % vr(PK, 4))
    k('s_mov_b64 exec, s[48:49]')
    k('global_store_dwordx2 v19, %s, s[34:35] sc1' % vr(PK + 4, 2))
    k('s_branch %s' % Le)
    k.lab(Lf)
    k('s_mov_b64 exec, s[42:43]')
    k('global_store_dwordx4 v16, %s, s[34:35]' % vr(PK, 4))
    k('s_mov_b64 exec, s[48:49]')
    k('global_store_dwordx2 v19, %s, s[34:35]' % vr(PK + 4, 2))
    k.lab(Le)
    k('s_mov_b64 exec, -1')
    k('s_nop 1')
    k.lab(LSn)
    stamp(k, 5)
    stamp_flush(k, 6, 0)
    k('s_add_u32 s30, s30, %d' % MEM_STRIDE); k('s_addc_u32 s31, s31, 0')
    k('s_add_u32 s32, s32, %d' % (2 * 28 * 512)); k('s_addc_u32 s33, s33, 0')
    k('s_add_u32 s34, s34, %d' % P_STEP); k('s_addc_u32 s35, s35, 0')
    k('s_xor_b32 s37, s37, 12288')
    k('s_add_u32 s36, s36, 1'); k('s_cmp_lt_u32 s36, 63'); k('s_cbranch_scc1 %s' % LS)
    k('s_branch %s' % Lend)
    k.lab(LO)
    k('s_sub_u32 s3, s3, 16')
    def nfrag(f): return ar(4 * f, 4) if f < 64 else vr(176 + 4 * (f - 64), 4)
    UTF = 120
    VM = 152
    VA = 168
    OA = 32
    LT = 40
    UO = 20
    k.addoff(22, 4, WS['NT'])
    k('s_mul_i32 s24, s10, %d' % (4 * 448)); k('s_lshl_b32 s25, s3, 5'); k('s_add_u32 s24, s24, s25')
    k('v_add_u32 v10, s24, v2')
    k('v_mul_u32_u24 v11, 896, v10'); k('v_lshl_add_u32 v11, v3, 4, v11')
    k('s_mul_i32 s26, s10, 28672'); k('v_add_u32 v12, s26, v9')
    for u in range(4):
        for dt in range(2):
            k('v_add_u32 v13, %d, v11' % ((u * 448 + dt * 16) * 896))
            if u < 3:
                for kk in range(14):
                    k('global_load_dwordx4 %s, v13, s[22:23] offset:%d' % (nfrag((u * 2 + dt) * 14 + kk), kk * 64))
                k('s_waitcnt vmcnt(14)')
            else:
                for kk in range(14):
                    k('global_load_dwordx4 %s, v13, s[22:23] offset:%d' % (vr(MF + 4 * kk, 4), kk * 64))
                k('s_waitcnt vmcnt(0)')
                for kk in range(14):
                    k('ds_write_b128 v12, %s offset:%d' % (vr(MF + 4 * kk, 4), (dt * 14 + kk) * 1024))
                k('s_waitcnt lgkmcnt(0)')
    k('s_mul_i32 s24, s10, %d' % (4 * 28)); k('s_lshl_b32 s25, s3, 1'); k('s_add_u32 s24, s24, s25'); k('s_lshl_b32 s24, s24, 10')
    k('v_add_u32 v%d, s24, v9' % UO)
    for u in range(1, 4): k('v_add_u32 v%d, %d, v%d' % (UO + u, 28 * 1024, UO + u - 1))
    k('s_mul_i32 s24, s10, %d' % (2 * 28)); k('s_add_u32 s24, s24, s25'); k('s_lshl_b32 s24, s24, 10')
    k('v_add_u32 v%d, s24, v9' % (UO + 4)); k('v_add_u32 v%d, %d, v%d' % (UO + 5, 28 * 1024, UO + 4))
    k('v_lshrrev_b32 v15, 1, v3'); k('v_lshlrev_b32 v15, 7, v15'); k('v_lshl_add_u32 v15, v2, 4, v15')
    k('v_and_b32 v14, 1, v3'); k('v_lshl_add_u32 v15, v14, 3, v15')
    k('s_lshl_b32 s25, s3, 9'); k('s_lshl_b32 s26, s10, 8'); k('s_add_u32 s25, s25, s26'); k('v_add_u32 v15, s25, v15')
    k('v_lshlrev_b32 v16, 4, v2'); k('v_lshl_add_u32 v16, v3, 7, v16')
    k('s_lshl_b32 s25, s10, 9'); k('s_add_u32 s25, s25, 8192'); k('v_add_u32 v19, s25, v16')
    k('s_lshl_b32 s25, s10, 11'); k('v_add_u32 v16, s25, v16')
    for r in range(56, 60): k('v_mov_b32 v%d, 0' % r)
    for r in range(28, 32): k('v_mov_b32 v%d, 0' % r)
    k('s_lshl_b32 s24, s10, 11'); k('s_add_u32 s24, s24, %d' % RED); k('v_add_u32 v17, s24, v9')
    k('s_lshl_b32 s24, s10, 10'); k('s_add_u32 s24, s24, %d' % RED); k('v_add_u32 v13, s24, v9')
    k.addoff(30, 4, WS['MEMF']); k.addoff(32, 4, WS['UF']); k.addoff(38, 4, WS['UMF']); k.addoff(46, 4, WS['MEMF'] + MEM_STRIDE); k.addoff(68, 4, WS['CNT'])
    k.addoff(34, 4, WS['P'])
    k('s_mov_b32 s36, 0'); k('s_mov_b32 s37, 0')
    k('s_waitcnt vmcnt(0)')
    LOl, LOn, LOu = k.newlab('Ol'), k.newlab('On'), k.newlab('Ou')
    k.lab(LOl)
    stamp(k, 0)
    gather_mem()
    stamp(k, 1)
    for kk in range(14): mread(kk)
    k('s_cmp_eq_u32 s36, 63'); k('s_cbranch_scc1 %s' % LOu)
    Lnf, Lfp = k.newlab('nf'), k.newlab('fp')
    k('s_and_b32 s24, s36, 3'); k('s_cmp_lg_u32 s24, 0'); k('s_cbranch_scc1 %s' % Lnf)
    k('s_lshl_b32 s24, s36, 4'); k('v_mov_b32 v60, s24')
    k.lab(Lfp)
    k('global_load_dword v61, v60, s[68:69] sc1')
    k('s_add_u32 s%d, s%d, 1' % (S_TO, S_TO))
    k('s_cmp_gt_u32 s%d, %d' % (S_TO, TO_LIMIT)); k('s_cbranch_scc1 %s' % Lend)
    k('s_waitcnt vmcnt(0)')
    k('v_cmp_gt_u32 vcc, 56, v61'); k('s_nop 1'); k('s_cbranch_vccnz %s' % Lfp)
    k.lab(Lnf)
    for u in range(4):
        for dt in range(2):
            n = u * 2 + dt
            k('global_load_dwordx4 %s, v%d, s[32:33] offset:%d sc1' % (vr(UTF + 4 * n, 4), UO + u, dt * 1024))
    k.lab(LOu)
    def finish(n):
        u, dt = n // 2, n % 2
        a = VA + 4 * (n & 1)
        d = VM + ((u >> 1) * 2 + dt) * 4 + 2 * (u & 1)
        k('v_cvt_pk_bf16_f32 v%d, v%d, v%d' % (d, a, a + 1))
        k('v_cvt_pk_bf16_f32 v%d, v%d, v%d' % (d + 1, a + 2, a + 3))
        if u & 1:
            k('global_store_dwordx4 v%d, %s, s[38:39] offset:%d' % (UO + 4 + (u >> 1), vr(d - 2, 4), dt * 1024))
    for n in range(8):
        u, dt = n // 2, n % 2
        a = VA + 4 * (n & 1)
        if u == 3:
            for j in range(4): k('ds_read_b128 %s, v12 offset:%d' % (vr(LT + 4 * j, 4), (dt * 14 + j) * 1024))
        for kk in range(14):
            c = '0' if kk == 0 else vr(a, 4)
            if n == 0: k('s_waitcnt lgkmcnt(%d)' % (13 - kk))
            if u < 3:
                b = nfrag((u * 2 + dt) * 14 + kk)
            else:
                b = vr(LT + 4 * (kk % 4), 4)
                k('s_waitcnt lgkmcnt(%d)' % min(3, 13 - kk))
            k('v_mfma_f32_16x16x32_bf16 %s, %s, %s, %s' % (vr(a, 4), vr(MF + 4 * kk, 4), b, c))
            if u == 3 and kk + 4 < 14:
                k('ds_read_b128 %s, v12 offset:%d' % (vr(LT + 4 * (kk % 4), 4), (dt * 14 + kk + 4) * 1024))
            if kk == 10 and n > 0: finish(n - 1)
    k.nop(10)
    finish(7)
    stamp(k, 2)
    k('s_cmp_eq_u32 s36, 63'); k('s_cbranch_scc1 %s' % Lend)
    PX = MF
    PMS = (56, 28)
    k('v_add_u32 v14, s37, v17')
    k('v_add_u32 v27, s37, v13')
    Lp = k.newlab('pp')
    k.lab(Lp)
    k('s_mov_b64 exec, s[42:43]')
    for u in range(4):
        k('global_load_dwordx4 %s, v16, s[34:35] offset:%d sc1' % (vr(PX + 4 * u, 4), u * 512))
    k('s_mov_b64 exec, s[48:49]')
    for pr in range(2):
        k('global_load_dwordx4 %s, v19, s[34:35] offset:%d sc1' % (vr(PMS[pr], 4), pr * 256))
    k('s_add_u32 s%d, s%d, 1' % (S_TO, S_TO))
    k('s_cmp_gt_u32 s%d, %d' % (S_TO, TO_LIMIT)); k('s_cbranch_scc1 %s' % Lend)
    k('s_waitcnt vmcnt(0)')
    maxchain(k, list(range(56, 60)) + list(range(28, 32)), 61)
    k('v_cmp_eq_u32 s[66:67], -1, v61')
    k('s_mov_b64 exec, s[42:43]')
    maxchain(k, range(PX, PX + 16), 60)
    k('v_cmp_eq_u32 vcc, -1, v60')
    k('s_mov_b64 exec, -1')
    k('s_or_b64 vcc, vcc, s[66:67]')
    k('s_cbranch_vccnz %s' % Lp)
    stamp(k, 3)
    for u in range(4):
        for dt in range(2):
            c = '0' if u == 0 else vr(OA + 4 * dt, 4)
            k('v_mfma_f32_16x16x32_bf16 %s, %s, %s, %s' % (vr(OA + 4 * dt, 4), vr(UTF + 4 * (u * 2 + dt), 4), vr(PX + 4 * u, 4), c))
    for pr in range(2):
        for dt in range(2):
            k('v_mfma_f32_16x16x32_bf16 %s, %s, %s, %s' % (vr(OA + 4 * dt, 4), vr(VM + (pr * 2 + dt) * 4, 4), vr(PMS[pr], 4), vr(OA + 4 * dt, 4)))
    k.nop(8)
    k('ds_write_b128 v14, %s' % vr(OA, 4)); k('ds_write_b128 v14, %s offset:1024' % vr(OA + 4, 4))
    k('s_waitcnt lgkmcnt(0)'); k('s_barrier')
    stamp(k, 4)
    k('s_cmp_ge_u32 s10, 2'); k('s_cbranch_scc1 %s' % LOn)
    for w in range(4): k('ds_read_b128 %s, v27 offset:%d' % (vr(LT + 4 * w, 4), w * 2048))
    k('s_waitcnt lgkmcnt(2)')
    for r in (0, 2): k('v_pk_add_f32 %s, %s, %s' % (vr(LT + r, 2), vr(LT + r, 2), vr(LT + 4 + r, 2)))
    k('s_waitcnt lgkmcnt(0)')
    for r in (0, 2): k('v_pk_add_f32 %s, %s, %s' % (vr(LT + 8 + r, 2), vr(LT + 8 + r, 2), vr(LT + 12 + r, 2)))
    for r in (0, 2): k('v_pk_add_f32 %s, %s, %s' % (vr(LT + r, 2), vr(LT + r, 2), vr(LT + 8 + r, 2)))
    k('v_cvt_pk_bf16_f32 v%d, v%d, v%d' % (LT + 4, LT, LT + 1)); k('v_cvt_pk_bf16_f32 v%d, v%d, v%d' % (LT + 5, LT + 2, LT + 3))
    k('s_mov_b64 exec, s[42:43]')
    pub_store(k, 'global_store_dwordx2 v15, %s, s[46:47]' % vr(LT + 4, 2))
    k('s_mov_b64 exec, -1')
    k.lab(LOn)
    stamp(k, 5)
    stamp_flush(k, 6, 0)
    k('s_add_u32 s30, s30, %d' % MEM_STRIDE); k('s_addc_u32 s31, s31, 0')
    k('s_add_u32 s46, s46, %d' % MEM_STRIDE); k('s_addc_u32 s47, s47, 0')
    k('s_add_u32 s32, s32, %d' % (16 * 28 * 1024)); k('s_addc_u32 s33, s33, 0')
    k('s_add_u32 s34, s34, %d' % P_STEP); k('s_addc_u32 s35, s35, 0')
    k('s_add_u32 s38, s38, %d' % UM_STEP); k('s_addc_u32 s39, s39, 0')
    k('s_xor_b32 s37, s37, 8192')
    k('s_add_u32 s36, s36, 1'); k('s_branch %s' % LOl)
    if worker:
        k.lab(Lw)
        k('s_cmp_ge_u32 s2, 256'); k('s_cbranch_scc1 %s' % Lend)
        k('s_lshr_b32 s3, s2, 3'); k('s_sub_u32 s90, s2, s3'); k('s_sub_u32 s90, s90, 1')
        k('s_mov_b32 s91, s90')
        for wk in worker:
            Lwl = k.newlab('wl')
            k('s_mov_b32 s90, s91')
            k.lab(Lwl)
            k('s_mov_b32 s2, s90')
            k.L += wk.L
            k('s_barrier')
            k('s_add_u32 s90, s90, 224')
            k('s_cmp_lt_u32 s90, %d' % wk.grid); k('s_cbranch_scc1 %s' % Lwl)
    k.lab(Lend)
    return k
```

```python
from fw import *
from k_prep import rnd_bf16

def setbase(k, sdst, spec, sws, sbatch):
    kind, key, bstride = spec
    if kind == 'ws':
        k.addoff(sdst, sws, key)
    if bstride:
        k('s_mul_i32 s40, s%d, %d' % (sbatch, bstride))
        k('s_add_u32 s%d, s%d, s40' % (sdst, sdst)); k('s_addc_u32 s%d, s%d, 0' % (sdst + 1, sdst + 1))

def k_gemm(name, A, lda, B, ldb, C, ldc, K, MT, NT, WM, WN, tiles_m, tiles_n, batch=1, epi='plain', scale=None, D=2, nmajor=False, signal=False):
    TM, TN = 32 * MT * WM, 32 * NT * WN
    PA, PB = TM * 8 // 256, TN * 8 // 256
    BS = (TM + TN) * 144
    NC = K // 64
    tot = tiles_m * tiles_n * batch
    vAo = 8; vBo = vAo + PA
    vst = (vBo + PB + 12 + 3) // 4 * 4
    vmisc = vBo + PB
    v_lwa, v_lwb, v_fa, v_fb, v_lwa_c, v_lwb_c, v_fa_c, v_fb_c = range(vmisc, vmisc + 8)
    vfr = vst + (PA + PB) * 4 * D
    nfr = (MT + NT) * 4
    vend = vfr + 2 * nfr
    vtmp = vst
    nv = max(vend, vtmp + 64)
    k = Kern(name, grid=tot, lds=2 * BS, vgpr=nv, agpr=MT * NT * 16, sgpr=64)
    Lend, Lloop, Lnold, Lnow = k.newlab('end'), k.newlab('loop'), k.newlab('nold'), k.newlab('now')
    k('s_cmp_ge_u32 s2, %d' % tot); k('s_cbranch_scc1 %s' % Lend)
    k.ldarg(4, 'ws')
    if A[0] == 'arg': k.ldarg(6, A[1])
    if B[0] == 'arg': k.ldarg(8, B[1])
    if C[0] == 'arg': k.ldarg(10, C[1])
    if epi == 'ffn1': k.ldarg(12, 'b1')
    if epi == 'ffn2': k.ldarg(12, 'b2')
    if batch > 1:
        k.sdiv(20, 2, tiles_m * tiles_n, tot - 1)
        k('s_mul_i32 s21, s20, %d' % (tiles_m * tiles_n)); k('s_sub_u32 s21, s2, s21')
    else:
        k('s_mov_b32 s20, 0'); k('s_mov_b32 s21, s2')
    if nmajor:
        k.sdiv(23, 21, tiles_m, tiles_m * tiles_n - 1)
        k('s_mul_i32 s22, s23, %d' % tiles_m); k('s_sub_u32 s22, s21, s22')
    else:
        k.sdiv(22, 21, tiles_n, tiles_m * tiles_n - 1)
        k('s_mul_i32 s23, s22, %d' % tiles_n); k('s_sub_u32 s23, s21, s23')
    k('v_and_b32 v1, 63, v0')
    k('v_lshrrev_b32 v2, 6, v0')
    k('s_nop 0')
    k('v_readfirstlane_b32 s24, v2')
    k('s_waitcnt lgkmcnt(0)')
    setbase(k, 6, A, 4, 20); setbase(k, 8, B, 4, 20); setbase(k, 10, C, 4, 20)
    if WN == 1: k('s_mov_b32 s25, s24'); k('s_mov_b32 s26, 0')
    elif WM == 1: k('s_mov_b32 s25, 0'); k('s_mov_b32 s26, s24')
    else: k('s_lshr_b32 s25, s24, 1'); k('s_and_b32 s26, s24, 1')
    k('v_lshrrev_b32 v2, 3, v0')
    k('v_and_b32 v3, 7, v0')
    k('v_lshlrev_b32 v3, 4, v3')
    k('s_mul_i32 s27, s22, %d' % TM)
    k('s_mul_i32 s28, s23, %d' % TN)
    k('s_mov_b32 s29, %d' % lda); k('s_mov_b32 s30, %d' % ldb)
    k('v_add_u32 v4, s27, v2'); k('v_mul_lo_u32 v4, v4, s29'); k('v_add_u32 v%d, v4, v3' % vAo)
    for i in range(1, PA): k('v_add_u32 v%d, %d, v%d' % (vAo + i, 32 * lda, vAo + i - 1))
    k('v_add_u32 v4, s28, v2'); k('v_mul_lo_u32 v4, v4, s30'); k('v_add_u32 v%d, v4, v3' % vBo)
    for i in range(1, PB): k('v_add_u32 v%d, %d, v%d' % (vBo + i, 32 * ldb, vBo + i - 1))
    k('v_mul_u32_u24 v4, 144, v2'); k('v_add_u32 v%d, v4, v3' % v_lwa)
    k('v_add_u32 v%d, %d, v%d' % (v_lwb, TM * 144, v_lwa))
    k('v_and_b32 v4, 31, v1'); k('v_lshrrev_b32 v5, 5, v1'); k('v_lshlrev_b32 v5, 4, v5')
    k('s_mul_i32 s31, s25, %d' % (32 * MT)); k('v_add_u32 v6, s31, v4'); k('v_mul_u32_u24 v6, 144, v6'); k('v_add_u32 v%d, v6, v5' % v_fa)
    k('s_mul_i32 s31, s26, %d' % (32 * NT)); k('v_add_u32 v6, s31, v4'); k('v_mul_u32_u24 v6, 144, v6'); k('v_add_u32 v6, v6, v5')
    k('v_add_u32 v%d, %d, v6' % (v_fb, TM * 144))
    for i in range(MT * NT * 16): k('v_accvgpr_write_b32 a%d, 0' % i)
    P = PA + PB
    def loads(c):
        st = vst + (c % D) * P * 4
        for i in range(PA): k('global_load_dwordx4 %s, v%d, s[6:7]' % (vr(st + 4 * i, 4), vAo + i))
        for i in range(PB): k('global_load_dwordx4 %s, v%d, s[8:9]' % (vr(st + 4 * (PA + i), 4), vBo + i))
        k('s_add_u32 s6, s6, 128'); k('s_addc_u32 s7, s7, 0')
        k('s_add_u32 s8, s8, 128'); k('s_addc_u32 s9, s9, 0')
    def writes(c):
        st = vst + (c % D) * P * 4
        va, vb = (v_lwa, v_lwb) if c % 2 == 0 else (v_lwa_c, v_lwb_c)
        for i in range(PA): k('ds_write_b128 v%d, %s offset:%d' % (va, vr(st + 4 * i, 4), i * 4608))
        for i in range(PB): k('ds_write_b128 v%d, %s offset:%d' % (vb, vr(st + 4 * (PA + i), 4), i * 4608))
    k('v_add_u32 v%d, %d, v%d' % (v_fa_c, BS, v_fa)); k('v_add_u32 v%d, %d, v%d' % (v_fb_c, BS, v_fb))
    k('v_add_u32 v%d, %d, v%d' % (v_lwa_c, BS, v_lwa)); k('v_add_u32 v%d, %d, v%d' % (v_lwb_c, BS, v_lwb))
    for c in range(min(D, NC)): loads(c)
    k('s_waitcnt vmcnt(%d)' % ((min(D, NC) - 1) * P))
    writes(0)
    k('s_waitcnt lgkmcnt(0)'); k('s_barrier')
    for c in range(NC):
        if c + D < NC: loads(c + D)
        fa, fb = (v_fa, v_fb) if c % 2 == 0 else (v_fa_c, v_fb_c)
        def rd(ks):
            base = vfr + (ks & 1) * nfr
            for mt in range(MT): k('ds_read_b128 %s, v%d offset:%d' % (vr(base + 4 * mt, 4), fa, mt * 4608 + ks * 32))
            for nt in range(NT): k('ds_read_b128 %s, v%d offset:%d' % (vr(base + 4 * (MT + nt), 4), fb, nt * 4608 + ks * 32))
        rd(0)
        for ks in range(4):
            if ks < 3:
                rd(ks + 1); k('s_waitcnt lgkmcnt(%d)' % (MT + NT))
            else:
                k('s_waitcnt lgkmcnt(0)')
            base = vfr + (ks & 1) * nfr
            for mt in range(MT):
                for nt in range(NT):
                    a = (mt * NT + nt) * 16
                    k('v_mfma_f32_32x32x16_bf16 %s, %s, %s, %s' % (ar(a, 16), vr(base + 4 * (MT + nt), 4), vr(base + 4 * mt, 4), ar(a, 16)))
        if c + 1 < NC:
            inflight = min(NC - 1, c + D) - (c + 1)
            k('s_waitcnt vmcnt(%d)' % (inflight * P))
            writes(c + 1)
            k('s_waitcnt lgkmcnt(0)'); k('s_barrier')
    k.nop(16)
    k('v_and_b32 v4, 31, v1'); k('v_lshrrev_b32 v5, 5, v1')
    k('s_mul_i32 s31, s25, %d' % (32 * MT)); k('s_add_u32 s31, s31, s27')
    k('v_add_u32 v4, s31, v4')
    k('s_mul_i32 s36, s26, %d' % (32 * NT)); k('s_add_u32 s36, s36, s28')
    k('v_lshlrev_b32 v5, 2, v5'); k('v_add_u32 v5, s36, v5')
    k('s_mov_b32 s37, %d' % ldc)
    k('v_mul_lo_u32 v6, v4, s37')
    k('v_lshl_add_u32 v6, v5, 1, v6')
    if epi == 'bxf':
        k('v_lshrrev_b32 v6, 4, v4'); k('v_mul_u32_u24 v6, 224, v6')
        k('s_lshr_b32 s38, s36, 5'); k('v_add_u32 v6, s38, v6')
        k('v_lshlrev_b32 v6, 6, v6'); k('v_and_b32 v7, 15, v4'); k('v_add_u32 v6, v6, v7')
        k('v_lshlrev_b32 v6, 4, v6'); k('v_lshrrev_b32 v7, 5, v1'); k('v_lshl_add_u32 v6, v7, 3, v6')
    if epi == 'uf':
        k('s_lshr_b32 s38, s36, 5'); k('s_mul_i32 s38, s38, 448')
        k('v_lshrrev_b32 v6, 4, v4'); k('v_add_u32 v6, s38, v6')
        k('v_lshlrev_b32 v6, 6, v6'); k('v_and_b32 v7, 15, v4'); k('v_add_u32 v6, v6, v7')
        k('v_lshrrev_b32 v7, 5, v1'); k('v_lshl_add_u32 v6, v7, 4, v6')
        k('v_lshlrev_b32 v6, 4, v6')
    if epi in ('ffn1', 'ffn2'):
        k('v_lshlrev_b32 v7, 1, v5')
    if epi == 'ffn2':
        k.addoff(14, 4, WS['MOD'] + 5 * 448 * 4)
        k.addoff(16, 4, WS['X1'])
        k('v_lshlrev_b32 v2, 2, v5')
    tset = 0
    for mt in range(MT):
        for nt in range(NT):
            for q in range(4):
                t = vtmp + (tset % 4) * 16; tset += 1
                a = (mt * NT + nt) * 16 + 4 * q
                noff = 32 * nt + 8 * q
                if epi in ('ffn1', 'ffn2'):
                    k('global_load_dwordx2 %s, v7, s[12:13] offset:%d' % (vr(t + 4, 2), noff * 2))
                if epi == 'ffn2':
                    k('global_load_dwordx4 %s, v2, s[14:15] offset:%d' % (vr(t + 8, 4), noff * 4))
                    k('global_load_dwordx2 %s, v6, s[16:17] offset:%d' % (vr(t + 6, 2), noff * 2))
                for r in range(4): k('v_accvgpr_read_b32 v%d, a%d' % (t + r, a + r))
                if epi in ('bxf', 'uf'):
                    k('v_cvt_pk_bf16_f32 v%d, v%d, v%d' % (t + 4, t, t + 1))
                    k('v_cvt_pk_bf16_f32 v%d, v%d, v%d' % (t + 5, t + 2, t + 3))
                    if epi == 'bxf':
                        k('global_store_dwordx2 v6, %s, s[10:11] offset:%d' % (vr(t + 4, 2), nt * 1024 + q * 256))
                    else:
                        sfx = ' sc1' if signal else ''
                        if nt == 0:
                            k('global_store_dwordx2 v6, %s, s[10:11] offset:%d%s' % (vr(t + 4, 2), (q & 1) * 512 + (q >> 1) * 8, sfx))
                        else:
                            k('v_add_u32 v7, %d, v6' % (nt * 448 * 1024))
                            k('global_store_dwordx2 v7, %s, s[10:11] offset:%d%s' % (vr(t + 4, 2), (q & 1) * 512 + (q >> 1) * 8, sfx))
                elif epi == 'plain':
                    if scale is not None:
                        for r in range(4): k('v_mul_f32 v%d, 0x%08x, v%d' % (t + r, scale, t + r))
                    k('v_cvt_pk_bf16_f32 v%d, v%d, v%d' % (t + 4, t, t + 1))
                    k('v_cvt_pk_bf16_f32 v%d, v%d, v%d' % (t + 5, t + 2, t + 3))
                    k('global_store_dwordx2 v6, %s, s[10:11] offset:%d' % (vr(t + 4, 2), noff * 2))
                else:
                    rnd_bf16(k, (t, t + 1), t, t + 1, t + 12); rnd_bf16(k, (t + 2, t + 3), t + 2, t + 3, t + 12)
                    k('s_waitcnt vmcnt(0)')
                    for j in range(2):
                        k('v_lshlrev_b32 v%d, 16, v%d' % (t + 12, t + 4 + j)); k('v_and_b32 v%d, 0xffff0000, v%d' % (t + 13, t + 4 + j))
                        k('v_add_f32 v%d, v%d, v%d' % (t + 2 * j, t + 2 * j, t + 12)); k('v_add_f32 v%d, v%d, v%d' % (t + 2 * j + 1, t + 2 * j + 1, t + 13))
                    rnd_bf16(k, (t, t + 1), t, t + 1, t + 12); rnd_bf16(k, (t + 2, t + 3), t + 2, t + 3, t + 12)
                    if epi == 'ffn1':
                        for r in range(4):
                            z = t + r; u = t + 12
                            k('v_mul_f32 v%d, v%d, v%d' % (u, z, z))
                            k('v_mov_b32 v%d, 0x3d372713' % (u + 1))
                            k('v_fma_f32 v%d, v%d, v%d, 1.0' % (u, u, u + 1))
                            k('v_mul_f32 v%d, v%d, v%d' % (u, u, z))
                            k('v_mul_f32 v%d, 0x%08x, v%d' % (u, 0xc0135761, u))
                            k('v_exp_f32 v%d, v%d' % (u, u))
                            k('s_nop 0')
                            k('v_add_f32 v%d, 1.0, v%d' % (u, u))
                            k('v_rcp_f32 v%d, v%d' % (u, u))
                            k('s_nop 0')
                            k('v_mul_f32 v%d, v%d, v%d' % (z, z, u))
                    else:
                        for r in range(4): k('v_mul_f32 v%d, v%d, v%d' % (t + r, t + r, t + 8 + r))
                        rnd_bf16(k, (t, t + 1), t, t + 1, t + 12); rnd_bf16(k, (t + 2, t + 3), t + 2, t + 3, t + 12)
                        for j in range(2):
                            k('v_lshlrev_b32 v%d, 16, v%d' % (t + 12, t + 6 + j)); k('v_and_b32 v%d, 0xffff0000, v%d' % (t + 13, t + 6 + j))
                            k('v_add_f32 v%d, v%d, v%d' % (t + 2 * j, t + 2 * j, t + 12)); k('v_add_f32 v%d, v%d, v%d' % (t + 2 * j + 1, t + 2 * j + 1, t + 13))
                    k('v_cvt_pk_bf16_f32 v%d, v%d, v%d' % (t + 14, t, t + 1))
                    k('v_cvt_pk_bf16_f32 v%d, v%d, v%d' % (t + 15, t + 2, t + 3))
                    k('global_store_dwordx2 v6, %s, s[10:11] offset:%d' % (vr(t + 14, 2), noff * 2))
        if mt < MT - 1:
            k('v_add_u32 v6, %d, v6' % ({'bxf': 2 * 224 * 1024, 'uf': 2 * 1024}.get(epi, 32 * ldc)))
    if signal:
        k('s_waitcnt vmcnt(0)'); k('s_barrier')
        k.addoff(14, 4, WS['CNT'])
        k('s_lshl_b32 s23, s23, 6'); k('v_mov_b32 v2, s23'); k('v_mov_b32 v3, 1')
        k('v_cmp_eq_u32 vcc, 0, v0'); k('s_and_saveexec_b64 s[16:17], vcc')
        Ls = k.newlab('sg'); k('s_cbranch_execz %s' % Ls)
        k('global_atomic_add v2, v3, s[14:15] sc1')
        k.lab(Ls)
        k('s_mov_b64 exec, s[16:17]')
    k.lab(Lend)
    return k
```

```python
from fw import *

def k_prep0():
    NMOD, NTR, NFILL = 21, 840, 64
    tot = NMOD + NTR + NFILL
    k = Kern('prep0_kernel', grid=tot, lds=64*144, vgpr=96, sgpr=96)
    Lend, Ltr, Lfill = k.newlab('end'), k.newlab('tr'), k.newlab('fill')
    k('s_cmp_ge_u32 s2, %d' % tot); k('s_cbranch_scc1 %s' % Lend)
    k.ldarg(4, 'c'); k.ldarg(6, 'wmod'); k.ldarg(8, 'ws'); k.ldarg(12, 'Wo'); k.ldarg(14, 'w1'); k.ldarg(16, 'w2'); k.ldarg(18, 'mem0')
    k('v_and_b32 v1, 63, v0')
    k('v_lshrrev_b32 v2, 6, v0')
    k('s_nop 0')
    k('v_readfirstlane_b32 s10, v2')
    k('s_waitcnt lgkmcnt(0)')
    k('s_cmp_ge_u32 s2, %d' % NMOD); k('s_cbranch_scc1 %s' % Ltr)
    k('s_mul_i32 s11, s10, 112')
    k('v_add_u32 v2, s11, v1')
    k('v_min_u32 v3, 47, v1')
    k('v_add_u32 v3, 64, v3')
    k('v_add_u32 v3, s11, v3')
    k('v_lshlrev_b32 v2, 1, v2'); k('v_lshlrev_b32 v3, 1, v3')
    k('global_load_ushort v4, v2, s[4:5]')
    k('global_load_ushort v5, v3, s[4:5]')
    k('s_mul_i32 s20, s11, 5376')
    k('s_lshl_b32 s21, s2, 8')
    k('s_add_u32 s20, s20, s21')
    k('v_lshlrev_b32 v6, 2, v1')
    k('v_add_u32 v6, s20, v6')
    k('s_waitcnt vmcnt(0)')
    for r in (4, 5):
        k('v_lshlrev_b32 v%d, 16, v%d' % (r, r))
        k('v_mul_f32 v7, 0xbfb8aa3b, v%d' % r)
        k('v_exp_f32 v7, v7')
        k('s_nop 0')
        k('v_add_f32 v7, 1.0, v7')
        k('v_rcp_f32 v7, v7')
        k('s_nop 0')
        k('v_mul_f32 v%d, v%d, v7' % (r, r))
    k('v_cvt_pk_bf16_f32 v7, v4, v5')
    k('v_lshlrev_b32 v4, 16, v7')
    k('v_and_b32 v5, 0xffff0000, v7')
    k('v_mov_b32 v8, 0'); k('v_mov_b32 v9, 0')
    for b in range(2):
        for i in range(56):
            k('global_load_dword v%d, v6, s[6:7]' % (16 + i))
            k('v_add_u32 v6, 5376, v6')
        for i in range(56):
            kk = b * 56 + i
            src, lane = (4, kk) if kk < 64 else (5, kk - 64)
            k('v_readlane_b32 s%d, v%d, %d' % (24 + i, src, lane))
        k('s_waitcnt vmcnt(0)')
        for i in range(56):
            k('v_lshlrev_b32 v10, 16, v%d' % (16 + i))
            k('v_and_b32 v11, 0xffff0000, v%d' % (16 + i))
            k('v_fmac_f32 v8, s%d, v10' % (24 + i))
            k('v_fmac_f32 v9, s%d, v11' % (24 + i))
    k('v_lshlrev_b32 v10, 3, v0')
    k('ds_write_b64 v10, v[8:9]')
    k('s_waitcnt lgkmcnt(0)')
    k('s_barrier')
    k('s_cmp_lg_u32 s10, 0'); k('s_cbranch_scc1 %s' % Lend)
    k('ds_read_b64 v[12:13], v10 offset:512')
    k('ds_read_b64 v[14:15], v10 offset:1024')
    k('ds_read_b64 v[16:17], v10 offset:1536')
    k('s_waitcnt lgkmcnt(0)')
    for r in (12, 14, 16):
        k('v_add_f32 v8, v8, v%d' % r); k('v_add_f32 v9, v9, v%d' % (r + 1))
    k('v_cvt_pk_bf16_f32 v7, v8, v9')
    k('v_lshlrev_b32 v8, 16, v7'); k('v_and_b32 v9, 0xffff0000, v7')
    k('v_add_f32 v12, 1.0, v8'); k('v_add_f32 v13, 1.0, v9')
    k('v_cvt_pk_bf16_f32 v7, v12, v13')
    k('v_lshlrev_b32 v12, 16, v7'); k('v_and_b32 v13, 0xffff0000, v7')
    k('s_lshl_b32 s21, s2, 7')
    k('v_lshlrev_b32 v14, 1, v1'); k('v_add_u32 v14, s21, v14')
    k('v_subrev_u32 v15, 448, v14')
    k('v_cmp_gt_u32 vcc, 448, v15')
    k('s_nop 1')
    k('s_mov_b64 s[22:23], vcc')
    k('v_subrev_u32 v15, 1792, v14')
    k('v_cmp_gt_u32 vcc, 448, v15')
    k('s_nop 1')
    k('s_or_b64 vcc, vcc, s[22:23]')
    k('s_nop 1')
    k('v_cndmask_b32 v8, v8, v12, vcc'); k('v_cndmask_b32 v9, v9, v13, vcc')
    k('v_lshlrev_b32 v14, 2, v14')
    k('global_store_dwordx2 v14, v[8:9], s[8:9] offset:%d' % WS['MOD'])
    k('s_branch %s' % Lend)
    k.lab(Ltr)
    k('s_cmp_ge_u32 s2, %d' % (NMOD + NTR)); k('s_cbranch_scc1 %s' % Lfill)
    L1, L2, Lc = k.newlab('t1'), k.newlab('t2'), k.newlab('tc')
    k('s_sub_u32 s20, s2, %d' % NMOD)
    k('s_cmp_ge_u32 s20, 448'); k('s_cbranch_scc1 %s' % L1)
    k.sdiv(21, 20, 28, 447)
    k('s_mul_i32 s22, s21, 28'); k('s_sub_u32 s20, s20, s22')
    k.sdiv(23, 20, 7, 27)
    k('s_mul_i32 s22, s23, 7'); k('s_sub_u32 s24, s20, s22')
    k('s_mul_i32 s22, s21, 229376')
    k('s_add_u32 s30, s12, s22'); k('s_addc_u32 s31, s13, 0')
    k('s_add_u32 s22, s22, 0x%x' % WS['WOT'])
    k('s_add_u32 s32, s8, s22'); k('s_addc_u32 s33, s9, 0')
    k('s_mov_b32 s25, %d' % (448 * 2)); k('s_mov_b32 s26, %d' % (256 * 2))
    k('s_branch %s' % Lc)
    k.lab(L1)
    k('s_cmp_ge_u32 s20, 644'); k('s_cbranch_scc1 %s' % L2)
    k('s_sub_u32 s20, s20, 448')
    k.sdiv(23, 20, 28, 195)
    k('s_mul_i32 s22, s23, 28'); k('s_sub_u32 s24, s20, s22')
    k('s_mov_b32 s30, s14'); k('s_mov_b32 s31, s15')
    k.addoff(32, 8, WS['W1T'])
    k('s_mov_b32 s25, %d' % (1792 * 2)); k('s_mov_b32 s26, %d' % (448 * 2))
    k('s_branch %s' % Lc)
    k.lab(L2)
    k('s_sub_u32 s20, s20, 644')
    k.sdiv(23, 20, 7, 195)
    k('s_mul_i32 s22, s23, 7'); k('s_sub_u32 s24, s20, s22')
    k('s_mov_b32 s30, s16'); k('s_mov_b32 s31, s17')
    k.addoff(32, 8, WS['W2T'])
    k('s_mov_b32 s25, %d' % (448 * 2)); k('s_mov_b32 s26, %d' % (1792 * 2))
    k.lab(Lc)
    k('v_lshrrev_b32 v2, 3, v0')
    k('v_and_b32 v3, 7, v0')
    k('s_lshl_b32 s27, s23, 6')
    k('s_lshl_b32 s28, s24, 6')
    k('v_add_u32 v4, s27, v2')
    k('v_mul_lo_u32 v4, v4, s25')
    k('v_lshlrev_b32 v5, 4, v3')
    k('s_lshl_b32 s29, s28, 1')
    k('v_add3_u32 v4, v4, v5, s29')
    k('s_lshl_b32 s34, s25, 5')
    k('v_add_u32 v6, s34, v4')
    k('global_load_dwordx4 v[16:19], v4, s[30:31]')
    k('global_load_dwordx4 v[20:23], v6, s[30:31]')
    k('v_mul_u32_u24 v7, 144, v2')
    k('v_add_u32 v7, v7, v5')
    k('s_waitcnt vmcnt(0)')
    k('ds_write_b128 v7, v[16:19]')
    k('ds_write_b128 v7, v[20:23] offset:4608')
    k('s_waitcnt lgkmcnt(0)')
    k('s_barrier')
    k('v_mul_u32_u24 v7, %d, v3' % (8 * 144))
    k('v_lshl_add_u32 v7, v2, 1, v7')
    for p in range(2):
        for i in range(8):
            k('ds_read_u16 v%d, v7 offset:%d' % (32 + p * 8 + i, i * 144 + p * 64))
    k('v_add_u32 v4, s28, v2')
    k('v_mul_lo_u32 v4, v4, s26')
    k('s_lshl_b32 s29, s27, 1')
    k('v_add3_u32 v4, v4, v5, s29')
    k('s_lshl_b32 s34, s26, 5')
    k('v_add_u32 v6, s34, v4')
    k('s_waitcnt lgkmcnt(0)')
    for j in range(8):
        k('v_lshl_or_b32 v%d, v%d, 16, v%d' % (24 + j, 33 + 2 * j, 32 + 2 * j))
    k('global_store_dwordx4 v4, v[24:27], s[32:33]')
    k('global_store_dwordx4 v6, v[28:31], s[32:33]')
    k('s_branch %s' % Lend)
    k.lab(Lfill)
    Lf1 = k.newlab('f1'); Lf2 = k.newlab('f2')
    k('s_sub_u32 s20, s2, %d' % (NMOD + NTR))
    k('v_lshlrev_b32 v2, 4, v0')
    k('s_lshl_b32 s21, s20, 13')
    k('s_add_u32 s22, s21, 0x%x' % WS['MEMF'])
    k('s_add_u32 s30, s8, s22'); k('s_addc_u32 s31, s9, 0')
    k('s_lshl_b32 s21, s20, 14')
    k('s_add_u32 s21, s21, 0x%x' % WS['P'])
    k('s_add_u32 s32, s8, s21'); k('s_addc_u32 s33, s9, 0')
    for r in range(4, 8): k('v_mov_b32 v%d, -1' % r)
    k('v_add_u32 v3, 4096, v2')
    k('s_cmp_eq_u32 s20, 0'); k('s_cbranch_scc1 %s' % Lf1)
    k('global_store_dwordx4 v2, v[4:7], s[30:31]')
    k('global_store_dwordx4 v3, v[4:7], s[30:31]')
    k('s_branch %s' % Lf2)
    k.lab(Lf1)
    k.addoff(24, 8, WS['CNT'])
    k('v_mov_b32 v12, 0'); k('v_lshlrev_b32 v13, 2, v0')
    k('global_store_dword v13, v12, s[24:25]')
    k('v_and_b32 v8, 7, v0'); k('v_mul_u32_u24 v8, 896, v8')
    k('v_lshrrev_b32 v9, 3, v0')
    k('v_lshl_add_u32 v10, v9, 4, v8')
    k('global_load_dwordx4 v[12:15], v10, s[18:19]')
    k('s_waitcnt vmcnt(0)')
    k('global_store_dwordx4 v2, v[12:15], s[30:31]')
    k('v_cmp_gt_u32 vcc, 192, v0'); k('s_and_saveexec_b64 s[22:23], vcc')
    k('global_load_dwordx4 v[12:15], v10, s[18:19] offset:512')
    k('s_waitcnt vmcnt(0)')
    k('global_store_dwordx4 v3, v[12:15], s[30:31]')
    k('s_mov_b64 exec, s[22:23]')
    k.lab(Lf2)
    for i in range(4):
        k('global_store_dwordx4 v2, v[4:7], s[32:33]')
        if i < 3: k('v_add_u32 v2, 4096, v2')
    k.lab(Lend)
    return k

def wave_allreduce_add(k, v, t):
    for n in (8, 4, 2, 1):
        k('s_nop 1')
        k('v_add_f32_dpp v%d, v%d, v%d row_ror:%d row_mask:0xf bank_mask:0xf' % (v, v, v, n))
    for op in ('v_permlane16_swap_b32', 'v_permlane32_swap_b32'):
        k('v_mov_b32 v%d, v%d' % (t, v)); k('v_mov_b32 v%d, v%d' % (t + 1, v))
        k('s_nop 1')
        k('%s v%d, v%d' % (op, t, t + 1))
        k('s_nop 1')
        k('v_add_f32 v%d, v%d, v%d' % (v, t, t + 1))

def rnd_bf16(k, dsts, a, b, t):
    k('v_cvt_pk_bf16_f32 v%d, v%d, v%d' % (t, a, b))
    k('v_lshlrev_b32 v%d, 16, v%d' % (dsts[0], t))
    k('v_and_b32 v%d, 0xffff0000, v%d' % (dsts[1], t))

def k_ln(name, src_is_input, src_off, dst_off, sh_idx, opc_idx, extra=False):
    k = Kern(name, grid=512, vgpr=64, sgpr=48)
    Lend = k.newlab('end')
    k('s_cmp_ge_u32 s2, 512'); k('s_cbranch_scc1 %s' % Lend)
    k.ldarg(4, 'x'); k.ldarg(8, 'ws')
    k('v_and_b32 v1, 63, v0')
    k('v_lshrrev_b32 v2, 6, v0')
    k('s_lshl_b32 s10, s2, 2')
    k('v_add_u32 v2, s10, v2')
    k('v_mul_u32_u24 v2, 896, v2')
    k('v_min_u32 v3, 55, v1')
    k('v_lshl_add_u32 v2, v3, 4, v2')
    k('v_lshlrev_b32 v4, 5, v3')
    k('s_waitcnt lgkmcnt(0)')
    if not src_is_input:
        k.addoff(4, 8, src_off)
    k.addoff(12, 8, dst_off)
    k('global_load_dwordx4 v[8:11], v2, s[4:5]')
    k.addoff(14, 8, WS['MOD'] + sh_idx * 448 * 4)
    k.addoff(16, 8, WS['MOD'] + opc_idx * 448 * 4)
    k('global_load_dwordx4 v[32:35], v4, s[14:15]')
    k('global_load_dwordx4 v[36:39], v4, s[14:15] offset:16')
    k('global_load_dwordx4 v[40:43], v4, s[16:17]')
    k('global_load_dwordx4 v[44:47], v4, s[16:17] offset:16')
    k('v_cmp_gt_u32 s[20:21], 56, v1')
    k('s_waitcnt vmcnt(4)')
    for i in range(4):
        k('v_lshlrev_b32 v%d, 16, v%d' % (16 + 2 * i, 8 + i))
        k('v_and_b32 v%d, 0xffff0000, v%d' % (17 + 2 * i, 8 + i))
    k('v_add_f32 v24, v16, v17')
    for i in range(2, 8): k('v_add_f32 v24, v24, v%d' % (16 + i))
    k('v_cndmask_b32 v24, 0, v24, s[20:21]')
    wave_allreduce_add(k, 24, 26)
    k('v_mul_f32 v24, 0x%08x, v24' % 0x3b124925)
    k('v_mov_b32 v25, 0')
    for i in range(8):
        k('v_sub_f32 v28, v%d, v24' % (16 + i))
        k('v_fmac_f32 v25, v28, v28')
    k('v_cndmask_b32 v25, 0, v25, s[20:21]')
    wave_allreduce_add(k, 25, 26)
    k('v_mul_f32 v25, 0x%08x, v25' % 0x3b124925)
    rnd_bf16(k, (24, 25), 24, 25, 26)
    k('v_add_f32 v25, 0x3727c5ac, v25')
    rnd_bf16(k, (25, 26), 25, 25, 27)
    k('v_sqrt_f32 v25, v25')
    k('s_nop 0')
    rnd_bf16(k, (25, 26), 25, 25, 27)
    k('v_rcp_f32 v26, v25')
    k('s_nop 0')
    k('s_waitcnt vmcnt(0)')
    for i in range(0, 8, 2):
        a, b = 16 + i, 17 + i
        k('v_sub_f32 v%d, v%d, v24' % (a, a)); k('v_sub_f32 v%d, v%d, v24' % (b, b))
        rnd_bf16(k, (a, b), a, b, 27)
        for r in (a, b):
            k('v_mul_f32 v28, v%d, v26' % r)
            k('v_fma_f32 v29, -v28, v25, v%d' % r)
            k('v_fma_f32 v%d, v29, v26, v28' % r)
        rnd_bf16(k, (a, b), a, b, 27)
        k('v_mul_f32 v%d, v%d, v%d' % (a, a, 40 + i)); k('v_mul_f32 v%d, v%d, v%d' % (b, b, 41 + i))
        rnd_bf16(k, (a, b), a, b, 27)
        k('v_add_f32 v%d, v%d, v%d' % (a, a, 32 + i)); k('v_add_f32 v%d, v%d, v%d' % (b, b, 33 + i))
        k('v_cvt_pk_bf16_f32 v%d, v%d, v%d' % (48 + i // 2, a, b))
    if extra:
        k('v_lshrrev_b32 v52, 6, v0'); k('v_add_u32 v52, s10, v52')
        k('v_lshrrev_b32 v53, 4, v52'); k('v_and_b32 v54, 15, v52')
        k('v_mul_u32_u24 v55, 14, v53'); k('v_lshrrev_b32 v56, 2, v3'); k('v_add_u32 v55, v55, v56')
        k('v_lshlrev_b32 v55, 6, v55'); k('v_and_b32 v56, 3, v3'); k('v_lshl_add_u32 v55, v56, 4, v55'); k('v_add_u32 v55, v55, v54')
        k('v_lshlrev_b32 v55, 4, v55')
        k('v_mul_u32_u24 v57, 28, v53'); k('v_lshrrev_b32 v56, 1, v3'); k('v_add_u32 v57, v57, v56')
        k('v_lshlrev_b32 v57, 6, v57'); k('v_and_b32 v56, 1, v3'); k('v_lshl_add_u32 v57, v56, 5, v57'); k('v_add_u32 v57, v57, v54')
        k('v_lshlrev_b32 v57, 3, v57')
        k.addoff(22, 8, WS['HF']); k.addoff(24, 8, WS['HP'])
    k('s_mov_b64 exec, s[20:21]')
    k('global_store_dwordx4 v2, v[48:51], s[12:13]')
    if extra:
        k('global_store_dwordx4 v55, v[48:51], s[22:23]')
        k('global_store_dwordx2 v57, v[48:49], s[24:25]')
        k('global_store_dwordx2 v57, v[50:51], s[24:25] offset:128')
    k.lab(Lend)
    return k
```

```python
def _al(x, a=4096): return (x + a - 1) // a * a
WS = {}
_off = 0
def _add(name, nbytes):
    global _off
    WS[name] = _off
    _off = _al(_off + nbytes)
_add('MOD', 6*448*4)
_add('H', 2048*448*2)
_add('WOT', 16*448*256*2)
_add('W1T', 1792*448*2)
_add('W2T', 448*1792*2)
_add('MT', 16*448*448*2)
_add('NT', 16*448*448*2)
_add('BXF', 2048*7168*2)
_add('UF', 7168*2048*2)
_add('MEMF', 64*8192)
_add('HP', 2048*448*2)
_add('HF', 2048*448*2)
_add('P', 64*16384)
_add('UMF', 64*8*28*1024)
_add('CNT', 4096)
_add('X1', 2048*448*2)
_add('H2', 2048*448*2)
_add('HID', 2048*1792*2)
WS_TOTAL = _off
MEM_STRIDE = 8192
P_STEP = 16384
P_HEAD = 512
UM_STEP = 8*28*1024
KA = dict(x=0, mem0=8, Wq=16, Wk=24, Wv=32, Wo=40, seg=48, Bx=56, w1=64, b1=72, w2=80, b2=88, c=96, wmod=104, out=112, dbg=120, ws=128)
if __name__ == '__main__':
    for k, v in WS.items(): print(k, hex(v))
    print(WS_TOTAL)
```

```python
import sys
from fw import *
from k_prep import *
from k_gemm import *
from k_chain import *
from k_attn import *
import k_chain as KC, os
KC.STAMP = bool(os.environ.get('STAMP'))
kerns = []
kerns.append(k_prep0())
ln1 = k_ln('ln1_kernel', True, 0, WS['H'], 0, 1, extra=True)
g1 = k_gemm('g1_kernel', ('arg','Wk',512), 8192, ('arg','Wq',512), 8192, ('ws',WS['MT'],448*448*2), 896, 256, 1,1,2,2, 7,7, batch=16, scale=0x3d800000, D=4)
g2 = k_gemm('g2_kernel', ('ws',WS['WOT'],448*256*2), 512, ('arg','Wv',512), 8192, ('ws',WS['NT'],448*448*2), 896, 256, 1,1,2,2, 7,7, batch=16, D=4)
kerns.append(merge('pre_kernel', [ln1, g1, g2]))
g3 = k_gemm('g3_kernel', ('ws',WS['H'],0), 896, ('ws',WS['MT'],0), 896, ('ws',WS['BXF'],0), 7168*2, 448, 2,2,2,2, 16,56, epi='bxf', D=3)
g4 = k_gemm('g4_kernel', ('ws',WS['NT'],0), 896, ('ws',WS['H'],0), 896, ('ws',WS['UF'],0), 2048*2, 448, 2,2,2,2, 56,16, epi='uf', D=3, nmajor=True, signal=True)
kerns.append(k_chain(worker=[g4, g3]))
kerns.append(k_attn())
kerns.append(k_ln('ln2_kernel', False, WS['X1'], WS['H2'], 3, 4))
kerns.append(k_gemm('f1_kernel', ('ws',WS['H2'],0), 896, ('ws',WS['W1T'],0), 896, ('ws',WS['HID'],0), 1792*2, 448, 2,2,2,2, 16,14, epi='ffn1', D=3))
kerns.append(k_gemm('f2_kernel', ('ws',WS['HID'],0), 3584, ('ws',WS['W2T'],0), 3584, ('arg','out',0), 896, 1792, 1,1,2,2, 32,7, epi='ffn2', D=4))
launches = list(kerns)
emit(kerns, launches, sys.argv[1] if len(sys.argv) > 1 else 'adaLN_cond__memory_aug_recurrent_mem_tr__dense_activation_gelu__prompt.s')
```

```python
from layout import *

import os
TS = bool(os.environ.get('TS'))
TSOFF = 160 << 20
class Kern:
    def __init__(self, name, grid, block=256, lds=0, vgpr=128, agpr=0, sgpr=96):
        self.name = name; self.grid = grid; self.block = block; self.lds = lds
        self.vgpr = vgpr; self.agpr = agpr; self.sgpr = sgpr
        self.L = []
        self._lab = 0
    def __call__(self, s):
        for line in s.strip('\n').split('\n'):
            line = line.strip()
            if line: self.L.append('    ' + line)
    def lab(self, s): self.L.append(s + ':')
    def newlab(self, p='L'):
        self._lab += 1
        return '%s_%s_%d' % (p, self.name.replace('_kernel', ''), self._lab)
    def nop(self, n):
        while n > 0:
            k = min(n, 16); self('s_nop %d' % (k - 1)); n -= k
    def text(self):
        acc = (self.vgpr + 3) // 4 * 4
        nfv = acc + self.agpr if self.agpr else self.vgpr
        t = ['.text', '.globl %s' % self.name, '.p2align 8', '.type %s,@function' % self.name, self.name + ':']
        t += self.L
        t += ['    s_endpgm']
        d = ['.section .rodata,"a"', '.p2align 6', '.amdhsa_kernel %s' % self.name,
             '  .amdhsa_next_free_vgpr %d' % nfv, '  .amdhsa_next_free_sgpr %d' % self.sgpr,
             '  .amdhsa_accum_offset %d' % acc, '  .amdhsa_group_segment_fixed_size 0',
             '  .amdhsa_kernarg_size 136', '  .amdhsa_user_sgpr_count 2',
             '  .amdhsa_user_sgpr_kernarg_segment_ptr 1', '  .amdhsa_system_sgpr_workgroup_id_x 1',
             '.end_amdhsa_kernel']
        return '\n'.join(t + d) + '\n'
    def launch_line(self):
        return '; @launch kernel=%s grid=(%d,1,1) block=(%d,1,1) lds=%d' % (self.name, self.grid, self.block, self.lds)
    def ldarg(self, sreg, key):
        self('s_load_dwordx2 s[%d:%d], s[0:1], %d' % (sreg, sreg + 1, KA[key]))
    def addoff(self, sdst, ssrc, off):
        self('s_add_u32 s%d, s%d, 0x%x' % (sdst, ssrc, off))
        self('s_addc_u32 s%d, s%d, 0' % (sdst + 1, ssrc + 1))
    def wait_cnt(self, sws, sidx_off, base, target, Lbail, vt=(2, 3), swave=None, acq=False):
        L, Ld, Lo = self.newlab('wc'), self.newlab('wd'), self.newlab('wo')
        self('s_cmp_lg_u32 s%d, 0' % swave); self('s_cbranch_scc1 %s' % Lo)
        self.addoff(94, sws, WS['CNT'] + base)
        self('v_mov_b32 v%d, s%d' % (vt[0], sidx_off))
        self.lab(L)
        self('global_load_dword v%d, v%d, s[94:95] sc1' % (vt[1], vt[0]))
        self('s_add_u32 s92, s92, 1'); self('s_cmp_gt_u32 s92, %d' % (1 << 17)); self('s_cbranch_scc1 %s' % Ld)
        self('s_waitcnt vmcnt(0)')
        self('v_cmp_gt_u32 vcc, %d, v%d' % (target, vt[1]))
        self('s_nop 1')
        self('s_cbranch_vccz %s' % Ld)
        self('s_sleep 8'); self('s_branch %s' % L)
        self.lab(Ld)
        if acq:
            self('buffer_inv sc1'); self('s_waitcnt vmcnt(0)')
        self.lab(Lo)
        self('s_barrier')
    def touch(self, sbase, soff, nbytes, swave, vt=(2, 3)):
        per = nbytes // 4
        n = (per + 8191) // 8192
        self('v_and_b32 v%d, 63, v0' % vt[0]); self('v_lshlrev_b32 v%d, 7, v%d' % (vt[0], vt[0]))
        self('s_mul_i32 s93, s%d, %d' % (swave, per))
        if soff is not None: self('s_add_u32 s93, s93, s%d' % soff)
        self('v_add_u32 v%d, s93, v%d' % (vt[0], vt[0]))
        for i in range(n):
            rem = per - i * 8192
            if rem < 8192:
                self('v_and_b32 v%d, 63, v0' % (vt[1])); self('v_cmp_gt_u32 vcc, %d, v%d' % (rem // 128, vt[1])); self('s_and_saveexec_b64 s[88:89], vcc')
            self('global_load_dword v255, v%d, s[%d:%d]' % (vt[0], sbase, sbase + 1))
            if rem < 8192: self('s_mov_b64 exec, s[88:89]')
            if i < n - 1: self('v_add_u32 v%d, 8192, v%d' % (vt[0], vt[0]))
    def ts(self, idx, sid=91, sws=4):
        if not TS: return
        self('s_memrealtime s[96:97]')
        self('s_lshl_b32 s98, s%d, 8' % sid); self('s_add_u32 s98, s98, 0x%x' % (TSOFF + idx * 8))
        self('s_add_u32 s100, s%d, s98' % sws); self('s_addc_u32 s101, s%d, 0' % (sws + 1))
        self('s_waitcnt lgkmcnt(0)')
        self('v_mov_b32 v252, s96'); self('v_mov_b32 v253, s97'); self('v_mov_b32 v254, 0')
        self('v_cmp_eq_u32 vcc, 0, v0'); self('s_and_saveexec_b64 s[98:99], vcc')
        self('global_store_dwordx2 v254, v[252:253], s[100:101]')
        self('s_mov_b64 exec, s[98:99]')
    def acquire(self):
        self('buffer_inv sc1'); self('s_waitcnt vmcnt(0)')
    def release_signal(self, sws, sidx_off, base, wb=True, vt=(2, 3)):
        self('s_waitcnt vmcnt(0)'); self('s_barrier')
        self.addoff(94, sws, WS['CNT'] + base)
        self('v_mov_b32 v%d, s%d' % (vt[0], sidx_off)); self('v_mov_b32 v%d, 1' % vt[1])
        self('v_cmp_eq_u32 vcc, 0, v0'); self('s_and_saveexec_b64 s[88:89], vcc')
        Ls = self.newlab('sg'); self('s_cbranch_execz %s' % Ls)
        if wb:
            self('buffer_wbl2 sc1'); self('s_waitcnt vmcnt(0)')
        self('global_atomic_add v%d, v%d, s[94:95] sc1' % (vt[0], vt[1]))
        self.lab(Ls)
        self('s_mov_b64 exec, s[88:89]')
    def sdiv(self, sq, sn, d, maxn, stmp=None):
        for sh in range(8, 31):
            m = (1 << sh) // d + 1
            if m * maxn < (1 << 32) and all((x * m) >> sh == x // d for x in range(maxn + 1)):
                self('s_mul_i32 s%d, s%d, %d' % (sq, sn, m))
                self('s_lshr_b32 s%d, s%d, %d' % (sq, sq, sh))
                return
        raise Exception('no magic')

def vr(a, n=1):
    return 'v%d' % a if n == 1 else 'v[%d:%d]' % (a, a + n - 1)
def ar(a, n=1):
    return 'a%d' % a if n == 1 else 'a[%d:%d]' % (a, a + n - 1)
def sr(a, n=1):
    return 's%d' % a if n == 1 else 's[%d:%d]' % (a, a + n - 1)

HEADER = open('adaLN_cond__memory_aug_recurrent_mem_tr__dense_activation_gelu__prompt.s.ref').read().split('; Override launch geometry')[0]

def emit(kerns, launches, path):
    out = HEADER
    for k in launches: out += k.launch_line() + '\n'
    out += '.amdgcn_target "amdgcn-amd-amdhsa--gfx950"\n'
    for k in kerns: out += k.text()
    open(path, 'w').write(out)


def merge(name, subs):
    tot = sum(x.grid for x in subs)
    k = Kern(name, grid=tot, block=subs[0].block, lds=max(x.lds for x in subs), vgpr=max(x.vgpr for x in subs),
             agpr=max(x.agpr for x in subs), sgpr=max(x.sgpr for x in subs))
    labs = [k.newlab('sub') for _ in subs]
    for x, l in zip(subs, labs):
        k('s_cmp_lt_u32 s2, %d' % x.grid); k('s_cbranch_scc1 %s' % l)
        k('s_sub_u32 s2, s2, %d' % x.grid)
    k('s_endpgm')
    for x, l in zip(subs, labs):
        k.lab(l)
        k.L += x.L
        k('s_endpgm')
    return k
```

```python
from fw import *
from k_chain import xlane, LOG2E
from k_prep import rnd_bf16

def k_attn(inchain=False):
    k = Kern('attn_kernel', grid=128, lds=24576 + 1024, vgpr=256, agpr=224, sgpr=96)
    Lend = k.newlab('end')
    k('s_cmp_ge_u32 s2, 128'); k('s_cbranch_scc1 %s' % Lend)
    if inchain:
        k('s_and_b32 s60, s2, 1'); k('s_lshr_b32 s2, s2, 1')
    else:
        k('s_bfe_u32 s60, s2, 0x10003'); k('s_and_b32 s61, s2, 7'); k('s_lshr_b32 s2, s2, 4'); k('s_lshl_b32 s2, s2, 3'); k('s_add_u32 s2, s2, s61')
    k.ldarg(4, 'ws'); k.ldarg(6, 'x')
    k('v_and_b32 v1, 63, v0'); k('v_lshrrev_b32 v2, 6, v0'); k('s_nop 0')
    k('v_readfirstlane_b32 s10, v2')
    k('v_and_b32 v2, 15, v1'); k('v_lshrrev_b32 v3, 4, v1')
    k('v_lshlrev_b32 v9, 4, v1')
    k('v_add_u32 v5, 4096, v9'); k('v_add_u32 v6, 8192, v9'); k('v_add_u32 v7, 12288, v9')
    VA4 = (9, 5, 6, 7)
    k('v_cmp_gt_u32 s[40:41], 32, v1')
    k('v_lshlrev_b32 v10, 2, v3')
    for r in range(4):
        k('v_add_u32 v11, %d, v10' % r)
        k('v_cmp_le_u32 s[%d:%d], v11, v2' % (42 + 2 * r, 43 + 2 * r))
    k('s_waitcnt lgkmcnt(0)')
    if inchain:
        k('s_lshr_b32 s62, s2, 2'); k('s_lshl_b32 s62, s62, 6'); k('s_lshl_b32 s63, s2, 2')
        k.wait_cnt(4, 62, C_BX, 56, Lend, vt=(10, 11), swave=10)
        k.wait_cnt(4, 62, C_UF, 56, Lend, vt=(10, 11), swave=10, acq=True)
    k('s_lshl_b32 s20, s2, 13'); k('s_add_u32 s20, s20, 0x%x' % WS['MEMF2' if inchain else 'MEMF'])
    k('v_and_b32 v14, 7, v1'); k('v_lshlrev_b32 v14, 4, v14'); k('v_lshl_add_u32 v14, v3, 7, v14'); k('v_add_u32 v15, 4096, v14')
    k('s_add_u32 s30, s4, s20'); k('s_addc_u32 s31, s5, 0')
    k('s_mul_i32 s20, s2, %d' % (2 * 14 * 1024)); k('s_add_u32 s20, s20, 0x%x' % WS['HF'])
    k('s_add_u32 s32, s4, s20'); k('s_addc_u32 s33, s5, 0')
    k('s_add_u32 s34, s32, %d' % (14 * 1024)); k('s_addc_u32 s35, s33, 0')
    k('s_mul_i32 s20, s2, %d' % (2 * 16 * 14 * 1024)); k('s_mul_i32 s21, s10, %d' % (4 * 14 * 1024)); k('s_add_u32 s20, s20, s21')
    k('s_mul_i32 s21, s60, %d' % (16 * 14 * 1024)); k('s_add_u32 s20, s20, s21')
    k('s_add_u32 s20, s20, 0x%x' % WS['BXF'])
    k('s_add_u32 s36, s4, s20'); k('s_addc_u32 s37, s5, 0')
    k('s_lshl_b32 s20, s10, 12'); k('v_add_u32 v12, s20, v9')
    k('s_lshl_b32 s20, s10, 11'); k('s_add_u32 s20, s20, 16384'); k('v_add_u32 v13, s20, v9')
    k('s_mul_i32 s20, s2, %d' % (16 * 28 * 1024)); k('s_mul_i32 s21, s10, %d' % (7 * 1024)); k('s_add_u32 s20, s20, s21')
    k('s_add_u32 s20, s20, 0x%x' % WS['UF']); k('s_add_u32 s52, s4, s20'); k('s_addc_u32 s53, s5, 0')
    k('s_mul_i32 s20, s2, %d' % (8 * 28 * 1024)); k('s_add_u32 s20, s20, s21')
    k('s_add_u32 s20, s20, 0x%x' % WS['UMF']); k('s_add_u32 s50, s4, s20'); k('s_addc_u32 s51, s5, 0')
    k('v_mov_b32 v60, 0xf149f2ca')
    k('v_mov_b32 v61, 0x%08x' % LOG2E)
    Lit1 = k.newlab('it1')
    k('s_cmp_eq_u32 s60, 1'); k('s_cbranch_scc1 %s' % Lit1)
    HA = 64
    def body(it):
        njt = 2 + it
        def bload(u):
            k('s_add_u32 s38, s36, %d' % (u * 14 * 1024)); k('s_addc_u32 s39, s37, 0')
            for kk in range(14):
                k('global_load_dwordx4 %s, v%d, s[38:39] offset:%d' % (ar(u * 56 + 4 * kk, 4), VA4[kk // 4], (kk % 4) * 1024))
        for jt, sb in list(enumerate((30, 32, 34)))[1:njt]:
            for kk in range(14):
                k('global_load_dwordx4 %s, v%d, s[%d:%d] offset:%d' % (vr(HA + (jt * 14 + kk) * 4, 4), VA4[kk // 4], sb, sb + 1, (kk % 4) * 1024))
        SC = 32; T = 44
        for u in range(4): bload(u)
        if inchain:
            Lnp = k.newlab('np')
            k('s_cmp_lt_u32 s2, 3'); k('s_cbranch_scc1 %s' % Lnp)
            k('s_sub_u32 s64, s63, 12')
            k.wait_cnt(4, 64, C_CM, 14, Lend, vt=(10, 11), swave=10)
            k.lab(Lnp)
            k('s_mul_i32 s64, s2, %d' % (16 * 28 * 1024)); k.addoff(66, 4, WS['UF'])
            k.touch(66, 64, 16 * 28 * 1024, 10, vt=(10, 11))
            k.wait_cnt(4, 63, C_CM, 14, Lend, vt=(10, 11), swave=10, acq=True)
            k.ts(1)
            k.ts(2)
        for kk in range(14):
            k('global_load_dwordx4 %s, v%d, s[30:31] offset:%d' % (vr(HA + kk * 4, 4), 14 + kk // 8, (kk % 8) * 512))
        for u in range(4):
            if u == 0: k('s_waitcnt vmcnt(0)')
            for kk in range(14):
                for jt in range(njt):
                    c = '0' if kk == 0 else vr(SC + 4 * jt, 4)
                    k('v_mfma_f32_16x16x32_bf16 %s, %s, %s, %s' % (vr(SC + 4 * jt, 4), vr(HA + (jt * 14 + kk) * 4, 4), ar(u * 56 + 4 * kk, 4), c))
            k.nop(10)
            sc = [SC + i for i in range(4 * njt)]
            for r in range(4): k('v_cndmask_b32 v%d, v60, v%d, s[40:41]' % (SC + r, SC + r))
            dj = 1 + it
            for r in range(4): k('v_cndmask_b32 v%d, v60, v%d, s[%d:%d]' % (SC + 4 * dj + r, SC + 4 * dj + r, 42 + 2 * r, 43 + 2 * r))
            k('v_max3_f32 v%d, v%d, v%d, v%d' % (T, sc[0], sc[1], sc[2]))
            i = 3
            while i < len(sc):
                if i + 1 < len(sc): k('v_max3_f32 v%d, v%d, v%d, v%d' % (T, T, sc[i], sc[i + 1])); i += 2
                else: k('v_max_f32 v%d, v%d, v%d' % (T, T, sc[i])); i += 1
            xlane(k, 'v_max_f32', T, T + 1)
            k('v_mul_f32 v%d, v61, v%d' % (T, T))
            for r in sc: k('v_fma_f32 v%d, v%d, v61, -v%d' % (r, r, T))
            for r in sc: k('v_exp_f32 v%d, v%d' % (r, r))
            k('s_nop 0')
            k('v_add_f32 v%d, v%d, v%d' % (T, sc[0], sc[1]))
            for r in sc[2:]: k('v_add_f32 v%d, v%d, v%d' % (T, T, r))
            xlane(k, 'v_add_f32', T, T + 1)
            k('v_rcp_f32 v%d, v%d' % (T, T)); k('s_nop 0')
            for r in sc: k('v_mul_f32 v%d, v%d, v%d' % (r, r, T))
            PK = 48
            k('v_cvt_pk_bf16_f32 v%d, v%d, v%d' % (PK, sc[4], sc[5])); k('v_cvt_pk_bf16_f32 v%d, v%d, v%d' % (PK + 1, sc[6], sc[7]))
            if njt == 3:
                k('v_cvt_pk_bf16_f32 v%d, v%d, v%d' % (PK + 2, sc[8], sc[9])); k('v_cvt_pk_bf16_f32 v%d, v%d, v%d' % (PK + 3, sc[10], sc[11]))
            else:
                k('v_mov_b32 v%d, 0' % (PK + 2)); k('v_mov_b32 v%d, 0' % (PK + 3))
            k('v_cvt_pk_bf16_f32 v%d, v%d, v%d' % (PK + 4, sc[0], sc[1])); k('v_cvt_pk_bf16_f32 v%d, v%d, v%d' % (PK + 5, sc[2], sc[3]))
            k('ds_write_b128 v12, %s offset:%d' % (vr(PK, 4), u * 1024))
            k('ds_write_b64 v13, %s offset:%d' % (vr(PK + 4, 2), (u >> 1) * 1024 + (u & 1) * 8))
            k('s_waitcnt lgkmcnt(0)')
        OA = 64; AF = 96; NB = 4; BF = 224
        def aload(idx):
            k('s_add_u32 s38, s52, %d' % (idx * 28 * 1024)); k('s_addc_u32 s39, s53, 0')
            for d in range(7):
                k('global_load_dwordx4 %s, v%d, s[38:39] offset:%d' % (vr(AF + (idx % NB) * 28 + 4 * d, 4), VA4[d // 4], (d % 4) * 1024))
        def bread(idx):
            base = idx * 1024 if idx < 16 else 16384 + (idx - 16) * 1024
            k('ds_read_b128 %s, v9 offset:%d' % (vr(BF + (idx & 1) * 4, 4), base))
        def umf(p):
            k('s_add_u32 s38, s50, %d' % (p * 28 * 1024)); k('s_addc_u32 s39, s51, 0')
            for d in range(7):
                k('global_load_dwordx4 %s, v%d, s[38:39] offset:%d' % (ar(p * 28 + 4 * d, 4), VA4[d // 4], (d % 4) * 1024))
        for i in range(NB - 1): aload(i)
        k('s_barrier')
        k.ts(3)
        bread(0)
        for idx in range(24):
            if idx + NB - 1 < 16: aload(idx + NB - 1)
            if idx < 8: umf(idx)
            if idx < 23: bread(idx + 1)
            infl = max(0, min(15, idx + NB - 1) - idx) + len([j for j in range(idx - 3, idx + 1) if 0 <= j < 8])
            if idx >= 16: infl = 0
            k('s_waitcnt vmcnt(%d) lgkmcnt(%d)' % (7 * infl, 1 if idx < 23 else 0))
            for d in range(7):
                a = OA + d * 4
                c = '0' if idx == 0 else vr(a, 4)
                src = vr(AF + (idx % NB) * 28 + 4 * d, 4) if idx < 16 else ar((idx - 16) * 28 + 4 * d, 4)
                k('v_mfma_f32_16x16x32_bf16 %s, %s, %s, %s' % (vr(a, 4), src, vr(BF + (idx & 1) * 4, 4), c))
        k.nop(10)
        k.ts(4)
        k('s_lshl_b32 s20, s2, 5'); k('s_add_u32 s20, s20, %d' % (16 * it)); k('v_add_u32 v10, s20, v2'); k('v_mul_u32_u24 v10, 896, v10')
        k('s_mul_i32 s21, s10, 224'); k('v_lshl_add_u32 v10, v3, 3, v10'); k('v_add_u32 v10, s21, v10')
        k('s_mul_i32 s21, s10, 448'); k('v_lshlrev_b32 v12, 4, v3'); k('v_add_u32 v12, s21, v12')
        k.addoff(22, 4, WS['MOD'] + 2 * 448 * 4); k.addoff(24, 4, WS['X1'])
        XR = 120; GR = 160
        for d in range(7):
            k('global_load_dwordx4 %s, v12, s[22:23] offset:%d' % (vr(GR + 4 * d, 4), d * 64))
            k('global_load_dwordx2 %s, v10, s[6:7] offset:%d' % (vr(XR + d * 2, 2), d * 32))
        k('s_waitcnt vmcnt(0)')
        for d in range(7):
            a = OA + d * 4; x = XR + d * 2; t = 32
            rnd_bf16(k, (a, a + 1), a, a + 1, t); rnd_bf16(k, (a + 2, a + 3), a + 2, a + 3, t)
            for r in range(4): k('v_mul_f32 v%d, v%d, v%d' % (a + r, a + r, GR + 4 * d + r))
            rnd_bf16(k, (a, a + 1), a, a + 1, t); rnd_bf16(k, (a + 2, a + 3), a + 2, a + 3, t)
            for j in range(2):
                k('v_lshlrev_b32 v%d, 16, v%d' % (t, x + j)); k('v_and_b32 v%d, 0xffff0000, v%d' % (t + 1, x + j))
                k('v_add_f32 v%d, v%d, v%d' % (a + 2 * j, a + 2 * j, t)); k('v_add_f32 v%d, v%d, v%d' % (a + 2 * j + 1, a + 2 * j + 1, t + 1))
            k('v_cvt_pk_bf16_f32 v%d, v%d, v%d' % (x, a, a + 1)); k('v_cvt_pk_bf16_f32 v%d, v%d, v%d' % (x + 1, a + 2, a + 3))
            k('global_store_dwordx2 v10, %s, s[24:25] offset:%d%s' % (vr(x, 2), d * 32, ' sc1' if inchain else ''))
            for j in range(2):
                k('v_lshlrev_b32 v%d, 16, v%d' % (a + 2 * j, x + j)); k('v_and_b32 v%d, 0xffff0000, v%d' % (a + 2 * j + 1, x + j))
        k.addoff(22, 4, WS['MOD'] + 3 * 448 * 4); k.addoff(26, 4, WS['MOD'] + 4 * 448 * 4); k.addoff(24, 4, WS['H2'])
        SB = 160; OC = 192
        for d in range(7):
            k('global_load_dwordx4 %s, v12, s[22:23] offset:%d' % (vr(SB + 4 * d, 4), d * 64))
            k('global_load_dwordx4 %s, v12, s[26:27] offset:%d' % (vr(OC + 4 * d, 4), d * 64))
        vals = [OA + i for i in range(28)]
        k('v_lshlrev_b32 v34, 2, v2'); k('v_add_u32 v34, 24576, v34')
        k('s_lshl_b32 s21, s10, 6'); k('v_add_u32 v33, s21, v34')
        def reduce(v, off):
            xlane(k, 'v_add_f32', v, 36)
            k('ds_write_b32 v33, v%d offset:%d' % (v, off))
            k('s_waitcnt lgkmcnt(0)'); k('s_barrier')
            for w in range(4): k('ds_read_b32 v%d, v34 offset:%d' % (36 + w, off + w * 64))
            k('s_waitcnt lgkmcnt(0)')
            k('v_add_f32 v36, v36, v37'); k('v_add_f32 v38, v38, v39'); k('v_add_f32 v%d, v36, v38' % v)
            k('v_mul_f32 v%d, 0x%08x, v%d' % (v, 0x3b124925, v))
        k('v_add_f32 v40, v%d, v%d' % (vals[0], vals[1]))
        for r in vals[2:]: k('v_add_f32 v40, v40, v%d' % r)
        reduce(40, 0)
        k('v_mov_b32 v41, 0')
        for r in vals:
            k('v_sub_f32 v42, v%d, v40' % r); k('v_fmac_f32 v41, v42, v42')
        reduce(41, 256)
        rnd_bf16(k, (40, 41), 40, 41, 42)
        k('v_add_f32 v41, 0x3727c5ac, v41')
        rnd_bf16(k, (41, 42), 41, 41, 43)
        k('v_sqrt_f32 v41, v41'); k('s_nop 0')
        rnd_bf16(k, (41, 42), 41, 41, 43)
        k('v_rcp_f32 v42, v41'); k('s_nop 0')
        k('s_waitcnt vmcnt(0)')
        for d in range(7):
            for j in range(2):
                a, b = OA + 4 * d + 2 * j, OA + 4 * d + 2 * j + 1
                k('v_sub_f32 v%d, v%d, v40' % (a, a)); k('v_sub_f32 v%d, v%d, v40' % (b, b))
                rnd_bf16(k, (a, b), a, b, 43)
                for r in (a, b):
                    k('v_mul_f32 v44, v%d, v42' % r)
                    k('v_fma_f32 v45, -v44, v41, v%d' % r)
                    k('v_fma_f32 v%d, v45, v42, v44' % r)
                rnd_bf16(k, (a, b), a, b, 43)
                k('v_mul_f32 v%d, v%d, v%d' % (a, a, OC + 4 * d + 2 * j)); k('v_mul_f32 v%d, v%d, v%d' % (b, b, OC + 4 * d + 2 * j + 1))
                rnd_bf16(k, (a, b), a, b, 43)
                k('v_add_f32 v%d, v%d, v%d' % (a, a, SB + 4 * d + 2 * j)); k('v_add_f32 v%d, v%d, v%d' % (b, b, SB + 4 * d + 2 * j + 1))
                k('v_cvt_pk_bf16_f32 v%d, v%d, v%d' % (XR + 2 * d + j, a, b))
            k('global_store_dwordx2 v10, %s, s[24:25] offset:%d%s' % (vr(XR + 2 * d, 2), d * 32, ' sc1' if inchain else ''))
    Lsig = k.newlab('sig')
    body(0)
    k('s_branch %s' % Lsig)
    k.lab(Lit1)
    body(1)
    k.lab(Lsig)
    if inchain:
        k.ts(5)
        k.release_signal(4, 62, C_CA, wb=False)
        k.ts(6)
    k.lab(Lend)
    return k
```

```python
from fw import *

LOG2E = 0x3fb8aa3b
S_FAST = 44
S_TO = 45
TO_LIMIT = 1 << 18

def pub_store(k, instr):
    Lf, Le = k.newlab('pf'), k.newlab('pe')
    k('s_cmp_eq_u32 s%d, 1' % S_FAST); k('s_cbranch_scc1 %s' % Lf)
    k(instr + ' sc1'); k('s_branch %s' % Le)
    k.lab(Lf); k(instr); k.lab(Le)

def maxchain(k, regs, t):
    regs = list(regs)
    k('v_max_u32 v%d, v%d, v%d' % (t, regs[0], regs[1]))
    i = 2
    while i < len(regs):
        if i + 1 < len(regs):
            k('v_max3_u32 v%d, v%d, v%d, v%d' % (t, t, regs[i], regs[i + 1])); i += 2
        else:
            k('v_max_u32 v%d, v%d, v%d' % (t, t, regs[i])); i += 1

def poll(k, issue, regs, t, Lbail):
    Lp = k.newlab('poll')
    k.lab(Lp)
    issue()
    k('s_add_u32 s%d, s%d, 1' % (S_TO, S_TO))
    k('s_cmp_gt_u32 s%d, %d' % (S_TO, TO_LIMIT)); k('s_cbranch_scc1 %s' % Lbail)
    k('s_waitcnt vmcnt(0)')
    maxchain(k, regs, t)
    k('v_cmp_eq_u32 vcc, -1, v%d' % t)
    k('s_nop 1')
    k('s_cbranch_vccnz %s' % Lp)

def xlane(k, op, v, t):
    for pl in ('v_permlane16_swap_b32', 'v_permlane32_swap_b32'):
        k('v_mov_b32 v%d, v%d' % (t, v)); k('v_mov_b32 v%d, v%d' % (t + 1, v))
        k('s_nop 1')
        k('%s v%d, v%d' % (pl, t, t + 1))
        k('s_nop 1')
        k('%s v%d, v%d, v%d' % (op, v, t, t + 1))

RED = 114688
STAMP = False
DBGOFF = 128 << 20
def stamp(k, idx):
    if not STAMP: return
    k('s_memtime s[%d:%d]' % (50 + 2 * idx, 51 + 2 * idx))
def stamp_flush(k, n, srole_off):
    if not STAMP: return
    k('s_waitcnt lgkmcnt(0)')
    k('s_lshr_b32 s70, s2, 3'); k('s_lshl_b32 s70, s70, 2'); k('s_add_u32 s70, s70, s10'); k('s_lshl_b32 s70, s70, 6'); k('s_add_u32 s70, s70, s36'); k('s_lshl_b32 s70, s70, 6')
    k('s_add_u32 s70, s70, 0x%x' % DBGOFF)
    k('s_add_u32 s72, s4, s70'); k('s_addc_u32 s73, s5, 0')
    k('s_mov_b64 exec, 1')
    k('v_mov_b32 v63, 0')
    for i in range(n):
        k('v_mov_b32 v60, s%d' % (50 + 2 * i))
        k('global_store_dword v63, v60, s[72:73] offset:%d' % (4 * i))
    k('s_mov_b64 exec, -1')
MB = RED + 24576
def k_chain(worker=None):
    k = Kern('chain_kernel', grid=256, lds=MB + 14336, vgpr=256, agpr=256, sgpr=102)
    Lend, LO = k.newlab('end'), k.newlab('O')
    Lw = k.newlab('wk')
    k('s_and_b32 s3, s2, 7'); k('s_cmp_lg_u32 s3, 0'); k('s_cbranch_scc1 %s' % (Lw if worker else Lend))
    Lpf = k.newlab('pf')
    k('s_cmp_eq_u32 s2, 240'); k('s_cbranch_scc1 %s' % Lpf)
    k('s_cmp_ge_u32 s2, 240'); k('s_cbranch_scc1 %s' % Lend)
    k('s_lshr_b32 s3, s2, 3')
    k.ldarg(4, 'ws'); k.ldarg(6, 'dbg')
    k('v_and_b32 v1, 63, v0')
    k('v_lshrrev_b32 v2, 6, v0')
    k('s_nop 0')
    k('v_readfirstlane_b32 s10, v2')
    k('v_and_b32 v2, 15, v1')
    k('v_lshrrev_b32 v3, 4, v1')
    k('s_mov_b32 s%d, 0' % S_TO)
    k('s_getreg_b32 s20, hwreg(HW_REG_XCC_ID)')
    k('s_and_b32 s20, s20, 0xff'); k('s_add_u32 s20, s20, 1')
    k('s_waitcnt lgkmcnt(0)')
    k('v_mov_b32 v5, s20'); k('s_lshl_b32 s21, s3, 2'); k('v_mov_b32 v6, s21')
    k('s_mov_b64 exec, 1')
    k('global_store_dword v6, v5, s[6:7] sc1')
    k('s_mov_b64 exec, -1')
    k('v_min_u32 v6, 29, v1'); k('v_lshlrev_b32 v6, 2, v6')
    Lx = k.newlab('xp')
    k.lab(Lx)
    k('global_load_dword v5, v6, s[6:7] sc1')
    k('s_add_u32 s%d, s%d, 1' % (S_TO, S_TO))
    k('s_cmp_gt_u32 s%d, %d' % (S_TO, TO_LIMIT)); k('s_cbranch_scc1 %s' % Lend)
    k('s_waitcnt vmcnt(0)')
    k('v_cmp_eq_u32 vcc, 0, v5'); k('s_nop 1'); k('s_cbranch_vccnz %s' % Lx)
    k('v_cmp_ne_u32 vcc, s20, v5'); k('s_nop 1')
    k('s_cmp_eq_u64 vcc, 0'); k('s_cselect_b32 s%d, 1, 0' % S_FAST)
    k('v_lshlrev_b32 v9, 4, v1')
    k('s_lshl_b32 s21, s10, 10'); k('v_add_u32 v5, s21, v9')
    k('s_add_u32 s22, s10, 4'); k('s_min_u32 s22, s22, 6'); k('s_lshl_b32 s22, s22, 10'); k('v_add_u32 v6, s22, v9')
    k('v_lshrrev_b32 v7, 5, v1'); k('v_lshlrev_b32 v7, 10, v7')
    k('v_bfe_u32 v8, v1, 3, 2'); k('v_lshl_add_u32 v7, v8, 8, v7')
    k('v_and_b32 v8, 7, v1'); k('v_lshl_add_u32 v7, v8, 4, v7'); k('v_add_u32 v7, %d, v7' % MB)
    k('s_lshl_b32 s21, s21, 1'); k('v_add_u32 v8, s21, v7')
    k('s_lshl_b32 s22, s22, 1'); k('v_add_u32 v4, s22, v7')
    k('v_add_u32 v18, %d, v9' % MB)
    k('v_cmp_gt_u32 s[40:41], 32, v1')
    k('v_cmp_gt_u32 s[42:43], 8, v2')
    k('s_and_b64 s[48:49], s[40:41], s[42:43]')
    for r in range(64, 68): k('v_mov_b32 v%d, 0' % r)
    k('v_lshlrev_b32 v19, 4, v0'); k('v_add_u32 v19, %d, v19' % MB)
    for j in range(4):
        if j == 3:
            k('v_cmp_gt_u32 vcc, 128, v0'); k('s_and_saveexec_b64 s[22:23], vcc')
        k('ds_write_b128 v19, v[64:67] offset:%d' % (j * 4096))
    k('s_mov_b64 exec, -1')
    k('s_waitcnt lgkmcnt(0)'); k('s_barrier')
    MF = 64
    Q = 112
    def qloads():
        k('global_load_dwordx4 %s, v5, s[30:31] sc1' % vr(Q, 4))
        k('global_load_dwordx4 %s, v6, s[30:31] sc1' % vr(Q + 4, 4))
    def gather_mem():
        poll(k, qloads, range(Q, Q + 8), 60, Lend)
        k('ds_write_b128 v8, %s' % vr(Q, 4)); k('ds_write_b128 v4, %s' % vr(Q + 4, 4))
        k('s_waitcnt lgkmcnt(0)'); k('s_barrier')
    def mread(kk): k('ds_read_b128 %s, v18 offset:%d' % (vr(MF + 4 * kk, 4), kk * 1024))
    k('s_cmp_ge_u32 s3, 16'); k('s_cbranch_scc1 %s' % LO)
    ACC = 32
    def mfrag(f): return ar(4 * f, 4) if f < 64 else vr(120 + 4 * (f - 64), 4)
    k('s_mul_i32 s21, s3, %d' % (448 * 448 * 2)); k('s_add_u32 s21, s21, 0x%x' % WS['MT'])
    k('s_add_u32 s22, s4, s21'); k('s_addc_u32 s23, s5, 0')
    k('s_mul_i32 s24, s10, 112')
    k('v_add_u32 v10, s24, v2'); k('v_mul_u32_u24 v10, 896, v10'); k('v_lshl_add_u32 v10, v3, 4, v10')
    for tt in range(7):
        for kk in range(14):
            k('global_load_dwordx4 %s, v10, s[22:23] offset:%d' % (mfrag(tt * 14 + kk), kk * 64))
        if tt < 6: k('v_add_u32 v10, 14336, v10')
        k('s_waitcnt vmcnt(14)')
    k('s_mul_i32 s24, s10, %d' % (7 * 512))
    k('v_lshlrev_b32 v11, 3, v1'); k('v_add_u32 v11, s24, v11')
    k('v_add_u32 v12, %d, v11' % (28 * 512))
    k('v_lshrrev_b32 v13, 1, v3'); k('v_lshl_add_u32 v13, v13, 4, v2'); k('v_lshlrev_b32 v13, 4, v13')
    k('v_and_b32 v14, 1, v3'); k('v_lshl_add_u32 v13, v14, 3, v13'); k('v_add_u32 v13, s24, v13'); k('v_add_u32 v13, %d, v13' % MB)
    k('s_mul_i32 s24, s10, 3072'); k('s_add_u32 s24, s24, %d' % RED)
    k('v_add_u32 v14, s24, v9'); k('v_add_u32 v15, %d, v9' % RED)
    k.addoff(30, 4, WS['MEMF']); k.addoff(32, 4, WS['HP'])
    k.addoff(34, 4, WS['P'])
    k('v_lshlrev_b32 v16, 4, v2'); k('v_lshl_add_u32 v16, v3, 7, v16')
    k('s_lshr_b32 s24, s3, 1'); k('s_lshl_b32 s24, s24, 8'); k('s_and_b32 s25, s3, 1'); k('s_lshl_b32 s25, s25, 3')
    k('s_add_u32 s24, s24, s25'); k('s_add_u32 s24, s24, 8192'); k('v_add_u32 v19, s24, v16')
    k('s_lshl_b32 s24, s3, 9'); k('v_add_u32 v16, s24, v16')
    k('v_mov_b32 v61, 0xf149f2ca')
    k('v_mov_b32 v62, 0x%08x' % LOG2E)
    k('s_mov_b32 s36, 0')
    k('s_mov_b32 s37, 0')
    k('s_waitcnt vmcnt(0)')
    LS, LSn = k.newlab('S'), k.newlab('Sn')
    k.lab(LS)
    stamp(k, 0)
    gather_mem()
    stamp(k, 1)
    HN = {1: 0, 2: 4, 0: 8}
    def hload(n):
        jt = (1, 2, 0)[n // 4]; q = n % 4
        t0, t1 = 2 * q, min(2 * q + 1, 6)
        if jt == 0:
            k('ds_read_b64 %s, v13 offset:%d' % (vr(MF + 4 * n, 2), t0 * 512))
            k('ds_read_b64 %s, v13 offset:%d' % (vr(MF + 4 * n + 2, 2), t1 * 512))
        else:
            va = 11 if jt == 1 else 12
            k('global_load_dwordx2 %s, v%d, s[32:33] offset:%d' % (vr(MF + 4 * n, 2), va, t0 * 512))
            k('global_load_dwordx2 %s, v%d, s[32:33] offset:%d' % (vr(MF + 4 * n + 2, 2), va, t1 * 512))
    for kk in range(14): mread(kk)
    for kk in range(14):
        if kk < 8: k('s_waitcnt lgkmcnt(%d)' % min(13 - kk, 15))
        elif kk == 8: k('s_waitcnt lgkmcnt(0)')
        for tt in range(7):
            c = '0' if kk == 0 else vr(ACC + 4 * tt, 4)
            k('v_mfma_f32_16x16x32_bf16 %s, %s, %s, %s' % (vr(ACC + 4 * tt, 4), mfrag(tt * 14 + kk), vr(MF + 4 * kk, 4), c))
        if kk < 12: hload(kk)
    k('v_add_u32 v17, s37, v14')
    k.nop(6)
    stamp(k, 2)
    for q in range(4):
        a = ACC + 8 * q
        k('v_cvt_pk_bf16_f32 v%d, v%d, v%d' % (a, a, a + 1))
        k('v_cvt_pk_bf16_f32 v%d, v%d, v%d' % (a + 1, a + 2, a + 3))
        if q < 3:
            k('v_cvt_pk_bf16_f32 v%d, v%d, v%d' % (a + 2, a + 4, a + 5))
            k('v_cvt_pk_bf16_f32 v%d, v%d, v%d' % (a + 3, a + 6, a + 7))
        else:
            k('v_mov_b32 v%d, 0' % (a + 2)); k('v_mov_b32 v%d, 0' % (a + 3))
    k('s_waitcnt vmcnt(0) lgkmcnt(0)')
    k('s_nop 1')
    SA = [ACC + 4, ACC + 12, ACC + 20]
    for q in range(4):
        for jt in range(3):
            c = '0' if q == 0 else vr(SA[jt], 4)
            k('v_mfma_f32_16x16x32_bf16 %s, %s, %s, %s' % (vr(SA[jt], 4), vr(MF + 4 * (HN[jt] + q), 4), vr(ACC + 8 * q, 4), c))
    k.nop(8)
    for jt in range(3): k('ds_write_b128 v17, %s offset:%d' % (vr(SA[jt], 4), jt * 1024))
    stamp(k, 3)
    k('s_waitcnt lgkmcnt(0)'); k('s_barrier')
    stamp(k, 4)
    k('s_cmp_lg_u32 s10, 0'); k('s_cbranch_scc1 %s' % LSn)
    k('v_add_u32 v17, s37, v15')
    for w in range(1, 4):
        for jt in range(3):
            k('ds_read_b128 %s, v17 offset:%d' % (vr(MF + 12 * (w - 1) + 4 * jt, 4), w * 3072 + jt * 1024))
    for w in range(1, 4):
        k('s_waitcnt lgkmcnt(%d)' % (3 * (3 - w)))
        for jt in range(3):
            for r in (0, 2):
                k('v_pk_add_f32 %s, %s, %s' % (vr(SA[jt] + r, 2), vr(SA[jt] + r, 2), vr(MF + 12 * (w - 1) + 4 * jt + r, 2)))
    sc = [SA[jt] + r for jt in range(3) for r in range(4)]
    for r in range(4): k('v_cndmask_b32 v%d, v61, v%d, s[40:41]' % (SA[0] + r, SA[0] + r))
    T = MF + 40
    k('v_max3_f32 v%d, v%d, v%d, v%d' % (T, sc[4], sc[5], sc[6]))
    k('v_max3_f32 v%d, v%d, v%d, v%d' % (T + 1, sc[7], sc[8], sc[9]))
    k('v_max3_f32 v%d, v%d, v%d, v%d' % (T + 2, sc[10], sc[11], sc[0]))
    k('v_max3_f32 v%d, v%d, v%d, v%d' % (T + 3, sc[1], sc[2], sc[3]))
    k('v_max3_f32 v%d, v%d, v%d, v%d' % (T, T, T + 1, T + 2))
    k('v_max_f32 v%d, v%d, v%d' % (T, T, T + 3))
    xlane(k, 'v_max_f32', T, T + 1)
    k('v_mul_f32 v%d, v62, v%d' % (T, T))
    for r in sc: k('v_fma_f32 v%d, v%d, v62, -v%d' % (r, r, T))
    for r in sc: k('v_exp_f32 v%d, v%d' % (r, r))
    k('s_nop 0')
    for j in range(3): k('v_pk_add_f32 %s, %s, %s' % (vr(T + 2 * j, 2), vr(SA[j], 2), vr(SA[j] + 2, 2)))
    k('v_pk_add_f32 %s, %s, %s' % (vr(T, 2), vr(T, 2), vr(T + 2, 2)))
    k('v_pk_add_f32 %s, %s, %s' % (vr(T, 2), vr(T, 2), vr(T + 4, 2)))
    k('v_add_f32 v%d, v%d, v%d' % (T, T, T + 1))
    xlane(k, 'v_add_f32', T, T + 1)
    k('v_rcp_f32 v%d, v%d' % (T, T))
    k('s_nop 0')
    k('v_mov_b32 v%d, v%d' % (T + 1, T))
    for jt in range(3):
        for r in (0, 2): k('v_pk_mul_f32 %s, %s, %s' % (vr(SA[jt] + r, 2), vr(SA[jt] + r, 2), vr(T, 2)))
    PK = MF + 48
    k('v_cvt_pk_bf16_f32 v%d, v%d, v%d' % (PK, sc[4], sc[5])); k('v_cvt_pk_bf16_f32 v%d, v%d, v%d' % (PK + 1, sc[6], sc[7]))
    k('v_cvt_pk_bf16_f32 v%d, v%d, v%d' % (PK + 2, sc[8], sc[9])); k('v_cvt_pk_bf16_f32 v%d, v%d, v%d' % (PK + 3, sc[10], sc[11]))
    k('v_cvt_pk_bf16_f32 v%d, v%d, v%d' % (PK + 4, sc[0], sc[1])); k('v_cvt_pk_bf16_f32 v%d, v%d, v%d' % (PK + 5, sc[2], sc[3]))
    Lf, Le = k.newlab('pf'), k.newlab('pe')
    k('s_cmp_eq_u32 s%d, 1' % S_FAST); k('s_cbranch_scc1 %s' % Lf)
    k('s_mov_b64 exec, s[42:43]')
    k('global_store_dwordx4 v16, %s, s[34:35] sc1' % vr(PK, 4))
    k('s_mov_b64 exec, s[48:49]')
    k('global_store_dwordx2 v19, %s, s[34:35] sc1' % vr(PK + 4, 2))
    k('s_branch %s' % Le)
    k.lab(Lf)
    k('s_mov_b64 exec, s[42:43]')
    k('global_store_dwordx4 v16, %s, s[34:35]' % vr(PK, 4))
    k('s_mov_b64 exec, s[48:49]')
    k('global_store_dwordx2 v19, %s, s[34:35]' % vr(PK + 4, 2))
    k.lab(Le)
    k('s_mov_b64 exec, -1')
    k('s_nop 1')
    k.lab(LSn)
    stamp(k, 5)
    stamp_flush(k, 6, 0)
    k('s_add_u32 s30, s30, %d' % MEM_STRIDE); k('s_addc_u32 s31, s31, 0')
    k('s_add_u32 s32, s32, %d' % (2 * 28 * 512)); k('s_addc_u32 s33, s33, 0')
    k('s_add_u32 s34, s34, %d' % P_STEP); k('s_addc_u32 s35, s35, 0')
    k('s_xor_b32 s37, s37, 12288')
    k('s_add_u32 s36, s36, 1'); k('s_cmp_lt_u32 s36, 63'); k('s_cbranch_scc1 %s' % LS)
    k('s_branch %s' % Lend)
    k.lab(LO)
    k('s_sub_u32 s3, s3, 16')
    def nfrag(f): return ar(4 * f, 4) if f < 64 else vr(176 + 4 * (f - 64), 4)
    UTF = 120
    VM = 152
    VA = 168
    OA = 32
    LT = 40
    UO = 20
    k.addoff(22, 4, WS['NT'])
    k('s_mul_i32 s24, s10, %d' % (4 * 448)); k('s_lshl_b32 s25, s3, 5'); k('s_add_u32 s24, s24, s25')
    k('v_add_u32 v10, s24, v2')
    k('v_mul_u32_u24 v11, 896, v10'); k('v_lshl_add_u32 v11, v3, 4, v11')
    k('s_mul_i32 s26, s10, 28672'); k('v_add_u32 v12, s26, v9')
    for u in range(4):
        for dt in range(2):
            k('v_add_u32 v13, %d, v11' % ((u * 448 + dt * 16) * 896))
            if u < 3:
                for kk in range(14):
                    k('global_load_dwordx4 %s, v13, s[22:23] offset:%d' % (nfrag((u * 2 + dt) * 14 + kk), kk * 64))
                k('s_waitcnt vmcnt(14)')
            else:
                for kk in range(14):
                    k('global_load_dwordx4 %s, v13, s[22:23] offset:%d' % (vr(MF + 4 * kk, 4), kk * 64))
                k('s_waitcnt vmcnt(0)')
                for kk in range(14):
                    k('ds_write_b128 v12, %s offset:%d' % (vr(MF + 4 * kk, 4), (dt * 14 + kk) * 1024))
                k('s_waitcnt lgkmcnt(0)')
    k('s_mul_i32 s24, s10, %d' % (4 * 28)); k('s_lshl_b32 s25, s3, 1'); k('s_add_u32 s24, s24, s25'); k('s_lshl_b32 s24, s24, 10')
    k('v_add_u32 v%d, s24, v9' % UO)
    for u in range(1, 4): k('v_add_u32 v%d, %d, v%d' % (UO + u, 28 * 1024, UO + u - 1))
    k('s_mul_i32 s24, s10, %d' % (2 * 28)); k('s_add_u32 s24, s24, s25'); k('s_lshl_b32 s24, s24, 10')
    k('v_add_u32 v%d, s24, v9' % (UO + 4)); k('v_add_u32 v%d, %d, v%d' % (UO + 5, 28 * 1024, UO + 4))
    k('v_lshrrev_b32 v15, 1, v3'); k('v_lshlrev_b32 v15, 7, v15'); k('v_lshl_add_u32 v15, v2, 4, v15')
    k('v_and_b32 v14, 1, v3'); k('v_lshl_add_u32 v15, v14, 3, v15')
    k('s_lshl_b32 s25, s3, 9'); k('s_lshl_b32 s26, s10, 8'); k('s_add_u32 s25, s25, s26'); k('v_add_u32 v15, s25, v15')
    k('v_lshlrev_b32 v16, 4, v2'); k('v_lshl_add_u32 v16, v3, 7, v16')
    k('s_lshl_b32 s25, s10, 9'); k('s_add_u32 s25, s25, 8192'); k('v_add_u32 v19, s25, v16')
    k('s_lshl_b32 s25, s10, 11'); k('v_add_u32 v16, s25, v16')
    k('v_lshlrev_b32 v26, 4, v2'); k('v_lshl_add_u32 v26, v3, 7, v26'); k('v_add_u32 v63, 4096, v26')
    for r in range(56, 60): k('v_mov_b32 v%d, 0' % r)
    for r in range(28, 32): k('v_mov_b32 v%d, 0' % r)
    k('s_lshl_b32 s24, s10, 11'); k('s_add_u32 s24, s24, %d' % RED); k('v_add_u32 v17, s24, v9')
    k('s_lshl_b32 s24, s10, 10'); k('s_add_u32 s24, s24, %d' % RED); k('v_add_u32 v13, s24, v9')
    k.addoff(30, 4, WS['MEMF']); k.addoff(32, 4, WS['UF']); k.addoff(38, 4, WS['UMF']); k.addoff(46, 4, WS['MEMF'] + MEM_STRIDE); k.addoff(68, 4, WS['CNT']); k.addoff(70, 4, WS['MEMF2']); k.addoff(74, 4, WS['CNT'] + C_CM - 4)
    k.addoff(34, 4, WS['P'])
    k('s_mov_b32 s36, 0'); k('s_mov_b32 s37, 0')
    k('s_waitcnt vmcnt(0)')
    LOl, LOn, LOu = k.newlab('Ol'), k.newlab('On'), k.newlab('Ou')
    k.lab(LOl)
    stamp(k, 0)
    gather_mem()
    stamp(k, 1)
    for kk in range(14): mread(kk)
    def cmsig():
        Lns = k.newlab('ns')
        k('s_cmp_lg_u32 s10, 3'); k('s_cbranch_scc1 %s' % Lns)
        k('v_mov_b32 v60, 0'); k('v_mov_b32 v61, 1')
        k('s_mov_b64 exec, 1')
        k('global_atomic_add v60, v61, s[74:75] sc1')
        k('s_mov_b64 exec, -1')
        k.lab(Lns)
    Lz = k.newlab('z')
    k('s_cmp_eq_u32 s36, 0'); k('s_cbranch_scc1 %s' % Lz)
    cmsig()
    k.lab(Lz)
    k('s_cmp_eq_u32 s36, 63'); k('s_cbranch_scc1 %s' % LOu)
    Lnf, Lfp = k.newlab('nf'), k.newlab('fp')
    k('s_and_b32 s24, s36, 3'); k('s_cmp_lg_u32 s24, 0'); k('s_cbranch_scc1 %s' % Lnf)
    k('s_lshl_b32 s24, s36, 4'); k('v_mov_b32 v60, s24')
    k.lab(Lfp)
    k('global_load_dword v61, v60, s[68:69] sc1')
    k('s_add_u32 s%d, s%d, 1' % (S_TO, S_TO))
    k('s_cmp_gt_u32 s%d, %d' % (S_TO, TO_LIMIT)); k('s_cbranch_scc1 %s' % Lend)
    k('s_waitcnt vmcnt(0)')
    k('v_cmp_gt_u32 vcc, 56, v61'); k('s_nop 1'); k('s_cbranch_vccnz %s' % Lfp)
    k.lab(Lnf)
    for u in range(4):
        for dt in range(2):
            n = u * 2 + dt
            k('global_load_dwordx4 %s, v%d, s[32:33] offset:%d sc1' % (vr(UTF + 4 * n, 4), UO + u, dt * 1024))
    k.lab(LOu)
    def finish(n):
        u, dt = n // 2, n % 2
        a = VA + 4 * (n & 1)
        d = VM + ((u >> 1) * 2 + dt) * 4 + 2 * (u & 1)
        k('v_cvt_pk_bf16_f32 v%d, v%d, v%d' % (d, a, a + 1))
        k('v_cvt_pk_bf16_f32 v%d, v%d, v%d' % (d + 1, a + 2, a + 3))
        if u & 1:
            k('global_store_dwordx4 v%d, %s, s[38:39] offset:%d sc1' % (UO + 4 + (u >> 1), vr(d - 2, 4), dt * 1024))
    for n in range(8):
        u, dt = n // 2, n % 2
        a = VA + 4 * (n & 1)
        if u == 3:
            for j in range(4): k('ds_read_b128 %s, v12 offset:%d' % (vr(LT + 4 * j, 4), (dt * 14 + j) * 1024))
        for kk in range(14):
            c = '0' if kk == 0 else vr(a, 4)
            if n == 0: k('s_waitcnt lgkmcnt(%d)' % (13 - kk))
            if u < 3:
                b = nfrag((u * 2 + dt) * 14 + kk)
            else:
                b = vr(LT + 4 * (kk % 4), 4)
                k('s_waitcnt lgkmcnt(%d)' % min(3, 13 - kk))
            k('v_mfma_f32_16x16x32_bf16 %s, %s, %s, %s' % (vr(a, 4), vr(MF + 4 * kk, 4), b, c))
            if u == 3 and kk + 4 < 14:
                k('ds_read_b128 %s, v12 offset:%d' % (vr(LT + 4 * (kk % 4), 4), (dt * 14 + kk + 4) * 1024))
            if kk == 10 and n > 0: finish(n - 1)
        if n == 0:
            Lm2 = k.newlab('m2')
            k('s_cmp_lg_u32 s10, 3'); k('s_cbranch_scc1 %s' % Lm2)
            k('s_cmp_lg_u32 s3, 0'); k('s_cbranch_scc1 %s' % Lm2)
            k('s_mov_b64 exec, s[42:43]')
            for kk in range(14):
                k('global_store_dwordx4 v%d, %s, s[70:71] offset:%d sc1' % (26 if kk < 8 else 63, vr(MF + 4 * kk, 4), (kk % 8) * 512))
            k('s_mov_b64 exec, -1')
            k.lab(Lm2)
    k.nop(10)
    finish(7)
    stamp(k, 2)
    Lgo = k.newlab('go')
    k('s_cmp_lg_u32 s36, 63'); k('s_cbranch_scc1 %s' % Lgo)
    k('s_waitcnt vmcnt(0)'); k('s_barrier')
    k('s_add_u32 s74, s74, 4'); k('s_addc_u32 s75, s75, 0')
    cmsig()
    k('s_add_u32 s91, s3, 224')
    k.ts(0)
    k('s_branch %s' % Lend)
    k.lab(Lgo)
    PX = MF
    PMS = (56, 28)
    k('v_add_u32 v14, s37, v17')
    k('v_add_u32 v27, s37, v13')
    Lp = k.newlab('pp')
    k.lab(Lp)
    k('s_mov_b64 exec, s[42:43]')
    for u in range(4):
        k('global_load_dwordx4 %s, v16, s[34:35] offset:%d sc1' % (vr(PX + 4 * u, 4), u * 512))
    k('s_mov_b64 exec, s[48:49]')
    for pr in range(2):
        k('global_load_dwordx4 %s, v19, s[34:35] offset:%d sc1' % (vr(PMS[pr], 4), pr * 256))
    k('s_add_u32 s%d, s%d, 1' % (S_TO, S_TO))
    k('s_cmp_gt_u32 s%d, %d' % (S_TO, TO_LIMIT)); k('s_cbranch_scc1 %s' % Lend)
    k('s_waitcnt vmcnt(0)')
    maxchain(k, list(range(56, 60)) + list(range(28, 32)), 61)
    k('v_cmp_eq_u32 s[66:67], -1, v61')
    k('s_mov_b64 exec, s[42:43]')
    maxchain(k, range(PX, PX + 16), 60)
    k('v_cmp_eq_u32 vcc, -1, v60')
    k('s_mov_b64 exec, -1')
    k('s_or_b64 vcc, vcc, s[66:67]')
    k('s_cbranch_vccnz %s' % Lp)
    stamp(k, 3)
    for u in range(4):
        for dt in range(2):
            c = '0' if u == 0 else vr(OA + 4 * dt, 4)
            k('v_mfma_f32_16x16x32_bf16 %s, %s, %s, %s' % (vr(OA + 4 * dt, 4), vr(UTF + 4 * (u * 2 + dt), 4), vr(PX + 4 * u, 4), c))
    for pr in range(2):
        for dt in range(2):
            k('v_mfma_f32_16x16x32_bf16 %s, %s, %s, %s' % (vr(OA + 4 * dt, 4), vr(VM + (pr * 2 + dt) * 4, 4), vr(PMS[pr], 4), vr(OA + 4 * dt, 4)))
    k.nop(8)
    k('ds_write_b128 v14, %s' % vr(OA, 4)); k('ds_write_b128 v14, %s offset:1024' % vr(OA + 4, 4))
    k('s_waitcnt lgkmcnt(0)'); k('s_barrier')
    stamp(k, 4)
    k('s_cmp_ge_u32 s10, 2'); k('s_cbranch_scc1 %s' % LOn)
    for w in range(4): k('ds_read_b128 %s, v27 offset:%d' % (vr(LT + 4 * w, 4), w * 2048))
    k('s_waitcnt lgkmcnt(2)')
    for r in (0, 2): k('v_pk_add_f32 %s, %s, %s' % (vr(LT + r, 2), vr(LT + r, 2), vr(LT + 4 + r, 2)))
    k('s_waitcnt lgkmcnt(0)')
    for r in (0, 2): k('v_pk_add_f32 %s, %s, %s' % (vr(LT + 8 + r, 2), vr(LT + 8 + r, 2), vr(LT + 12 + r, 2)))
    for r in (0, 2): k('v_pk_add_f32 %s, %s, %s' % (vr(LT + r, 2), vr(LT + r, 2), vr(LT + 8 + r, 2)))
    k('v_cvt_pk_bf16_f32 v%d, v%d, v%d' % (LT + 4, LT, LT + 1)); k('v_cvt_pk_bf16_f32 v%d, v%d, v%d' % (LT + 5, LT + 2, LT + 3))
    k('s_mov_b64 exec, s[42:43]')
    pub_store(k, 'global_store_dwordx2 v15, %s, s[46:47]' % vr(LT + 4, 2))
    k('s_mov_b64 exec, -1')
    k.lab(LOn)
    stamp(k, 5)
    stamp_flush(k, 6, 0)
    k('s_add_u32 s30, s30, %d' % MEM_STRIDE); k('s_addc_u32 s31, s31, 0')
    k('s_add_u32 s46, s46, %d' % MEM_STRIDE); k('s_addc_u32 s47, s47, 0')
    k('s_add_u32 s70, s70, %d' % MEM_STRIDE); k('s_addc_u32 s71, s71, 0')
    k('s_add_u32 s74, s74, 4'); k('s_addc_u32 s75, s75, 0')
    k('s_add_u32 s32, s32, %d' % (16 * 28 * 1024)); k('s_addc_u32 s33, s33, 0')
    k('s_add_u32 s34, s34, %d' % P_STEP); k('s_addc_u32 s35, s35, 0')
    k('s_add_u32 s38, s38, %d' % UM_STEP); k('s_addc_u32 s39, s39, 0')
    k('s_xor_b32 s37, s37, 8192')
    k('s_add_u32 s36, s36, 1'); k('s_branch %s' % LOl)
    k.lab(Lpf)
    k.ldarg(4, 'ws')
    k('v_lshrrev_b32 v2, 6, v0'); k('s_nop 0'); k('v_readfirstlane_b32 s10, v2')
    k('s_mov_b32 s92, 0'); k('s_mov_b32 s36, 0')
    k('s_waitcnt lgkmcnt(0)')
    k.addoff(66, 4, WS['UF']); k.addoff(68, 4, WS['HP']); k.addoff(30, 4, WS['MEMF'])
    Lpl, Lnw, Lnp, Lpp = k.newlab('pl'), k.newlab('nw'), k.newlab('npc'), k.newlab('pp')
    k.lab(Lpl)
    k('s_and_b32 s24, s36, 3'); k('s_cmp_lg_u32 s24, 0'); k('s_cbranch_scc1 %s' % Lnw)
    k('s_lshl_b32 s62, s36, 4')
    k.wait_cnt(4, 62, C_UF, 56, Lend, vt=(10, 11), swave=10)
    k.lab(Lnw)
    k('s_mul_i32 s64, s36, %d' % (16 * 28 * 1024))
    k.touch(66, 64, 16 * 28 * 1024, 10, vt=(10, 11))
    k('s_mul_i32 s64, s36, %d' % (2 * 28 * 512))
    k.touch(68, 64, 2 * 28 * 512, 10, vt=(10, 11))
    k('s_cmp_lt_u32 s36, 2'); k('s_cbranch_scc1 %s' % Lnp)
    k('s_sub_u32 s24, s36, 1'); k('s_lshl_b32 s24, s24, 13'); k('v_mov_b32 v10, s24')
    k.lab(Lpp)
    k('global_load_dword v11, v10, s[30:31] sc1')
    k('s_add_u32 s92, s92, 1'); k('s_cmp_gt_u32 s92, %d' % (1 << 18)); k('s_cbranch_scc1 %s' % Lend)
    k('s_waitcnt vmcnt(0)')
    k('v_cmp_eq_u32 vcc, -1, v11'); k('s_nop 1')
    k('s_cbranch_vccz %s' % Lnp)
    k('s_sleep 8'); k('s_branch %s' % Lpp)
    k.lab(Lnp)
    k('s_add_u32 s36, s36, 1'); k('s_cmp_lt_u32 s36, 63'); k('s_cbranch_scc1 %s' % Lpl)
    k('s_branch %s' % Lend)
    if worker:
        k.lab(Lw)
        k('s_cmp_ge_u32 s2, 256'); k('s_cbranch_scc1 %s' % Lend)
        k('s_lshr_b32 s3, s2, 3'); k('s_sub_u32 s90, s2, s3'); k('s_sub_u32 s90, s90, 1')
        k('s_mov_b32 s91, s90'); k('s_mov_b32 s92, 0')
        for wk, w0, nw in worker:
            Lwl, Lsk = k.newlab('wl'), k.newlab('sk')
            k('s_sub_u32 s90, s91, %d' % w0)
            k('s_cmp_ge_u32 s90, %d' % nw); k('s_cbranch_scc1 %s' % Lsk)
            k.lab(Lwl)
            k('s_mov_b32 s2, s90')
            k.L += wk.L
            k('s_barrier')
            k('s_add_u32 s90, s90, %d' % nw)
            k('s_cmp_lt_u32 s90, %d' % wk.grid); k('s_cbranch_scc1 %s' % Lwl)
            k.lab(Lsk)
    k.lab(Lend)
    return k
```

```python
from fw import *
from k_prep import rnd_bf16

def setbase(k, sdst, spec, sws, sbatch):
    kind, key, bstride = spec
    if kind == 'ws':
        k.addoff(sdst, sws, key)
    if bstride:
        k('s_mul_i32 s40, s%d, %d' % (sbatch, bstride))
        k('s_add_u32 s%d, s%d, s40' % (sdst, sdst)); k('s_addc_u32 s%d, s%d, 0' % (sdst + 1, sdst + 1))

def k_gemm(name, A, lda, B, ldb, C, ldc, K, MT, NT, WM, WN, tiles_m, tiles_n, batch=1, epi='plain', scale=None, D=2, nmajor=False, signal=False, wait=None, sig=None, KC=64, sigsh=0):
    TM, TN = 32 * MT * WM, 32 * NT * WN
    RS = KC * 2 + 16; SPR = KC // 8; RPP = 256 // SPR; LSP = SPR.bit_length() - 1; NKS = KC // 16
    PA, PB = TM * SPR // 256, TN * SPR // 256
    BS = (TM + TN) * RS
    NC = K // KC
    tot = tiles_m * tiles_n * batch
    vAo = 8; vBo = vAo + PA
    vst = (vBo + PB + 12 + 3) // 4 * 4
    vmisc = vBo + PB
    v_lwa, v_lwb, v_fa, v_fb, v_lwa_c, v_lwb_c, v_fa_c, v_fb_c = range(vmisc, vmisc + 8)
    vfr = vst + (PA + PB) * 4 * D
    nfr = (MT + NT) * 4
    vend = vfr + 2 * nfr
    vtmp = vst
    nv = max(vend, vtmp + 64)
    k = Kern(name, grid=tot, lds=2 * BS, vgpr=nv, agpr=MT * NT * 16, sgpr=64)
    Lend, Lloop, Lnold, Lnow = k.newlab('end'), k.newlab('loop'), k.newlab('nold'), k.newlab('now')
    k('s_cmp_ge_u32 s2, %d' % tot); k('s_cbranch_scc1 %s' % Lend)
    k.ldarg(4, 'ws')
    if A[0] == 'arg': k.ldarg(6, A[1])
    if B[0] == 'arg': k.ldarg(8, B[1])
    if C[0] == 'arg': k.ldarg(10, C[1])
    if epi == 'ffn1': k.ldarg(12, 'b1')
    if epi == 'ffn2': k.ldarg(12, 'b2')
    if batch > 1:
        k.sdiv(20, 2, tiles_m * tiles_n, tot - 1)
        k('s_mul_i32 s21, s20, %d' % (tiles_m * tiles_n)); k('s_sub_u32 s21, s2, s21')
    else:
        k('s_mov_b32 s20, 0'); k('s_mov_b32 s21, s2')
    if nmajor:
        k.sdiv(23, 21, tiles_m, tiles_m * tiles_n - 1)
        k('s_mul_i32 s22, s23, %d' % tiles_m); k('s_sub_u32 s22, s21, s22')
    else:
        k.sdiv(22, 21, tiles_n, tiles_m * tiles_n - 1)
        k('s_mul_i32 s23, s22, %d' % tiles_n); k('s_sub_u32 s23, s21, s23')
    k('v_and_b32 v1, 63, v0')
    k('v_lshrrev_b32 v2, 6, v0')
    k('s_nop 0')
    k('v_readfirstlane_b32 s24, v2')
    k('s_waitcnt lgkmcnt(0)')
    setbase(k, 6, A, 4, 20); setbase(k, 8, B, 4, 20); setbase(k, 10, C, 4, 20)
    if wait is not None:
        base, sh, target = wait
        k('s_mul_i32 s42, s23, %d' % (TN * ldb))
        k.touch(8, 42, TN * ldb, 24)
        k('s_lshr_b32 s41, s22, %d' % sh); k('s_lshl_b32 s41, s41, 6')
        tb = 8 if epi == 'ffn1' else 16
        k.wait_cnt(4, 41, base, target, Lend, swave=24, acq=True)
        k.ts(tb)
        k.ts(tb + 1)
        k('s_mul_i32 s42, s22, %d' % (TM * lda))
        k.touch(6, 42, TM * lda, 24)
    if WN == 1: k('s_mov_b32 s25, s24'); k('s_mov_b32 s26, 0')
    elif WM == 1: k('s_mov_b32 s25, 0'); k('s_mov_b32 s26, s24')
    else: k('s_lshr_b32 s25, s24, 1'); k('s_and_b32 s26, s24, 1')
    k('v_lshrrev_b32 v2, %d, v0' % LSP)
    k('v_and_b32 v3, %d, v0' % (SPR - 1))
    k('v_lshlrev_b32 v3, 4, v3')
    k('s_mul_i32 s27, s22, %d' % TM)
    k('s_mul_i32 s28, s23, %d' % TN)
    k('s_mov_b32 s29, %d' % lda); k('s_mov_b32 s30, %d' % ldb)
    k('v_add_u32 v4, s27, v2'); k('v_mul_lo_u32 v4, v4, s29'); k('v_add_u32 v%d, v4, v3' % vAo)
    for i in range(1, PA): k('v_add_u32 v%d, %d, v%d' % (vAo + i, RPP * lda, vAo + i - 1))
    k('v_add_u32 v4, s28, v2'); k('v_mul_lo_u32 v4, v4, s30'); k('v_add_u32 v%d, v4, v3' % vBo)
    for i in range(1, PB): k('v_add_u32 v%d, %d, v%d' % (vBo + i, RPP * ldb, vBo + i - 1))
    k('v_mul_u32_u24 v4, %d, v2' % RS); k('v_add_u32 v%d, v4, v3' % v_lwa)
    k('v_add_u32 v%d, %d, v%d' % (v_lwb, TM * RS, v_lwa))
    k('v_and_b32 v4, 31, v1'); k('v_lshrrev_b32 v5, 5, v1'); k('v_lshlrev_b32 v5, 4, v5')
    k('s_mul_i32 s31, s25, %d' % (32 * MT)); k('v_add_u32 v6, s31, v4'); k('v_mul_u32_u24 v6, %d, v6' % RS); k('v_add_u32 v%d, v6, v5' % v_fa)
    k('s_mul_i32 s31, s26, %d' % (32 * NT)); k('v_add_u32 v6, s31, v4'); k('v_mul_u32_u24 v6, %d, v6' % RS); k('v_add_u32 v6, v6, v5')
    k('v_add_u32 v%d, %d, v6' % (v_fb, TM * RS))
    for i in range(MT * NT * 16): k('v_accvgpr_write_b32 a%d, 0' % i)
    P = PA + PB
    def loads(c):
        st = vst + (c % D) * P * 4
        for i in range(PA): k('global_load_dwordx4 %s, v%d, s[6:7]' % (vr(st + 4 * i, 4), vAo + i))
        for i in range(PB): k('global_load_dwordx4 %s, v%d, s[8:9]' % (vr(st + 4 * (PA + i), 4), vBo + i))
        k('s_add_u32 s6, s6, %d' % (KC * 2)); k('s_addc_u32 s7, s7, 0')
        k('s_add_u32 s8, s8, %d' % (KC * 2)); k('s_addc_u32 s9, s9, 0')
    def writes(c):
        st = vst + (c % D) * P * 4
        va, vb = (v_lwa, v_lwb) if c % 2 == 0 else (v_lwa_c, v_lwb_c)
        for i in range(PA): k('ds_write_b128 v%d, %s offset:%d' % (va, vr(st + 4 * i, 4), i * RPP * RS))
        for i in range(PB): k('ds_write_b128 v%d, %s offset:%d' % (vb, vr(st + 4 * (PA + i), 4), i * RPP * RS))
    k('v_add_u32 v%d, %d, v%d' % (v_fa_c, BS, v_fa)); k('v_add_u32 v%d, %d, v%d' % (v_fb_c, BS, v_fb))
    k('v_add_u32 v%d, %d, v%d' % (v_lwa_c, BS, v_lwa)); k('v_add_u32 v%d, %d, v%d' % (v_lwb_c, BS, v_lwb))
    for c in range(min(D, NC)): loads(c)
    k('s_waitcnt vmcnt(%d)' % ((min(D, NC) - 1) * P))
    writes(0)
    k('s_waitcnt lgkmcnt(0)'); k('s_barrier')
    for c in range(NC):
        if c + D < NC: loads(c + D)
        fa, fb = (v_fa, v_fb) if c % 2 == 0 else (v_fa_c, v_fb_c)
        def rd(ks):
            base = vfr + (ks & 1) * nfr
            for mt in range(MT): k('ds_read_b128 %s, v%d offset:%d' % (vr(base + 4 * mt, 4), fa, mt * 32 * RS + ks * 32))
            for nt in range(NT): k('ds_read_b128 %s, v%d offset:%d' % (vr(base + 4 * (MT + nt), 4), fb, nt * 32 * RS + ks * 32))
        rd(0)
        for ks in range(NKS):
            if ks < NKS - 1:
                rd(ks + 1); k('s_waitcnt lgkmcnt(%d)' % (MT + NT))
            else:
                k('s_waitcnt lgkmcnt(0)')
            base = vfr + (ks & 1) * nfr
            for mt in range(MT):
                for nt in range(NT):
                    a = (mt * NT + nt) * 16
                    k('v_mfma_f32_32x32x16_bf16 %s, %s, %s, %s' % (ar(a, 16), vr(base + 4 * (MT + nt), 4), vr(base + 4 * mt, 4), ar(a, 16)))
        if c + 1 < NC:
            inflight = min(NC - 1, c + D) - (c + 1)
            k('s_waitcnt vmcnt(%d)' % (inflight * P))
            writes(c + 1)
            k('s_waitcnt lgkmcnt(0)'); k('s_barrier')
    k.nop(16)
    if wait is not None: k.ts(tb + 2)
    k('v_and_b32 v4, 31, v1'); k('v_lshrrev_b32 v5, 5, v1')
    k('s_mul_i32 s31, s25, %d' % (32 * MT)); k('s_add_u32 s31, s31, s27')
    k('v_add_u32 v4, s31, v4')
    k('s_mul_i32 s36, s26, %d' % (32 * NT)); k('s_add_u32 s36, s36, s28')
    k('v_lshlrev_b32 v5, 2, v5'); k('v_add_u32 v5, s36, v5')
    k('s_mov_b32 s37, %d' % ldc)
    k('v_mul_lo_u32 v6, v4, s37')
    k('v_lshl_add_u32 v6, v5, 1, v6')
    if epi == 'bxf':
        k('v_lshrrev_b32 v6, 4, v4'); k('v_mul_u32_u24 v6, 224, v6')
        k('s_lshr_b32 s38, s36, 5'); k('v_add_u32 v6, s38, v6')
        k('v_lshlrev_b32 v6, 6, v6'); k('v_and_b32 v7, 15, v4'); k('v_add_u32 v6, v6, v7')
        k('v_lshlrev_b32 v6, 4, v6'); k('v_lshrrev_b32 v7, 5, v1'); k('v_lshl_add_u32 v6, v7, 3, v6')
    if epi == 'uf':
        k('s_lshr_b32 s38, s36, 5'); k('s_mul_i32 s38, s38, 448')
        k('v_lshrrev_b32 v6, 4, v4'); k('v_add_u32 v6, s38, v6')
        k('v_lshlrev_b32 v6, 6, v6'); k('v_and_b32 v7, 15, v4'); k('v_add_u32 v6, v6, v7')
        k('v_lshrrev_b32 v7, 5, v1'); k('v_lshl_add_u32 v6, v7, 4, v6')
        k('v_lshlrev_b32 v6, 4, v6')
    if epi in ('ffn1', 'ffn2'):
        k('v_lshlrev_b32 v7, 1, v5')
    if epi == 'ffn2':
        k.addoff(14, 4, WS['MOD'] + 5 * 448 * 4)
        k.addoff(16, 4, WS['X1'])
        k('v_lshlrev_b32 v2, 2, v5')
    tset = 0
    for mt in range(MT):
        for nt in range(NT):
            for q in range(4):
                t = vtmp + (tset % 4) * 16; tset += 1
                a = (mt * NT + nt) * 16 + 4 * q
                noff = 32 * nt + 8 * q
                if epi in ('ffn1', 'ffn2'):
                    k('global_load_dwordx2 %s, v7, s[12:13] offset:%d' % (vr(t + 4, 2), noff * 2))
                if epi == 'ffn2':
                    k('global_load_dwordx4 %s, v2, s[14:15] offset:%d' % (vr(t + 8, 4), noff * 4))
                    k('global_load_dwordx2 %s, v6, s[16:17] offset:%d' % (vr(t + 6, 2), noff * 2))
                for r in range(4): k('v_accvgpr_read_b32 v%d, a%d' % (t + r, a + r))
                if epi in ('bxf', 'uf'):
                    k('v_cvt_pk_bf16_f32 v%d, v%d, v%d' % (t + 4, t, t + 1))
                    k('v_cvt_pk_bf16_f32 v%d, v%d, v%d' % (t + 5, t + 2, t + 3))
                    if epi == 'bxf':
                        k('global_store_dwordx2 v6, %s, s[10:11] offset:%d%s' % (vr(t + 4, 2), nt * 1024 + q * 256, ' sc1' if sig is not None else ''))
                    else:
                        sfx = ' sc1' if signal else ''
                        if nt == 0:
                            k('global_store_dwordx2 v6, %s, s[10:11] offset:%d%s' % (vr(t + 4, 2), (q & 1) * 512 + (q >> 1) * 8, sfx))
                        else:
                            k('v_add_u32 v7, %d, v6' % (nt * 448 * 1024))
                            k('global_store_dwordx2 v7, %s, s[10:11] offset:%d%s' % (vr(t + 4, 2), (q & 1) * 512 + (q >> 1) * 8, sfx))
                elif epi == 'plain':
                    if scale is not None:
                        for r in range(4): k('v_mul_f32 v%d, 0x%08x, v%d' % (t + r, scale, t + r))
                    k('v_cvt_pk_bf16_f32 v%d, v%d, v%d' % (t + 4, t, t + 1))
                    k('v_cvt_pk_bf16_f32 v%d, v%d, v%d' % (t + 5, t + 2, t + 3))
                    k('global_store_dwordx2 v6, %s, s[10:11] offset:%d' % (vr(t + 4, 2), noff * 2))
                else:
                    rnd_bf16(k, (t, t + 1), t, t + 1, t + 12); rnd_bf16(k, (t + 2, t + 3), t + 2, t + 3, t + 12)
                    k('s_waitcnt vmcnt(0)')
                    for j in range(2):
                        k('v_lshlrev_b32 v%d, 16, v%d' % (t + 12, t + 4 + j)); k('v_and_b32 v%d, 0xffff0000, v%d' % (t + 13, t + 4 + j))
                        k('v_add_f32 v%d, v%d, v%d' % (t + 2 * j, t + 2 * j, t + 12)); k('v_add_f32 v%d, v%d, v%d' % (t + 2 * j + 1, t + 2 * j + 1, t + 13))
                    rnd_bf16(k, (t, t + 1), t, t + 1, t + 12); rnd_bf16(k, (t + 2, t + 3), t + 2, t + 3, t + 12)
                    if epi == 'ffn1':
                        for r in range(4):
                            z = t + r; u = t + 12
                            k('v_mul_f32 v%d, v%d, v%d' % (u, z, z))
                            k('v_mov_b32 v%d, 0x3d372713' % (u + 1))
                            k('v_fma_f32 v%d, v%d, v%d, 1.0' % (u, u, u + 1))
                            k('v_mul_f32 v%d, v%d, v%d' % (u, u, z))
                            k('v_mul_f32 v%d, 0x%08x, v%d' % (u, 0xc0135761, u))
                            k('v_exp_f32 v%d, v%d' % (u, u))
                            k('s_nop 0')
                            k('v_add_f32 v%d, 1.0, v%d' % (u, u))
                            k('v_rcp_f32 v%d, v%d' % (u, u))
                            k('s_nop 0')
                            k('v_mul_f32 v%d, v%d, v%d' % (z, z, u))
                    else:
                        for r in range(4): k('v_mul_f32 v%d, v%d, v%d' % (t + r, t + r, t + 8 + r))
                        rnd_bf16(k, (t, t + 1), t, t + 1, t + 12); rnd_bf16(k, (t + 2, t + 3), t + 2, t + 3, t + 12)
                        for j in range(2):
                            k('v_lshlrev_b32 v%d, 16, v%d' % (t + 12, t + 6 + j)); k('v_and_b32 v%d, 0xffff0000, v%d' % (t + 13, t + 6 + j))
                            k('v_add_f32 v%d, v%d, v%d' % (t + 2 * j, t + 2 * j, t + 12)); k('v_add_f32 v%d, v%d, v%d' % (t + 2 * j + 1, t + 2 * j + 1, t + 13))
                    k('v_cvt_pk_bf16_f32 v%d, v%d, v%d' % (t + 14, t, t + 1))
                    k('v_cvt_pk_bf16_f32 v%d, v%d, v%d' % (t + 15, t + 2, t + 3))
                    k('global_store_dwordx2 v6, %s, s[10:11] offset:%d%s' % (vr(t + 14, 2), noff * 2, ' sc1' if sig is not None else ''))
        if mt < MT - 1:
            k('v_add_u32 v6, %d, v6' % ({'bxf': 2 * 224 * 1024, 'uf': 2 * 1024}.get(epi, 32 * ldc)))
    if wait is not None:
        k('s_waitcnt vmcnt(0)'); k.ts(tb + 3)
    if signal:
        k('s_lshl_b32 s23, s23, 6')
        k.release_signal(4, 23, C_UF, wb=False)
    if sig is not None:
        k('s_lshl_b32 s22, s22, 6')
        k.release_signal(4, 22, sig, wb=False)
        if wait is not None: k.ts(tb + 4)
    k.lab(Lend)
    return k
```

```python
from fw import *

def k_prep0():
    NMOD, NTR, NFILL = 21, 392, 64
    tot = NMOD + NTR + NFILL
    k = Kern('prep0_kernel', grid=tot, lds=64*144, vgpr=96, sgpr=96)
    Lend, Ltr, Lfill = k.newlab('end'), k.newlab('tr'), k.newlab('fill')
    k('s_cmp_ge_u32 s2, %d' % tot); k('s_cbranch_scc1 %s' % Lend)
    k.ldarg(4, 'c'); k.ldarg(6, 'wmod'); k.ldarg(8, 'ws'); k.ldarg(12, 'Wo'); k.ldarg(14, 'w1'); k.ldarg(16, 'w2'); k.ldarg(18, 'mem0')
    k('v_and_b32 v1, 63, v0')
    k('v_lshrrev_b32 v2, 6, v0')
    k('s_nop 0')
    k('v_readfirstlane_b32 s10, v2')
    k('s_waitcnt lgkmcnt(0)')
    k('s_cmp_ge_u32 s2, %d' % NMOD); k('s_cbranch_scc1 %s' % Ltr)
    k('s_mul_i32 s11, s10, 112')
    k('v_add_u32 v2, s11, v1')
    k('v_min_u32 v3, 47, v1')
    k('v_add_u32 v3, 64, v3')
    k('v_add_u32 v3, s11, v3')
    k('v_lshlrev_b32 v2, 1, v2'); k('v_lshlrev_b32 v3, 1, v3')
    k('global_load_ushort v4, v2, s[4:5]')
    k('global_load_ushort v5, v3, s[4:5]')
    k('s_mul_i32 s20, s11, 5376')
    k('s_lshl_b32 s21, s2, 8')
    k('s_add_u32 s20, s20, s21')
    k('v_lshlrev_b32 v6, 2, v1')
    k('v_add_u32 v6, s20, v6')
    k('s_waitcnt vmcnt(0)')
    for r in (4, 5):
        k('v_lshlrev_b32 v%d, 16, v%d' % (r, r))
        k('v_mul_f32 v7, 0xbfb8aa3b, v%d' % r)
        k('v_exp_f32 v7, v7')
        k('s_nop 0')
        k('v_add_f32 v7, 1.0, v7')
        k('v_rcp_f32 v7, v7')
        k('s_nop 0')
        k('v_mul_f32 v%d, v%d, v7' % (r, r))
    k('v_cvt_pk_bf16_f32 v7, v4, v5')
    k('v_lshlrev_b32 v4, 16, v7')
    k('v_and_b32 v5, 0xffff0000, v7')
    k('v_mov_b32 v8, 0'); k('v_mov_b32 v9, 0')
    for b in range(2):
        for i in range(56):
            k('global_load_dword v%d, v6, s[6:7]' % (16 + i))
            k('v_add_u32 v6, 5376, v6')
        for i in range(56):
            kk = b * 56 + i
            src, lane = (4, kk) if kk < 64 else (5, kk - 64)
            k('v_readlane_b32 s%d, v%d, %d' % (24 + i, src, lane))
        k('s_waitcnt vmcnt(0)')
        for i in range(56):
            k('v_lshlrev_b32 v10, 16, v%d' % (16 + i))
            k('v_and_b32 v11, 0xffff0000, v%d' % (16 + i))
            k('v_fmac_f32 v8, s%d, v10' % (24 + i))
            k('v_fmac_f32 v9, s%d, v11' % (24 + i))
    k('v_lshlrev_b32 v10, 3, v0')
    k('ds_write_b64 v10, v[8:9]')
    k('s_waitcnt lgkmcnt(0)')
    k('s_barrier')
    k('s_cmp_lg_u32 s10, 0'); k('s_cbranch_scc1 %s' % Lend)
    k('ds_read_b64 v[12:13], v10 offset:512')
    k('ds_read_b64 v[14:15], v10 offset:1024')
    k('ds_read_b64 v[16:17], v10 offset:1536')
    k('s_waitcnt lgkmcnt(0)')
    for r in (12, 14, 16):
        k('v_add_f32 v8, v8, v%d' % r); k('v_add_f32 v9, v9, v%d' % (r + 1))
    k('v_cvt_pk_bf16_f32 v7, v8, v9')
    k('v_lshlrev_b32 v8, 16, v7'); k('v_and_b32 v9, 0xffff0000, v7')
    k('v_add_f32 v12, 1.0, v8'); k('v_add_f32 v13, 1.0, v9')
    k('v_cvt_pk_bf16_f32 v7, v12, v13')
    k('v_lshlrev_b32 v12, 16, v7'); k('v_and_b32 v13, 0xffff0000, v7')
    k('s_lshl_b32 s21, s2, 7')
    k('v_lshlrev_b32 v14, 1, v1'); k('v_add_u32 v14, s21, v14')
    k('v_subrev_u32 v15, 448, v14')
    k('v_cmp_gt_u32 vcc, 448, v15')
    k('s_nop 1')
    k('s_mov_b64 s[22:23], vcc')
    k('v_subrev_u32 v15, 1792, v14')
    k('v_cmp_gt_u32 vcc, 448, v15')
    k('s_nop 1')
    k('s_or_b64 vcc, vcc, s[22:23]')
    k('s_nop 1')
    k('v_cndmask_b32 v8, v8, v12, vcc'); k('v_cndmask_b32 v9, v9, v13, vcc')
    k('v_lshlrev_b32 v14, 2, v14')
    k('global_store_dwordx2 v14, v[8:9], s[8:9] offset:%d' % WS['MOD'])
    k('s_branch %s' % Lend)
    k.lab(Ltr)
    k('s_cmp_ge_u32 s2, %d' % (NMOD + NTR)); k('s_cbranch_scc1 %s' % Lfill)
    L1, L2, Lc = k.newlab('t1'), k.newlab('t2'), k.newlab('tc')
    k('s_sub_u32 s20, s2, %d' % NMOD); k('s_add_u32 s20, s20, 448')
    k('s_cmp_ge_u32 s20, 448'); k('s_cbranch_scc1 %s' % L1)
    k.sdiv(21, 20, 28, 447)
    k('s_mul_i32 s22, s21, 28'); k('s_sub_u32 s20, s20, s22')
    k.sdiv(23, 20, 7, 27)
    k('s_mul_i32 s22, s23, 7'); k('s_sub_u32 s24, s20, s22')
    k('s_mul_i32 s22, s21, 229376')
    k('s_add_u32 s30, s12, s22'); k('s_addc_u32 s31, s13, 0')
    k('s_add_u32 s22, s22, 0x%x' % WS['WOT'])
    k('s_add_u32 s32, s8, s22'); k('s_addc_u32 s33, s9, 0')
    k('s_mov_b32 s25, %d' % (448 * 2)); k('s_mov_b32 s26, %d' % (256 * 2))
    k('s_branch %s' % Lc)
    k.lab(L1)
    k('s_cmp_ge_u32 s20, 644'); k('s_cbranch_scc1 %s' % L2)
    k('s_sub_u32 s20, s20, 448')
    k.sdiv(23, 20, 28, 195)
    k('s_mul_i32 s22, s23, 28'); k('s_sub_u32 s24, s20, s22')
    k('s_mov_b32 s30, s14'); k('s_mov_b32 s31, s15')
    k.addoff(32, 8, WS['W1T'])
    k('s_mov_b32 s25, %d' % (1792 * 2)); k('s_mov_b32 s26, %d' % (448 * 2))
    k('s_branch %s' % Lc)
    k.lab(L2)
    k('s_sub_u32 s20, s20, 644')
    k.sdiv(23, 20, 7, 195)
    k('s_mul_i32 s22, s23, 7'); k('s_sub_u32 s24, s20, s22')
    k('s_mov_b32 s30, s16'); k('s_mov_b32 s31, s17')
    k.addoff(32, 8, WS['W2T'])
    k('s_mov_b32 s25, %d' % (448 * 2)); k('s_mov_b32 s26, %d' % (1792 * 2))
    k.lab(Lc)
    k('v_lshrrev_b32 v2, 3, v0')
    k('v_and_b32 v3, 7, v0')
    k('s_lshl_b32 s27, s23, 6')
    k('s_lshl_b32 s28, s24, 6')
    k('v_add_u32 v4, s27, v2')
    k('v_mul_lo_u32 v4, v4, s25')
    k('v_lshlrev_b32 v5, 4, v3')
    k('s_lshl_b32 s29, s28, 1')
    k('v_add3_u32 v4, v4, v5, s29')
    k('s_lshl_b32 s34, s25, 5')
    k('v_add_u32 v6, s34, v4')
    k('global_load_dwordx4 v[16:19], v4, s[30:31]')
    k('global_load_dwordx4 v[20:23], v6, s[30:31]')
    k('v_mul_u32_u24 v7, 144, v2')
    k('v_add_u32 v7, v7, v5')
    k('s_waitcnt vmcnt(0)')
    k('ds_write_b128 v7, v[16:19]')
    k('ds_write_b128 v7, v[20:23] offset:4608')
    k('s_waitcnt lgkmcnt(0)')
    k('s_barrier')
    k('v_mul_u32_u24 v7, %d, v3' % (8 * 144))
    k('v_lshl_add_u32 v7, v2, 1, v7')
    for p in range(2):
        for i in range(8):
            k('ds_read_u16 v%d, v7 offset:%d' % (32 + p * 8 + i, i * 144 + p * 64))
    k('v_add_u32 v4, s28, v2')
    k('v_mul_lo_u32 v4, v4, s26')
    k('s_lshl_b32 s29, s27, 1')
    k('v_add3_u32 v4, v4, v5, s29')
    k('s_lshl_b32 s34, s26, 5')
    k('v_add_u32 v6, s34, v4')
    k('s_waitcnt lgkmcnt(0)')
    for j in range(8):
        k('v_lshl_or_b32 v%d, v%d, 16, v%d' % (24 + j, 33 + 2 * j, 32 + 2 * j))
    k('global_store_dwordx4 v4, v[24:27], s[32:33]')
    k('global_store_dwordx4 v6, v[28:31], s[32:33]')
    k('s_branch %s' % Lend)
    k.lab(Lfill)
    Lf1 = k.newlab('f1'); Lf2 = k.newlab('f2')
    k('s_sub_u32 s20, s2, %d' % (NMOD + NTR))
    k('v_lshlrev_b32 v2, 4, v0')
    k('s_lshl_b32 s21, s20, 13')
    k('s_add_u32 s22, s21, 0x%x' % WS['MEMF'])
    k('s_add_u32 s30, s8, s22'); k('s_addc_u32 s31, s9, 0')
    k('s_lshl_b32 s21, s20, 14')
    k('s_add_u32 s21, s21, 0x%x' % WS['P'])
    k('s_add_u32 s32, s8, s21'); k('s_addc_u32 s33, s9, 0')
    for r in range(4, 8): k('v_mov_b32 v%d, -1' % r)
    k('v_add_u32 v3, 4096, v2')
    k('s_cmp_eq_u32 s20, 0'); k('s_cbranch_scc1 %s' % Lf1)
    k('global_store_dwordx4 v2, v[4:7], s[30:31]')
    k('global_store_dwordx4 v3, v[4:7], s[30:31]')
    k('s_branch %s' % Lf2)
    k.lab(Lf1)
    k.addoff(24, 8, WS['CNT'])
    for r in range(12, 16): k('v_mov_b32 v%d, 0' % r)
    k('global_store_dwordx4 v2, v[12:15], s[24:25]')
    k('global_store_dwordx4 v3, v[12:15], s[24:25]')
    k.addoff(26, 8, WS['MEMF2'])
    k('v_and_b32 v8, 7, v0'); k('v_mul_u32_u24 v8, 896, v8')
    k('v_lshrrev_b32 v9, 3, v0')
    k('v_lshl_add_u32 v10, v9, 4, v8')
    k('global_load_dwordx4 v[12:15], v10, s[18:19]')
    k('s_waitcnt vmcnt(0)')
    k('global_store_dwordx4 v2, v[12:15], s[30:31]')
    k('global_store_dwordx4 v2, v[12:15], s[26:27]')
    k('v_cmp_gt_u32 vcc, 192, v0'); k('s_and_saveexec_b64 s[22:23], vcc')
    k('global_load_dwordx4 v[12:15], v10, s[18:19] offset:512')
    k('s_waitcnt vmcnt(0)')
    k('global_store_dwordx4 v3, v[12:15], s[30:31]')
    k('global_store_dwordx4 v3, v[12:15], s[26:27]')
    k('s_mov_b64 exec, s[22:23]')
    k.lab(Lf2)
    for i in range(4):
        k('global_store_dwordx4 v2, v[4:7], s[32:33]')
        if i < 3: k('v_add_u32 v2, 4096, v2')
    k.lab(Lend)
    return k

def wave_allreduce_add(k, v, t):
    for n in (8, 4, 2, 1):
        k('s_nop 1')
        k('v_add_f32_dpp v%d, v%d, v%d row_ror:%d row_mask:0xf bank_mask:0xf' % (v, v, v, n))
    for op in ('v_permlane16_swap_b32', 'v_permlane32_swap_b32'):
        k('v_mov_b32 v%d, v%d' % (t, v)); k('v_mov_b32 v%d, v%d' % (t + 1, v))
        k('s_nop 1')
        k('%s v%d, v%d' % (op, t, t + 1))
        k('s_nop 1')
        k('v_add_f32 v%d, v%d, v%d' % (v, t, t + 1))

def rnd_bf16(k, dsts, a, b, t):
    k('v_cvt_pk_bf16_f32 v%d, v%d, v%d' % (t, a, b))
    k('v_lshlrev_b32 v%d, 16, v%d' % (dsts[0], t))
    k('v_and_b32 v%d, 0xffff0000, v%d' % (dsts[1], t))

def k_ln(name, src_is_input, src_off, dst_off, sh_idx, opc_idx, extra=False):
    k = Kern(name, grid=512, vgpr=64, sgpr=48)
    Lend = k.newlab('end')
    k('s_cmp_ge_u32 s2, 512'); k('s_cbranch_scc1 %s' % Lend)
    k.ldarg(4, 'x'); k.ldarg(8, 'ws')
    k('v_and_b32 v1, 63, v0')
    k('v_lshrrev_b32 v2, 6, v0')
    k('s_lshl_b32 s10, s2, 2')
    k('v_add_u32 v2, s10, v2')
    k('v_mul_u32_u24 v2, 896, v2')
    k('v_min_u32 v3, 55, v1')
    k('v_lshl_add_u32 v2, v3, 4, v2')
    k('v_lshlrev_b32 v4, 5, v3')
    k('s_waitcnt lgkmcnt(0)')
    if not src_is_input:
        k.addoff(4, 8, src_off)
    k.addoff(12, 8, dst_off)
    k('global_load_dwordx4 v[8:11], v2, s[4:5]')
    k.addoff(14, 8, WS['MOD'] + sh_idx * 448 * 4)
    k.addoff(16, 8, WS['MOD'] + opc_idx * 448 * 4)
    k('global_load_dwordx4 v[32:35], v4, s[14:15]')
    k('global_load_dwordx4 v[36:39], v4, s[14:15] offset:16')
    k('global_load_dwordx4 v[40:43], v4, s[16:17]')
    k('global_load_dwordx4 v[44:47], v4, s[16:17] offset:16')
    k('v_cmp_gt_u32 s[20:21], 56, v1')
    k('s_waitcnt vmcnt(4)')
    for i in range(4):
        k('v_lshlrev_b32 v%d, 16, v%d' % (16 + 2 * i, 8 + i))
        k('v_and_b32 v%d, 0xffff0000, v%d' % (17 + 2 * i, 8 + i))
    k('v_add_f32 v24, v16, v17')
    for i in range(2, 8): k('v_add_f32 v24, v24, v%d' % (16 + i))
    k('v_cndmask_b32 v24, 0, v24, s[20:21]')
    wave_allreduce_add(k, 24, 26)
    k('v_mul_f32 v24, 0x%08x, v24' % 0x3b124925)
    k('v_mov_b32 v25, 0')
    for i in range(8):
        k('v_sub_f32 v28, v%d, v24' % (16 + i))
        k('v_fmac_f32 v25, v28, v28')
    k('v_cndmask_b32 v25, 0, v25, s[20:21]')
    wave_allreduce_add(k, 25, 26)
    k('v_mul_f32 v25, 0x%08x, v25' % 0x3b124925)
    rnd_bf16(k, (24, 25), 24, 25, 26)
    k('v_add_f32 v25, 0x3727c5ac, v25')
    rnd_bf16(k, (25, 26), 25, 25, 27)
    k('v_sqrt_f32 v25, v25')
    k('s_nop 0')
    rnd_bf16(k, (25, 26), 25, 25, 27)
    k('v_rcp_f32 v26, v25')
    k('s_nop 0')
    k('s_waitcnt vmcnt(0)')
    for i in range(0, 8, 2):
        a, b = 16 + i, 17 + i
        k('v_sub_f32 v%d, v%d, v24' % (a, a)); k('v_sub_f32 v%d, v%d, v24' % (b, b))
        rnd_bf16(k, (a, b), a, b, 27)
        for r in (a, b):
            k('v_mul_f32 v28, v%d, v26' % r)
            k('v_fma_f32 v29, -v28, v25, v%d' % r)
            k('v_fma_f32 v%d, v29, v26, v28' % r)
        rnd_bf16(k, (a, b), a, b, 27)
        k('v_mul_f32 v%d, v%d, v%d' % (a, a, 40 + i)); k('v_mul_f32 v%d, v%d, v%d' % (b, b, 41 + i))
        rnd_bf16(k, (a, b), a, b, 27)
        k('v_add_f32 v%d, v%d, v%d' % (a, a, 32 + i)); k('v_add_f32 v%d, v%d, v%d' % (b, b, 33 + i))
        k('v_cvt_pk_bf16_f32 v%d, v%d, v%d' % (48 + i // 2, a, b))
    if extra:
        k('v_lshrrev_b32 v52, 6, v0'); k('v_add_u32 v52, s10, v52')
        k('v_lshrrev_b32 v53, 4, v52'); k('v_and_b32 v54, 15, v52')
        k('v_mul_u32_u24 v55, 14, v53'); k('v_lshrrev_b32 v56, 2, v3'); k('v_add_u32 v55, v55, v56')
        k('v_lshlrev_b32 v55, 6, v55'); k('v_and_b32 v56, 3, v3'); k('v_lshl_add_u32 v55, v56, 4, v55'); k('v_add_u32 v55, v55, v54')
        k('v_lshlrev_b32 v55, 4, v55')
        k('v_mul_u32_u24 v57, 28, v53'); k('v_lshrrev_b32 v56, 1, v3'); k('v_add_u32 v57, v57, v56')
        k('v_lshlrev_b32 v57, 6, v57'); k('v_and_b32 v56, 1, v3'); k('v_lshl_add_u32 v57, v56, 5, v57'); k('v_add_u32 v57, v57, v54')
        k('v_lshlrev_b32 v57, 3, v57')
        k.addoff(22, 8, WS['HF']); k.addoff(24, 8, WS['HP'])
    k('s_mov_b64 exec, s[20:21]')
    k('global_store_dwordx4 v2, v[48:51], s[12:13]')
    if extra:
        k('global_store_dwordx4 v55, v[48:51], s[22:23]')
        k('global_store_dwordx2 v57, v[48:49], s[24:25]')
        k('global_store_dwordx2 v57, v[50:51], s[24:25] offset:128')
    k.lab(Lend)
    return k
```

```python
def _al(x, a=4096): return (x + a - 1) // a * a
WS = {}
_off = 0
def _add(name, nbytes):
    global _off
    WS[name] = _off
    _off = _al(_off + nbytes)
_add('MOD', 6*448*4)
_add('H', 2048*448*2)
_add('WOT', 16*448*256*2)
_add('W1T', 1792*448*2)
_add('W2T', 448*1792*2)
_add('MT', 16*448*448*2)
_add('NT', 16*448*448*2)
_add('BXF', 2048*7168*2)
_add('UF', 7168*2048*2)
_add('MEMF', 64*8192)
_add('HP', 2048*448*2)
_add('HF', 2048*448*2)
_add('P', 64*16384)
_add('UMF', 64*8*28*1024)
_add('MFR', 16*448*448*2)
_add('NFR', 16*448*448*2)
_add('CNT', 8192)
_add('MEMF2', 64*8192)
_add('MEMFB', 64*8192)
_add('X1', 2048*448*2)
_add('H2', 2048*448*2)
_add('HID', 2048*1792*2)
WS_TOTAL = _off
MEM_STRIDE = 8192
P_STEP = 16384
P_HEAD = 512
UM_STEP = 8*28*512
KA = dict(x=0, mem0=8, Wq=16, Wk=24, Wv=32, Wo=40, seg=48, Bx=56, w1=64, b1=72, w2=80, b2=88, c=96, wmod=104, out=112, dbg=120, ws=128)
if __name__ == '__main__':
    for k, v in WS.items(): print(k, hex(v))
    print(WS_TOTAL)

C_UF, C_BX, C_CA, C_CF, C_CM = 0, 1024, 2048, 3072, 6144
```

```python
import sys
from fw import *
from k_prep import *
from k_gemm import *
from k_chain import *
from k_attn import *
import k_chain as KC, os
KC.STAMP = bool(os.environ.get('STAMP'))
kerns = []
p0 = k_prep0()
ln1 = k_ln('ln1_kernel', True, 0, WS['H'], 0, 1, extra=True)
g1 = k_gemm('g1_kernel', ('arg','Wk',512), 8192, ('arg','Wq',512), 8192, ('ws',WS['MT'],448*448*2), 896, 256, 1,1,2,2, 7,7, batch=16, scale=0x3d800000, D=4)
g2 = k_gemm('g2_kernel', ('ws',WS['WOT'],448*256*2), 512, ('arg','Wv',512), 8192, ('ws',WS['NT'],448*448*2), 896, 256, 1,1,2,2, 7,7, batch=16, D=4)
kerns.append(merge('prea_kernel', [p0, g1]))
kerns.append(merge('preb_kernel', [ln1, g2]))
g3 = k_gemm('g3_kernel', ('ws',WS['H'],0), 896, ('ws',WS['MT'],0), 896, ('ws',WS['BXF'],0), 7168*2, 448, 2,2,2,2, 16,56, epi='bxf', D=3, sig=C_BX)
g4 = k_gemm('g4_kernel', ('ws',WS['NT'],0), 896, ('ws',WS['H'],0), 896, ('ws',WS['UF'],0), 2048*2, 448, 2,2,2,2, 56,16, epi='uf', D=3, nmajor=True, signal=True)
at = k_attn(inchain=True)
f1 = k_gemm('f1_kernel', ('ws',WS['H2'],0), 896, ('ws',WS['W1T'],0), 896, ('ws',WS['HID'],0), 1792*2, 448, 1,1,2,2, 32,28, epi='ffn1', D=4, wait=(C_CA, 1, 8), sig=C_CF)
f2 = k_gemm('f2_kernel', ('ws',WS['HID'],0), 3584, ('ws',WS['W2T'],0), 3584, ('arg','out',0), 896, 1792, 1,1,2,2, 32,7, epi='ffn2', D=3, KC=128, wait=(C_CF, 0, 28))
kerns.append(k_chain(worker=[(g4,0,224), (g3,0,224), (at,0,128), (f1,128,96), (f2,0,112)]))
launches = list(kerns)
emit(kerns, launches, sys.argv[1] if len(sys.argv) > 1 else 'adaLN_cond__memory_aug_recurrent_mem_tr__dense_activation_gelu__prompt.s')
```

```python
from layout import *

import os
TS = bool(os.environ.get('TS'))
TSOFF = 160 << 20
class Kern:
    def __init__(self, name, grid, block=256, lds=0, vgpr=128, agpr=0, sgpr=96):
        self.name = name; self.grid = grid; self.block = block; self.lds = lds
        self.vgpr = vgpr; self.agpr = agpr; self.sgpr = sgpr
        self.L = []
        self._lab = 0
    def __call__(self, s):
        for line in s.strip('\n').split('\n'):
            line = line.strip()
            if line: self.L.append('    ' + line)
    def lab(self, s): self.L.append(s + ':')
    def newlab(self, p='L'):
        self._lab += 1
        return '%s_%s_%d' % (p, self.name.replace('_kernel', ''), self._lab)
    def nop(self, n):
        while n > 0:
            k = min(n, 16); self('s_nop %d' % (k - 1)); n -= k
    def text(self):
        acc = (self.vgpr + 3) // 4 * 4
        nfv = acc + self.agpr if self.agpr else self.vgpr
        t = ['.text', '.globl %s' % self.name, '.p2align 8', '.type %s,@function' % self.name, self.name + ':']
        t += self.L
        t += ['    s_endpgm']
        d = ['.section .rodata,"a"', '.p2align 6', '.amdhsa_kernel %s' % self.name,
             '  .amdhsa_next_free_vgpr %d' % nfv, '  .amdhsa_next_free_sgpr %d' % self.sgpr,
             '  .amdhsa_accum_offset %d' % acc, '  .amdhsa_group_segment_fixed_size 0',
             '  .amdhsa_kernarg_size 136', '  .amdhsa_user_sgpr_count 2',
             '  .amdhsa_user_sgpr_kernarg_segment_ptr 1', '  .amdhsa_system_sgpr_workgroup_id_x 1',
             '.end_amdhsa_kernel']
        return '\n'.join(t + d) + '\n'
    def launch_line(self):
        return '; @launch kernel=%s grid=(%d,1,1) block=(%d,1,1) lds=%d' % (self.name, self.grid, self.block, self.lds)
    def ldarg(self, sreg, key):
        self('s_load_dwordx2 s[%d:%d], s[0:1], %d' % (sreg, sreg + 1, KA[key]))
    def addoff(self, sdst, ssrc, off):
        self('s_add_u32 s%d, s%d, 0x%x' % (sdst, ssrc, off))
        self('s_addc_u32 s%d, s%d, 0' % (sdst + 1, ssrc + 1))
    def wait_cnt(self, sws, sidx_off, base, target, Lbail, vt=(2, 3), swave=None, acq=False):
        L, Ld, Lo = self.newlab('wc'), self.newlab('wd'), self.newlab('wo')
        self('s_cmp_lg_u32 s%d, 0' % swave); self('s_cbranch_scc1 %s' % Lo)
        self.addoff(94, sws, WS['CNT'] + base)
        self('v_mov_b32 v%d, s%d' % (vt[0], sidx_off))
        self.lab(L)
        self('global_load_dword v%d, v%d, s[94:95] sc1' % (vt[1], vt[0]))
        self('s_add_u32 s92, s92, 1'); self('s_cmp_gt_u32 s92, %d' % (1 << 17)); self('s_cbranch_scc1 %s' % Ld)
        self('s_waitcnt vmcnt(0)')
        self('v_cmp_gt_u32 vcc, %d, v%d' % (target, vt[1]))
        self('s_nop 1')
        self('s_cbranch_vccz %s' % Ld)
        self('s_sleep 2'); self('s_branch %s' % L)
        self.lab(Ld)
        if acq:
            self('buffer_inv sc1'); self('s_waitcnt vmcnt(0)')
        self.lab(Lo)
        self('s_barrier')
    def touch(self, sbase, soff, nbytes, swave, vt=(2, 3)):
        per = nbytes // 4
        n = (per + 8191) // 8192
        self('v_and_b32 v%d, 63, v0' % vt[0]); self('v_lshlrev_b32 v%d, 7, v%d' % (vt[0], vt[0]))
        self('s_mul_i32 s93, s%d, %d' % (swave, per))
        if soff is not None: self('s_add_u32 s93, s93, s%d' % soff)
        self('v_add_u32 v%d, s93, v%d' % (vt[0], vt[0]))
        for i in range(n):
            rem = per - i * 8192
            if rem < 8192:
                self('v_and_b32 v%d, 63, v0' % (vt[1])); self('v_cmp_gt_u32 vcc, %d, v%d' % (rem // 128, vt[1])); self('s_and_saveexec_b64 s[88:89], vcc')
            self('global_load_dword v255, v%d, s[%d:%d]' % (vt[0], sbase, sbase + 1))
            if rem < 8192: self('s_mov_b64 exec, s[88:89]')
            if i < n - 1: self('v_add_u32 v%d, 8192, v%d' % (vt[0], vt[0]))
    def ts(self, idx, sid=91, sws=4):
        if not TS: return
        self('s_memrealtime s[96:97]')
        self('s_lshl_b32 s98, s%d, 8' % sid); self('s_add_u32 s98, s98, 0x%x' % (TSOFF + idx * 8))
        self('s_add_u32 s100, s%d, s98' % sws); self('s_addc_u32 s101, s%d, 0' % (sws + 1))
        self('s_waitcnt lgkmcnt(0)')
        self('v_mov_b32 v252, s96'); self('v_mov_b32 v253, s97'); self('v_mov_b32 v254, 0')
        self('v_cmp_eq_u32 vcc, 0, v0'); self('s_and_saveexec_b64 s[98:99], vcc')
        self('global_store_dwordx2 v254, v[252:253], s[100:101]')
        self('s_mov_b64 exec, s[98:99]')
    def acquire(self):
        self('buffer_inv sc1'); self('s_waitcnt vmcnt(0)')
    def release_signal(self, sws, sidx_off, base, wb=True, vt=(2, 3)):
        self('s_waitcnt vmcnt(0)'); self('s_barrier')
        self.addoff(94, sws, WS['CNT'] + base)
        self('v_mov_b32 v%d, s%d' % (vt[0], sidx_off)); self('v_mov_b32 v%d, 1' % vt[1])
        self('v_cmp_eq_u32 vcc, 0, v0'); self('s_and_saveexec_b64 s[88:89], vcc')
        Ls = self.newlab('sg'); self('s_cbranch_execz %s' % Ls)
        if wb:
            self('buffer_wbl2 sc1'); self('s_waitcnt vmcnt(0)')
        self('global_atomic_add v%d, v%d, s[94:95] sc1' % (vt[0], vt[1]))
        self.lab(Ls)
        self('s_mov_b64 exec, s[88:89]')
    def sdiv(self, sq, sn, d, maxn, stmp=None):
        for sh in range(8, 31):
            m = (1 << sh) // d + 1
            if m * maxn < (1 << 32) and all((x * m) >> sh == x // d for x in range(maxn + 1)):
                self('s_mul_i32 s%d, s%d, %d' % (sq, sn, m))
                self('s_lshr_b32 s%d, s%d, %d' % (sq, sq, sh))
                return
        raise Exception('no magic')

def vr(a, n=1):
    return 'v%d' % a if n == 1 else 'v[%d:%d]' % (a, a + n - 1)
def ar(a, n=1):
    return 'a%d' % a if n == 1 else 'a[%d:%d]' % (a, a + n - 1)
def sr(a, n=1):
    return 's%d' % a if n == 1 else 's[%d:%d]' % (a, a + n - 1)

HEADER = open('adaLN_cond__memory_aug_recurrent_mem_tr__dense_activation_gelu__prompt.s.ref').read().split('; Override launch geometry')[0]

def emit(kerns, launches, path):
    out = HEADER
    for k in launches: out += k.launch_line() + '\n'
    out += '.amdgcn_target "amdgcn-amd-amdhsa--gfx950"\n'
    for k in kerns: out += k.text()
    open(path, 'w').write(out)


def merge(name, subs):
    r8 = lambda n: (n + 7) // 8 * 8
    tot = sum(r8(x.grid) for x in subs)
    k = Kern(name, grid=tot, block=subs[0].block, lds=max(x.lds for x in subs), vgpr=max(x.vgpr for x in subs),
             agpr=max(x.agpr for x in subs), sgpr=max(x.sgpr for x in subs))
    labs = [k.newlab('sub') for _ in subs]
    for x, l in zip(subs, labs):
        k('s_cmp_lt_u32 s2, %d' % r8(x.grid)); k('s_cbranch_scc1 %s' % l)
        k('s_sub_u32 s2, s2, %d' % r8(x.grid))
    k('s_endpgm')
    for x, l in zip(subs, labs):
        k.lab(l)
        k.L += x.L
        k('s_endpgm')
    return k
```

```python
from fw import *
from k_chain import xlane, LOG2E
from k_prep import rnd_bf16

def k_attn(inchain=False):
    k = Kern('attn_kernel', grid=128, lds=24576 + 1024, vgpr=256, agpr=224, sgpr=96)
    Lend = k.newlab('end')
    k('s_cmp_ge_u32 s2, 128'); k('s_cbranch_scc1 %s' % Lend)
    if inchain:
        k('s_and_b32 s60, s2, 1'); k('s_lshr_b32 s2, s2, 1')
    else:
        k('s_bfe_u32 s60, s2, 0x10003'); k('s_and_b32 s61, s2, 7'); k('s_lshr_b32 s2, s2, 4'); k('s_lshl_b32 s2, s2, 3'); k('s_add_u32 s2, s2, s61')
    k.ldarg(4, 'ws'); k.ldarg(6, 'x')
    k('v_and_b32 v1, 63, v0'); k('v_lshrrev_b32 v2, 6, v0'); k('s_nop 0')
    k('v_readfirstlane_b32 s10, v2')
    k('v_and_b32 v2, 15, v1'); k('v_lshrrev_b32 v3, 4, v1')
    k('v_lshlrev_b32 v9, 4, v1')
    k('v_add_u32 v5, 4096, v9'); k('v_add_u32 v6, 8192, v9'); k('v_add_u32 v7, 12288, v9')
    VA4 = (9, 5, 6, 7)
    k('v_cmp_gt_u32 s[40:41], 32, v1')
    k('v_lshlrev_b32 v10, 2, v3')
    for r in range(4):
        k('v_add_u32 v11, %d, v10' % r)
        k('v_cmp_le_u32 s[%d:%d], v11, v2' % (42 + 2 * r, 43 + 2 * r))
    k('s_waitcnt lgkmcnt(0)')
    if inchain:
        k('s_lshr_b32 s62, s2, 2'); k('s_lshl_b32 s62, s62, 6'); k('s_lshl_b32 s63, s2, 2')
        k.wait_cnt(4, 62, C_BX, 56, Lend, vt=(10, 11), swave=10)
        k.wait_cnt(4, 62, C_UF, 56, Lend, vt=(10, 11), swave=10, acq=True)
    k('s_lshl_b32 s20, s2, 13'); k('s_add_u32 s20, s20, 0x%x' % WS['MEMF2' if inchain else 'MEMF'])
    k('v_and_b32 v14, 7, v1'); k('v_lshlrev_b32 v14, 4, v14'); k('v_lshl_add_u32 v14, v3, 7, v14'); k('v_add_u32 v15, 4096, v14')
    k('s_add_u32 s30, s4, s20'); k('s_addc_u32 s31, s5, 0')
    k('s_mul_i32 s20, s2, %d' % (2 * 14 * 1024)); k('s_add_u32 s20, s20, 0x%x' % WS['HF'])
    k('s_add_u32 s32, s4, s20'); k('s_addc_u32 s33, s5, 0')
    k('s_add_u32 s34, s32, %d' % (14 * 1024)); k('s_addc_u32 s35, s33, 0')
    k('s_mul_i32 s20, s2, %d' % (2 * 16 * 14 * 1024)); k('s_mul_i32 s21, s10, %d' % (4 * 14 * 1024)); k('s_add_u32 s20, s20, s21')
    k('s_mul_i32 s21, s60, %d' % (16 * 14 * 1024)); k('s_add_u32 s20, s20, s21')
    k('s_add_u32 s20, s20, 0x%x' % WS['BXF'])
    k('s_add_u32 s36, s4, s20'); k('s_addc_u32 s37, s5, 0')
    k('s_lshl_b32 s20, s10, 12'); k('v_add_u32 v12, s20, v9')
    k('s_lshl_b32 s20, s10, 11'); k('s_add_u32 s20, s20, 16384'); k('v_add_u32 v13, s20, v9')
    k('s_mul_i32 s20, s2, %d' % (16 * 28 * 1024)); k('s_mul_i32 s21, s10, %d' % (7 * 1024)); k('s_add_u32 s20, s20, s21')
    k('s_add_u32 s20, s20, 0x%x' % WS['UF']); k('s_add_u32 s52, s4, s20'); k('s_addc_u32 s53, s5, 0')
    k('s_mul_i32 s20, s2, %d' % (8 * 28 * 512)); k('s_lshr_b32 s21, s21, 1'); k('s_add_u32 s20, s20, s21')
    k('v_and_b32 v16, 31, v1'); k('v_lshlrev_b32 v16, 4, v16')
    k('s_add_u32 s20, s20, 0x%x' % WS['UMF']); k('s_add_u32 s50, s4, s20'); k('s_addc_u32 s51, s5, 0')
    k('v_mov_b32 v60, 0xf149f2ca')
    k('v_mov_b32 v61, 0x%08x' % LOG2E)
    Lit1 = k.newlab('it1')
    k('s_cmp_eq_u32 s60, 1'); k('s_cbranch_scc1 %s' % Lit1)
    HA = 64
    def body(it):
        njt = 2 + it
        def bload(u):
            k('s_add_u32 s38, s36, %d' % (u * 14 * 1024)); k('s_addc_u32 s39, s37, 0')
            for kk in range(14):
                k('global_load_dwordx4 %s, v%d, s[38:39] offset:%d' % (ar(u * 56 + 4 * kk, 4), VA4[kk // 4], (kk % 4) * 1024))
        for jt, sb in list(enumerate((30, 32, 34)))[1:njt]:
            for kk in range(14):
                k('global_load_dwordx4 %s, v%d, s[%d:%d] offset:%d' % (vr(HA + (jt * 14 + kk) * 4, 4), VA4[kk // 4], sb, sb + 1, (kk % 4) * 1024))
        SC = 32; T = 44
        for u in range(4): bload(u)
        if inchain:
            Lnp = k.newlab('np')
            k('s_cmp_lt_u32 s2, 3'); k('s_cbranch_scc1 %s' % Lnp)
            k('s_sub_u32 s64, s63, 12')
            k.wait_cnt(4, 64, C_CM, 14, Lend, vt=(10, 11), swave=10)
            k.lab(Lnp)
            k('s_mul_i32 s64, s2, %d' % (16 * 28 * 1024)); k.addoff(66, 4, WS['UF'])
            k.touch(66, 64, 16 * 28 * 1024, 10, vt=(10, 11))
            k.wait_cnt(4, 63, C_CM, 14, Lend, vt=(10, 11), swave=10, acq=True)
            k.ts(1)
            k.ts(2)
        for kk in range(14):
            k('global_load_dwordx4 %s, v%d, s[30:31] offset:%d' % (vr(HA + kk * 4, 4), 14 + kk // 8, (kk % 8) * 512))
        for u in range(4):
            if u == 0: k('s_waitcnt vmcnt(0)')
            for kk in range(14):
                for jt in range(njt):
                    c = '0' if kk == 0 else vr(SC + 4 * jt, 4)
                    k('v_mfma_f32_16x16x32_bf16 %s, %s, %s, %s' % (vr(SC + 4 * jt, 4), vr(HA + (jt * 14 + kk) * 4, 4), ar(u * 56 + 4 * kk, 4), c))
            k.nop(10)
            sc = [SC + i for i in range(4 * njt)]
            for r in range(4): k('v_cndmask_b32 v%d, v60, v%d, s[40:41]' % (SC + r, SC + r))
            dj = 1 + it
            for r in range(4): k('v_cndmask_b32 v%d, v60, v%d, s[%d:%d]' % (SC + 4 * dj + r, SC + 4 * dj + r, 42 + 2 * r, 43 + 2 * r))
            k('v_max3_f32 v%d, v%d, v%d, v%d' % (T, sc[0], sc[1], sc[2]))
            i = 3
            while i < len(sc):
                if i + 1 < len(sc): k('v_max3_f32 v%d, v%d, v%d, v%d' % (T, T, sc[i], sc[i + 1])); i += 2
                else: k('v_max_f32 v%d, v%d, v%d' % (T, T, sc[i])); i += 1
            xlane(k, 'v_max_f32', T, T + 1)
            k('v_mul_f32 v%d, v61, v%d' % (T, T))
            for r in sc: k('v_fma_f32 v%d, v%d, v61, -v%d' % (r, r, T))
            for r in sc: k('v_exp_f32 v%d, v%d' % (r, r))
            k('s_nop 0')
            k('v_add_f32 v%d, v%d, v%d' % (T, sc[0], sc[1]))
            for r in sc[2:]: k('v_add_f32 v%d, v%d, v%d' % (T, T, r))
            xlane(k, 'v_add_f32', T, T + 1)
            k('v_rcp_f32 v%d, v%d' % (T, T)); k('s_nop 0')
            for r in sc: k('v_mul_f32 v%d, v%d, v%d' % (r, r, T))
            PK = 48
            k('v_cvt_pk_bf16_f32 v%d, v%d, v%d' % (PK, sc[4], sc[5])); k('v_cvt_pk_bf16_f32 v%d, v%d, v%d' % (PK + 1, sc[6], sc[7]))
            if njt == 3:
                k('v_cvt_pk_bf16_f32 v%d, v%d, v%d' % (PK + 2, sc[8], sc[9])); k('v_cvt_pk_bf16_f32 v%d, v%d, v%d' % (PK + 3, sc[10], sc[11]))
            else:
                k('v_mov_b32 v%d, 0' % (PK + 2)); k('v_mov_b32 v%d, 0' % (PK + 3))
            k('v_cvt_pk_bf16_f32 v%d, v%d, v%d' % (PK + 4, sc[0], sc[1])); k('v_cvt_pk_bf16_f32 v%d, v%d, v%d' % (PK + 5, sc[2], sc[3]))
            k('ds_write_b128 v12, %s offset:%d' % (vr(PK, 4), u * 1024))
            k('ds_write_b64 v13, %s offset:%d' % (vr(PK + 4, 2), (u >> 1) * 1024 + (u & 1) * 8))
            k('s_waitcnt lgkmcnt(0)')
        OA = 64; AF = 96; NB = 4; BF = 224
        def aload(idx):
            k('s_add_u32 s38, s52, %d' % (idx * 28 * 1024)); k('s_addc_u32 s39, s53, 0')
            for d in range(7):
                k('global_load_dwordx4 %s, v%d, s[38:39] offset:%d' % (vr(AF + (idx % NB) * 28 + 4 * d, 4), VA4[d // 4], (d % 4) * 1024))
        def bread(idx):
            base = idx * 1024 if idx < 16 else 16384 + (idx - 16) * 1024
            k('ds_read_b128 %s, v9 offset:%d' % (vr(BF + (idx & 1) * 4, 4), base))
        def umf(p):
            k('s_add_u32 s38, s50, %d' % (p * 28 * 512)); k('s_addc_u32 s39, s51, 0')
            for d in range(7):
                k('global_load_dwordx4 %s, v16, s[38:39] offset:%d' % (ar(p * 28 + 4 * d, 4), d * 512))
        for i in range(NB - 1): aload(i)
        k('s_barrier')
        k.ts(3)
        bread(0)
        for idx in range(24):
            if idx + NB - 1 < 16: aload(idx + NB - 1)
            if idx < 8: umf(idx)
            if idx < 23: bread(idx + 1)
            infl = max(0, min(15, idx + NB - 1) - idx) + len([j for j in range(idx - 3, idx + 1) if 0 <= j < 8])
            if idx >= 16: infl = 0
            k('s_waitcnt vmcnt(%d) lgkmcnt(%d)' % (7 * infl, 1 if idx < 23 else 0))
            for d in range(7):
                a = OA + d * 4
                c = '0' if idx == 0 else vr(a, 4)
                src = vr(AF + (idx % NB) * 28 + 4 * d, 4) if idx < 16 else ar((idx - 16) * 28 + 4 * d, 4)
                k('v_mfma_f32_16x16x32_bf16 %s, %s, %s, %s' % (vr(a, 4), src, vr(BF + (idx & 1) * 4, 4), c))
        k.nop(10)
        k.ts(4)
        k('s_lshl_b32 s20, s2, 5'); k('s_add_u32 s20, s20, %d' % (16 * it)); k('v_add_u32 v10, s20, v2'); k('v_mul_u32_u24 v10, 896, v10')
        k('s_mul_i32 s21, s10, 224'); k('v_lshl_add_u32 v10, v3, 3, v10'); k('v_add_u32 v10, s21, v10')
        k('s_mul_i32 s21, s10, 448'); k('v_lshlrev_b32 v12, 4, v3'); k('v_add_u32 v12, s21, v12')
        k.addoff(22, 4, WS['MOD'] + 2 * 448 * 4); k.addoff(24, 4, WS['X1'])
        XR = 120; GR = 160
        for d in range(7):
            k('global_load_dwordx4 %s, v12, s[22:23] offset:%d' % (vr(GR + 4 * d, 4), d * 64))
            k('global_load_dwordx2 %s, v10, s[6:7] offset:%d' % (vr(XR + d * 2, 2), d * 32))
        k('s_waitcnt vmcnt(0)')
        for d in range(7):
            a = OA + d * 4; x = XR + d * 2; t = 32
            rnd_bf16(k, (a, a + 1), a, a + 1, t); rnd_bf16(k, (a + 2, a + 3), a + 2, a + 3, t)
            for r in range(4): k('v_mul_f32 v%d, v%d, v%d' % (a + r, a + r, GR + 4 * d + r))
            rnd_bf16(k, (a, a + 1), a, a + 1, t); rnd_bf16(k, (a + 2, a + 3), a + 2, a + 3, t)
            for j in range(2):
                k('v_lshlrev_b32 v%d, 16, v%d' % (t, x + j)); k('v_and_b32 v%d, 0xffff0000, v%d' % (t + 1, x + j))
                k('v_add_f32 v%d, v%d, v%d' % (a + 2 * j, a + 2 * j, t)); k('v_add_f32 v%d, v%d, v%d' % (a + 2 * j + 1, a + 2 * j + 1, t + 1))
            k('v_cvt_pk_bf16_f32 v%d, v%d, v%d' % (x, a, a + 1)); k('v_cvt_pk_bf16_f32 v%d, v%d, v%d' % (x + 1, a + 2, a + 3))
            k('global_store_dwordx2 v10, %s, s[24:25] offset:%d%s' % (vr(x, 2), d * 32, ' sc1' if inchain else ''))
            for j in range(2):
                k('v_lshlrev_b32 v%d, 16, v%d' % (a + 2 * j, x + j)); k('v_and_b32 v%d, 0xffff0000, v%d' % (a + 2 * j + 1, x + j))
        k.addoff(22, 4, WS['MOD'] + 3 * 448 * 4); k.addoff(26, 4, WS['MOD'] + 4 * 448 * 4); k.addoff(24, 4, WS['H2'])
        SB = 160; OC = 192
        for d in range(7):
            k('global_load_dwordx4 %s, v12, s[22:23] offset:%d' % (vr(SB + 4 * d, 4), d * 64))
            k('global_load_dwordx4 %s, v12, s[26:27] offset:%d' % (vr(OC + 4 * d, 4), d * 64))
        vals = [OA + i for i in range(28)]
        k('v_lshlrev_b32 v34, 2, v2'); k('v_add_u32 v34, 24576, v34')
        k('s_lshl_b32 s21, s10, 6'); k('v_add_u32 v33, s21, v34')
        def reduce(v, off):
            xlane(k, 'v_add_f32', v, 36)
            k('ds_write_b32 v33, v%d offset:%d' % (v, off))
            k('s_waitcnt lgkmcnt(0)'); k('s_barrier')
            for w in range(4): k('ds_read_b32 v%d, v34 offset:%d' % (36 + w, off + w * 64))
            k('s_waitcnt lgkmcnt(0)')
            k('v_add_f32 v36, v36, v37'); k('v_add_f32 v38, v38, v39'); k('v_add_f32 v%d, v36, v38' % v)
            k('v_mul_f32 v%d, 0x%08x, v%d' % (v, 0x3b124925, v))
        k('v_add_f32 v40, v%d, v%d' % (vals[0], vals[1]))
        for r in vals[2:]: k('v_add_f32 v40, v40, v%d' % r)
        reduce(40, 0)
        k('v_mov_b32 v41, 0')
        for r in vals:
            k('v_sub_f32 v42, v%d, v40' % r); k('v_fmac_f32 v41, v42, v42')
        reduce(41, 256)
        rnd_bf16(k, (40, 41), 40, 41, 42)
        k('v_add_f32 v41, 0x3727c5ac, v41')
        rnd_bf16(k, (41, 42), 41, 41, 43)
        k('v_sqrt_f32 v41, v41'); k('s_nop 0')
        rnd_bf16(k, (41, 42), 41, 41, 43)
        k('v_rcp_f32 v42, v41'); k('s_nop 0')
        k('s_waitcnt vmcnt(0)')
        for d in range(7):
            for j in range(2):
                a, b = OA + 4 * d + 2 * j, OA + 4 * d + 2 * j + 1
                k('v_sub_f32 v%d, v%d, v40' % (a, a)); k('v_sub_f32 v%d, v%d, v40' % (b, b))
                rnd_bf16(k, (a, b), a, b, 43)
                for r in (a, b):
                    k('v_mul_f32 v44, v%d, v42' % r)
                    k('v_fma_f32 v45, -v44, v41, v%d' % r)
                    k('v_fma_f32 v%d, v45, v42, v44' % r)
                rnd_bf16(k, (a, b), a, b, 43)
                k('v_mul_f32 v%d, v%d, v%d' % (a, a, OC + 4 * d + 2 * j)); k('v_mul_f32 v%d, v%d, v%d' % (b, b, OC + 4 * d + 2 * j + 1))
                rnd_bf16(k, (a, b), a, b, 43)
                k('v_add_f32 v%d, v%d, v%d' % (a, a, SB + 4 * d + 2 * j)); k('v_add_f32 v%d, v%d, v%d' % (b, b, SB + 4 * d + 2 * j + 1))
                k('v_cvt_pk_bf16_f32 v%d, v%d, v%d' % (XR + 2 * d + j, a, b))
            k('global_store_dwordx2 v10, %s, s[24:25] offset:%d%s' % (vr(XR + 2 * d, 2), d * 32, ' sc1' if inchain else ''))
    Lsig = k.newlab('sig')
    body(0)
    k('s_branch %s' % Lsig)
    k.lab(Lit1)
    body(1)
    k.lab(Lsig)
    if inchain:
        k.ts(5)
        k.release_signal(4, 62, C_CA, wb=False)
        k.ts(6)
    k.lab(Lend)
    return k
```

```python
from fw import *

LOG2E = 0x3fb8aa3b
S_FAST = 44
S_TO = 45
TO_LIMIT = 1 << 18

def pub_store(k, instr):
    Lf, Le = k.newlab('pf'), k.newlab('pe')
    k('s_cmp_eq_u32 s%d, 1' % S_FAST); k('s_cbranch_scc1 %s' % Lf)
    k(instr + ' sc1'); k('s_branch %s' % Le)
    k.lab(Lf); k(instr); k.lab(Le)

def maxchain(k, regs, t):
    regs = list(regs)
    k('v_max_u32 v%d, v%d, v%d' % (t, regs[0], regs[1]))
    i = 2
    while i < len(regs):
        if i + 1 < len(regs):
            k('v_max3_u32 v%d, v%d, v%d, v%d' % (t, t, regs[i], regs[i + 1])); i += 2
        else:
            k('v_max_u32 v%d, v%d, v%d' % (t, t, regs[i])); i += 1

def poll(k, issue, regs, t, Lbail):
    Lp = k.newlab('poll')
    k.lab(Lp)
    issue()
    k('s_add_u32 s%d, s%d, 1' % (S_TO, S_TO))
    k('s_cmp_gt_u32 s%d, %d' % (S_TO, TO_LIMIT)); k('s_cbranch_scc1 %s' % Lbail)
    k('s_waitcnt vmcnt(0)')
    maxchain(k, regs, t)
    k('v_cmp_eq_u32 vcc, -1, v%d' % t)
    k('s_nop 1')
    k('s_cbranch_vccnz %s' % Lp)

def xlane(k, op, v, t):
    for pl in ('v_permlane16_swap_b32', 'v_permlane32_swap_b32'):
        k('v_mov_b32 v%d, v%d' % (t, v))
        k('s_nop 1')
        k('%s v%d, v%d' % (pl, t, v))
        k('s_nop 1')
        k('%s v%d, v%d, v%d' % (op, v, t, v))

RED = 114688
STAMP = False
DBGOFF = 128 << 20
def stamp(k, idx):
    if not STAMP: return
    k('s_memtime s[%d:%d]' % (50 + 2 * idx, 51 + 2 * idx))
def stamp_flush(k, n, va):
    if not STAMP: return
    k('s_waitcnt lgkmcnt(0)')
    k('s_lshr_b32 s76, s2, 3'); k('s_lshl_b32 s76, s76, 2'); k('s_add_u32 s76, s76, s10'); k('s_lshl_b32 s76, s76, 6'); k('s_add_u32 s76, s76, s36'); k('s_lshl_b32 s76, s76, 6')
    k('s_add_u32 s76, s76, 0x%x' % DBGOFF)
    k('s_add_u32 s78, s4, s76'); k('s_addc_u32 s79, s5, 0')
    k('s_mov_b64 exec, 1')
    k('v_mov_b32 v%d, 0' % va)
    for i in range(n):
        k('v_mov_b32 v60, s%d' % (50 + 2 * i))
        k('global_store_dword v%d, v60, s[78:79] offset:%d' % (va, 4 * i))
    k('s_mov_b64 exec, -1')
MB = RED + 24576
def k_chain(worker=None):
    k = Kern('chain_kernel', grid=256, lds=MB + 14336, vgpr=256, agpr=256, sgpr=102)
    Lend, LO = k.newlab('end'), k.newlab('O')
    Lw = k.newlab('wk')
    k('s_and_b32 s3, s2, 7'); k('s_cmp_lg_u32 s3, 0'); k('s_cbranch_scc1 %s' % (Lw if worker else Lend))
    Lpf = k.newlab('pf')
    k('s_cmp_eq_u32 s2, 240'); k('s_cbranch_scc1 %s' % Lpf)
    k('s_cmp_ge_u32 s2, 240'); k('s_cbranch_scc1 %s' % Lend)
    k('s_lshr_b32 s3, s2, 3')
    k.ldarg(4, 'ws'); k.ldarg(6, 'dbg')
    k('v_and_b32 v1, 63, v0')
    k('v_lshrrev_b32 v2, 6, v0')
    k('s_nop 0')
    k('v_readfirstlane_b32 s10, v2')
    k('v_and_b32 v2, 15, v1')
    k('v_lshrrev_b32 v3, 4, v1')
    k('s_mov_b32 s%d, 0' % S_TO)
    k('s_getreg_b32 s20, hwreg(HW_REG_XCC_ID)')
    k('s_and_b32 s20, s20, 0xff'); k('s_add_u32 s20, s20, 1')
    k('s_waitcnt lgkmcnt(0)')
    k('v_mov_b32 v5, s20'); k('s_lshl_b32 s21, s3, 2'); k('v_mov_b32 v6, s21')
    k('s_mov_b64 exec, 1')
    k('global_store_dword v6, v5, s[6:7] sc1')
    k('s_mov_b64 exec, -1')
    k('v_min_u32 v6, 29, v1'); k('v_lshlrev_b32 v6, 2, v6')
    Lx = k.newlab('xp')
    k.lab(Lx)
    k('global_load_dword v5, v6, s[6:7] sc1')
    k('s_add_u32 s%d, s%d, 1' % (S_TO, S_TO))
    k('s_cmp_gt_u32 s%d, %d' % (S_TO, TO_LIMIT)); k('s_cbranch_scc1 %s' % Lend)
    k('s_waitcnt vmcnt(0)')
    k('v_cmp_eq_u32 vcc, 0, v5'); k('s_nop 1'); k('s_cbranch_vccnz %s' % Lx)
    k('v_cmp_ne_u32 vcc, s20, v5'); k('s_nop 1')
    k('s_cmp_eq_u64 vcc, 0'); k('s_cselect_b32 s%d, 1, 0' % S_FAST)
    k('v_lshlrev_b32 v9, 4, v1')
    k('s_lshl_b32 s21, s10, 10'); k('v_add_u32 v5, s21, v9')
    k('s_add_u32 s22, s10, 4'); k('s_min_u32 s22, s22, 6'); k('s_lshl_b32 s22, s22, 10'); k('v_add_u32 v6, s22, v9')
    k('v_lshrrev_b32 v7, 5, v1'); k('v_lshlrev_b32 v7, 10, v7')
    k('v_bfe_u32 v8, v1, 3, 2'); k('v_lshl_add_u32 v7, v8, 8, v7')
    k('v_and_b32 v8, 7, v1'); k('v_lshl_add_u32 v7, v8, 4, v7'); k('v_add_u32 v7, %d, v7' % MB)
    k('s_lshl_b32 s21, s21, 1'); k('v_add_u32 v8, s21, v7')
    k('s_lshl_b32 s22, s22, 1'); k('v_add_u32 v4, s22, v7')
    k('v_add_u32 v18, %d, v9' % MB)
    k('v_cmp_gt_u32 s[40:41], 32, v1')
    k('v_cmp_gt_u32 s[42:43], 8, v2')
    k('s_and_b64 s[48:49], s[40:41], s[42:43]')
    for r in range(64, 68): k('v_mov_b32 v%d, 0' % r)
    k('v_lshlrev_b32 v19, 4, v0'); k('v_add_u32 v19, %d, v19' % MB)
    for j in range(4):
        if j == 3:
            k('v_cmp_gt_u32 vcc, 128, v0'); k('s_and_saveexec_b64 s[22:23], vcc')
        k('ds_write_b128 v19, v[64:67] offset:%d' % (j * 4096))
    k('s_mov_b64 exec, -1')
    k('s_waitcnt lgkmcnt(0)'); k('s_barrier')
    MF = 64
    Q = 112
    def qloads():
        k('global_load_dwordx4 %s, v5, s[30:31] sc1' % vr(Q, 4))
        k('global_load_dwordx4 %s, v6, s[30:31] sc1' % vr(Q + 4, 4))
    def gather_mem():
        poll(k, qloads, range(Q, Q + 8), 60, Lend)
        k('ds_write_b128 v8, %s' % vr(Q, 4)); k('ds_write_b128 v4, %s' % vr(Q + 4, 4))
        k('s_waitcnt lgkmcnt(0)'); k('s_barrier')
    def mread(kk): k('ds_read_b128 %s, v18 offset:%d' % (vr(MF + 4 * kk, 4), kk * 1024))
    k('s_cmp_ge_u32 s3, 16'); k('s_cbranch_scc1 %s' % LO)
    ACC = 32
    def mfrag(f): return ar(4 * f, 4) if f < 64 else vr(120 + 4 * (f - 64), 4)
    k('s_mul_i32 s21, s3, %d' % (448 * 448 * 2)); k('s_add_u32 s21, s21, 0x%x' % WS['MT'])
    k('s_add_u32 s22, s4, s21'); k('s_addc_u32 s23, s5, 0')
    k('s_mul_i32 s24, s10, 112')
    k('v_add_u32 v10, s24, v2'); k('v_mul_u32_u24 v10, 896, v10'); k('v_lshl_add_u32 v10, v3, 4, v10')
    for tt in range(7):
        for kk in range(14):
            k('global_load_dwordx4 %s, v10, s[22:23] offset:%d' % (mfrag(tt * 14 + kk), kk * 64))
        if tt < 6: k('v_add_u32 v10, 14336, v10')
        k('s_waitcnt vmcnt(14)')
    k('s_mul_i32 s24, s10, %d' % (7 * 512))
    k('v_lshlrev_b32 v11, 3, v1'); k('v_add_u32 v11, s24, v11')
    k('v_add_u32 v12, %d, v11' % (28 * 512))
    k('v_lshrrev_b32 v13, 1, v3'); k('v_lshl_add_u32 v13, v13, 4, v2'); k('v_lshlrev_b32 v13, 4, v13')
    k('v_and_b32 v14, 1, v3'); k('v_lshl_add_u32 v13, v14, 3, v13'); k('v_add_u32 v13, s24, v13'); k('v_add_u32 v13, %d, v13' % MB)
    k('s_mul_i32 s24, s10, 3072'); k('s_add_u32 s24, s24, %d' % RED)
    k('v_add_u32 v14, s24, v9'); k('v_add_u32 v15, %d, v9' % RED)
    k.addoff(30, 4, WS['MEMF']); k.addoff(32, 4, WS['HP'])
    k.addoff(34, 4, WS['P'])
    k('v_lshlrev_b32 v16, 4, v2'); k('v_lshl_add_u32 v16, v3, 7, v16')
    k('s_lshr_b32 s24, s3, 1'); k('s_lshl_b32 s24, s24, 8'); k('s_and_b32 s25, s3, 1'); k('s_lshl_b32 s25, s25, 3')
    k('s_add_u32 s24, s24, s25'); k('s_add_u32 s24, s24, 8192'); k('v_add_u32 v19, s24, v16')
    k('s_lshl_b32 s24, s3, 9'); k('v_add_u32 v16, s24, v16')
    k('v_mov_b32 v61, 0xf149f2ca')
    k('v_mov_b32 v62, 0x%08x' % LOG2E)
    k('s_mov_b32 s36, 0')
    k('s_mov_b32 s37, 0')
    k('s_waitcnt vmcnt(0)')
    LS, LSn = k.newlab('S'), k.newlab('Sn')
    k.lab(LS)
    stamp(k, 0)
    gather_mem()
    stamp(k, 1)
    HN = {1: 0, 2: 4, 0: 8}
    def hload(n):
        jt = (1, 2, 0)[n // 4]; q = n % 4
        t0, t1 = 2 * q, min(2 * q + 1, 6)
        if jt == 0:
            k('ds_read_b64 %s, v13 offset:%d' % (vr(MF + 4 * n, 2), t0 * 512))
            k('ds_read_b64 %s, v13 offset:%d' % (vr(MF + 4 * n + 2, 2), t1 * 512))
        else:
            va = 11 if jt == 1 else 12
            k('global_load_dwordx2 %s, v%d, s[32:33] offset:%d' % (vr(MF + 4 * n, 2), va, t0 * 512))
            k('global_load_dwordx2 %s, v%d, s[32:33] offset:%d' % (vr(MF + 4 * n + 2, 2), va, t1 * 512))
    for kk in range(14): mread(kk)
    def bm(tt, kk):
        c = '0' if kk == 0 else vr(ACC + 4 * tt, 4)
        k('v_mfma_f32_16x16x32_bf16 %s, %s, %s, %s' % (vr(ACC + 4 * tt, 4), mfrag(tt * 14 + kk), vr(MF + 4 * kk, 4), c))
    for kk in range(12):
        if kk < 8: k('s_waitcnt lgkmcnt(%d)' % min(13 - kk, 15))
        elif kk == 8: k('s_waitcnt lgkmcnt(0)')
        for tt in range(7): bm(tt, kk)
        hload(kk)
    k('v_add_u32 v17, s37, v14')
    SA = [20, 24, 28]
    def fin(q):
        ts_ = [2 * q, 2 * q + 1] if q < 3 else [6]
        for kk in (12, 13):
            for tt in ts_: bm(tt, kk)
    def cvt(q):
        a = ACC + 8 * q
        k('v_cvt_pk_bf16_f32 v%d, v%d, v%d' % (a, a, a + 1))
        k('v_cvt_pk_bf16_f32 v%d, v%d, v%d' % (a + 1, a + 2, a + 3))
        if q < 3:
            k('v_cvt_pk_bf16_f32 v%d, v%d, v%d' % (a + 2, a + 4, a + 5))
            k('v_cvt_pk_bf16_f32 v%d, v%d, v%d' % (a + 3, a + 6, a + 7))
        else:
            k('v_mov_b32 v%d, 0' % (a + 2)); k('v_mov_b32 v%d, 0' % (a + 3))
    def score(q):
        for jt in range(3):
            c = '0' if q == 0 else vr(SA[jt], 4)
            k('v_mfma_f32_16x16x32_bf16 %s, %s, %s, %s' % (vr(SA[jt], 4), vr(MF + 4 * (HN[jt] + q), 4), vr(ACC + 8 * q, 4), c))
    fin(0); fin(1); k.nop(5); cvt(0); fin(2)
    k('s_waitcnt vmcnt(0) lgkmcnt(0)')
    score(0); cvt(1); fin(3); score(1); k.nop(2); cvt(2); k.nop(2); score(2); k.nop(2); cvt(3); k.nop(2); score(3)
    stamp(k, 2)
    k.nop(8)
    for jt in range(3): k('ds_write_b128 v17, %s offset:%d' % (vr(SA[jt], 4), jt * 1024))
    stamp(k, 3)
    k('s_waitcnt lgkmcnt(0)'); k('s_barrier')
    stamp(k, 4)
    k('s_cmp_lg_u32 s10, 0'); k('s_cbranch_scc1 %s' % LSn)
    k('v_add_u32 v17, s37, v15')
    for w in range(1, 4):
        for jt in range(3):
            k('ds_read_b128 %s, v17 offset:%d' % (vr(MF + 12 * (w - 1) + 4 * jt, 4), w * 3072 + jt * 1024))
    for w in range(1, 4):
        k('s_waitcnt lgkmcnt(%d)' % (3 * (3 - w)))
        for jt in range(3):
            for r in (0, 2):
                k('v_pk_add_f32 %s, %s, %s' % (vr(SA[jt] + r, 2), vr(SA[jt] + r, 2), vr(MF + 12 * (w - 1) + 4 * jt + r, 2)))
    sc = [SA[jt] + r for jt in range(3) for r in range(4)]
    for r in range(4): k('v_cndmask_b32 v%d, v61, v%d, s[40:41]' % (SA[0] + r, SA[0] + r))
    T = MF + 40
    k('v_max3_f32 v%d, v%d, v%d, v%d' % (T, sc[4], sc[5], sc[6]))
    k('v_max3_f32 v%d, v%d, v%d, v%d' % (T + 1, sc[7], sc[8], sc[9]))
    k('v_max3_f32 v%d, v%d, v%d, v%d' % (T + 2, sc[10], sc[11], sc[0]))
    k('v_max3_f32 v%d, v%d, v%d, v%d' % (T + 3, sc[1], sc[2], sc[3]))
    k('v_max3_f32 v%d, v%d, v%d, v%d' % (T, T, T + 1, T + 2))
    k('v_max_f32 v%d, v%d, v%d' % (T, T, T + 3))
    xlane(k, 'v_max_f32', T, T + 1)
    k('v_mul_f32 v%d, v62, v%d' % (T, T))
    k('v_mov_b32 v%d, v%d' % (T + 1, T)); k('v_mov_b32 v63, v62')
    for jt in range(3):
        for r in (0, 2): k('v_pk_fma_f32 %s, %s, v[62:63], %s neg_lo:[0,0,1] neg_hi:[0,0,1]' % (vr(SA[jt] + r, 2), vr(SA[jt] + r, 2), vr(T, 2)))
    for r in sc: k('v_exp_f32 v%d, v%d' % (r, r))
    k('s_nop 0')
    for j in range(3): k('v_pk_add_f32 %s, %s, %s' % (vr(T + 2 * j, 2), vr(SA[j], 2), vr(SA[j] + 2, 2)))
    k('v_pk_add_f32 %s, %s, %s' % (vr(T, 2), vr(T, 2), vr(T + 2, 2)))
    k('v_pk_add_f32 %s, %s, %s' % (vr(T, 2), vr(T, 2), vr(T + 4, 2)))
    k('v_add_f32 v%d, v%d, v%d' % (T, T, T + 1))
    xlane(k, 'v_add_f32', T, T + 1)
    k('v_rcp_f32 v%d, v%d' % (T, T))
    k('s_nop 0')
    k('v_mov_b32 v%d, v%d' % (T + 1, T))
    for jt in range(3):
        for r in (0, 2): k('v_pk_mul_f32 %s, %s, %s' % (vr(SA[jt] + r, 2), vr(SA[jt] + r, 2), vr(T, 2)))
    PK = MF + 48
    k('v_cvt_pk_bf16_f32 v%d, v%d, v%d' % (PK, sc[4], sc[5])); k('v_cvt_pk_bf16_f32 v%d, v%d, v%d' % (PK + 1, sc[6], sc[7]))
    k('v_cvt_pk_bf16_f32 v%d, v%d, v%d' % (PK + 2, sc[8], sc[9])); k('v_cvt_pk_bf16_f32 v%d, v%d, v%d' % (PK + 3, sc[10], sc[11]))
    k('v_cvt_pk_bf16_f32 v%d, v%d, v%d' % (PK + 4, sc[0], sc[1])); k('v_cvt_pk_bf16_f32 v%d, v%d, v%d' % (PK + 5, sc[2], sc[3]))
    Lf, Le = k.newlab('pf'), k.newlab('pe')
    k('s_cmp_eq_u32 s%d, 1' % S_FAST); k('s_cbranch_scc1 %s' % Lf)
    k('s_mov_b64 exec, s[42:43]')
    k('global_store_dwordx4 v16, %s, s[34:35] sc1' % vr(PK, 4))
    k('s_mov_b64 exec, s[48:49]')
    k('global_store_dwordx2 v19, %s, s[34:35] sc1' % vr(PK + 4, 2))
    k('s_branch %s' % Le)
    k.lab(Lf)
    k('s_mov_b64 exec, s[42:43]')
    k('global_store_dwordx4 v16, %s, s[34:35]' % vr(PK, 4))
    k('s_mov_b64 exec, s[48:49]')
    k('global_store_dwordx2 v19, %s, s[34:35]' % vr(PK + 4, 2))
    k.lab(Le)
    k('s_mov_b64 exec, -1')
    k('s_nop 1')
    k.lab(LSn)
    stamp(k, 5)
    stamp_flush(k, 6, 31)
    k('s_add_u32 s30, s30, %d' % MEM_STRIDE); k('s_addc_u32 s31, s31, 0')
    k('s_add_u32 s32, s32, %d' % (2 * 28 * 512)); k('s_addc_u32 s33, s33, 0')
    k('s_add_u32 s34, s34, %d' % P_STEP); k('s_addc_u32 s35, s35, 0')
    k('s_xor_b32 s37, s37, 12288')
    k('s_add_u32 s36, s36, 1'); k('s_cmp_lt_u32 s36, 63'); k('s_cbranch_scc1 %s' % LS)
    k('s_branch %s' % Lend)
    k.lab(LO)
    k('s_sub_u32 s3, s3, 16')
    def nfrag(f): return ar(4 * f, 4) if f < 64 else vr(176 + 4 * (f - 64), 4)
    UTF = 120
    VM = 152
    VA = 168
    OA = 32
    LT = 40
    UO = 20
    k.addoff(22, 4, WS['NT'])
    k('s_mul_i32 s24, s10, %d' % (4 * 448)); k('s_lshl_b32 s25, s3, 5'); k('s_add_u32 s24, s24, s25')
    k('v_add_u32 v10, s24, v2')
    k('v_mul_u32_u24 v11, 896, v10'); k('v_lshl_add_u32 v11, v3, 4, v11')
    k('s_mul_i32 s26, s10, 28672'); k('v_add_u32 v12, s26, v9')
    for u in range(4):
        for dt in range(2):
            k('v_add_u32 v13, %d, v11' % ((u * 448 + dt * 16) * 896))
            if u < 3:
                for kk in range(14):
                    k('global_load_dwordx4 %s, v13, s[22:23] offset:%d' % (nfrag((u * 2 + dt) * 14 + kk), kk * 64))
                k('s_waitcnt vmcnt(14)')
            else:
                for kk in range(14):
                    k('global_load_dwordx4 %s, v13, s[22:23] offset:%d' % (vr(MF + 4 * kk, 4), kk * 64))
                k('s_waitcnt vmcnt(0)')
                for kk in range(14):
                    k('ds_write_b128 v12, %s offset:%d' % (vr(MF + 4 * kk, 4), (dt * 14 + kk) * 1024))
                k('s_waitcnt lgkmcnt(0)')
    k('s_mul_i32 s24, s10, %d' % (4 * 28)); k('s_lshl_b32 s25, s3, 1'); k('s_add_u32 s24, s24, s25'); k('s_lshl_b32 s24, s24, 10')
    k('v_add_u32 v%d, s24, v9' % UO)
    for u in range(1, 4): k('v_add_u32 v%d, %d, v%d' % (UO + u, 28 * 1024, UO + u - 1))
    k('s_mul_i32 s24, s10, %d' % (2 * 28)); k('s_add_u32 s24, s24, s25'); k('s_lshl_b32 s24, s24, 9')
    k('v_add_u32 v%d, s24, v9' % (UO + 4)); k('v_add_u32 v%d, %d, v%d' % (UO + 5, 28 * 512, UO + 4))
    k('v_lshrrev_b32 v15, 1, v3'); k('v_lshlrev_b32 v15, 7, v15'); k('v_lshl_add_u32 v15, v2, 4, v15')
    k('v_and_b32 v14, 1, v3'); k('v_lshl_add_u32 v15, v14, 3, v15')
    k('s_lshl_b32 s25, s3, 9'); k('s_lshl_b32 s26, s10, 8'); k('s_add_u32 s25, s25, s26'); k('v_add_u32 v15, s25, v15')
    k('v_lshlrev_b32 v16, 4, v2'); k('v_lshl_add_u32 v16, v3, 7, v16')
    k('s_lshl_b32 s25, s10, 9'); k('s_add_u32 s25, s25, 8192'); k('v_add_u32 v19, s25, v16')
    k('s_lshl_b32 s25, s10, 11'); k('v_add_u32 v16, s25, v16')
    k('v_lshlrev_b32 v26, 4, v2'); k('v_lshl_add_u32 v26, v3, 7, v26'); k('v_add_u32 v63, 4096, v26')
    for r in range(56, 60): k('v_mov_b32 v%d, 0' % r)
    for r in range(28, 32): k('v_mov_b32 v%d, 0' % r)
    k('s_lshl_b32 s24, s10, 11'); k('s_add_u32 s24, s24, %d' % RED); k('v_add_u32 v17, s24, v9')
    k('s_lshl_b32 s24, s10, 10'); k('s_add_u32 s24, s24, %d' % RED); k('v_add_u32 v13, s24, v9')
    k.addoff(30, 4, WS['MEMF']); k.addoff(32, 4, WS['UF']); k.addoff(38, 4, WS['UMF']); k.addoff(46, 4, WS['MEMF'] + MEM_STRIDE); k.addoff(68, 4, WS['CNT']); k.addoff(70, 4, WS['MEMF2']); k.addoff(74, 4, WS['CNT'] + C_CM - 4)
    k.addoff(34, 4, WS['P'])
    k('s_mov_b32 s36, 0'); k('s_mov_b32 s37, 0')
    k('s_waitcnt vmcnt(0)')
    LOl, LOn, LOu = k.newlab('Ol'), k.newlab('On'), k.newlab('Ou')
    k.lab(LOl)
    stamp(k, 0)
    gather_mem()
    stamp(k, 1)
    for kk in range(14): mread(kk)
    def cmsig():
        Lns = k.newlab('ns')
        k('s_cmp_lg_u32 s10, 3'); k('s_cbranch_scc1 %s' % Lns)
        k('v_mov_b32 v60, 0'); k('v_mov_b32 v61, 1')
        k('s_mov_b64 exec, 1')
        k('global_atomic_add v60, v61, s[74:75] sc1')
        k('s_mov_b64 exec, -1')
        k.lab(Lns)
    Lz = k.newlab('z')
    k('s_cmp_eq_u32 s36, 0'); k('s_cbranch_scc1 %s' % Lz)
    cmsig()
    k.lab(Lz)
    k('s_cmp_eq_u32 s36, 63'); k('s_cbranch_scc1 %s' % LOu)
    Lnf, Lfp = k.newlab('nf'), k.newlab('fp')
    k('s_and_b32 s24, s36, 3'); k('s_cmp_lg_u32 s24, 0'); k('s_cbranch_scc1 %s' % Lnf)
    k('s_lshl_b32 s24, s36, 4'); k('v_mov_b32 v60, s24')
    k.lab(Lfp)
    k('global_load_dword v61, v60, s[68:69] sc1')
    k('s_add_u32 s%d, s%d, 1' % (S_TO, S_TO))
    k('s_cmp_gt_u32 s%d, %d' % (S_TO, TO_LIMIT)); k('s_cbranch_scc1 %s' % Lend)
    k('s_waitcnt vmcnt(0)')
    k('v_cmp_gt_u32 vcc, 56, v61'); k('s_nop 1'); k('s_cbranch_vccnz %s' % Lfp)
    k.lab(Lnf)
    for u in range(4):
        for dt in range(2):
            n = u * 2 + dt
            k('global_load_dwordx4 %s, v%d, s[32:33] offset:%d sc1' % (vr(UTF + 4 * n, 4), UO + u, dt * 1024))
    k.lab(LOu)
    def finish(n):
        u, dt = n // 2, n % 2
        a = VA + 4 * (n & 1)
        d = VM + ((u >> 1) * 2 + dt) * 4 + 2 * (u & 1)
        k('v_cvt_pk_bf16_f32 v%d, v%d, v%d' % (d, a, a + 1))
        k('v_cvt_pk_bf16_f32 v%d, v%d, v%d' % (d + 1, a + 2, a + 3))
        if u & 1:
            k('s_mov_b64 exec, s[40:41]')
            k('global_store_dwordx4 v%d, %s, s[38:39] offset:%d sc1' % (UO + 4 + (u >> 1), vr(d - 2, 4), dt * 512))
            k('s_mov_b64 exec, -1')
    for n in range(8):
        u, dt = n // 2, n % 2
        a = VA + 4 * (n & 1)
        if u == 3:
            for j in range(4): k('ds_read_b128 %s, v12 offset:%d' % (vr(LT + 4 * j, 4), (dt * 14 + j) * 1024))
        for kk in range(14):
            c = '0' if kk == 0 else vr(a, 4)
            if n == 0: k('s_waitcnt lgkmcnt(%d)' % (13 - kk))
            if u < 3:
                b = nfrag((u * 2 + dt) * 14 + kk)
            else:
                b = vr(LT + 4 * (kk % 4), 4)
                k('s_waitcnt lgkmcnt(%d)' % min(3, 13 - kk))
            k('v_mfma_f32_16x16x32_bf16 %s, %s, %s, %s' % (vr(a, 4), vr(MF + 4 * kk, 4), b, c))
            if u == 3 and kk + 4 < 14:
                k('ds_read_b128 %s, v12 offset:%d' % (vr(LT + 4 * (kk % 4), 4), (dt * 14 + kk + 4) * 1024))
            if kk == 10 and n > 0: finish(n - 1)
        if n == 0:
            Lm2 = k.newlab('m2')
            k('s_cmp_lg_u32 s10, 3'); k('s_cbranch_scc1 %s' % Lm2)
            k('s_cmp_lg_u32 s3, 0'); k('s_cbranch_scc1 %s' % Lm2)
            k('s_mov_b64 exec, s[42:43]')
            for kk in range(14):
                k('global_store_dwordx4 v%d, %s, s[70:71] offset:%d sc1' % (26 if kk < 8 else 63, vr(MF + 4 * kk, 4), (kk % 8) * 512))
            k('s_mov_b64 exec, -1')
            k.lab(Lm2)
    k.nop(10)
    finish(7)
    stamp(k, 2)
    Lgo = k.newlab('go')
    k('s_cmp_lg_u32 s36, 63'); k('s_cbranch_scc1 %s' % Lgo)
    k('s_waitcnt vmcnt(0)'); k('s_barrier')
    k('s_add_u32 s74, s74, 4'); k('s_addc_u32 s75, s75, 0')
    cmsig()
    k('s_add_u32 s91, s3, 224')
    k.ts(0)
    k('s_branch %s' % Lend)
    k.lab(Lgo)
    PX = MF
    PMS = (56, 28)
    k('v_add_u32 v14, s37, v17')
    k('v_add_u32 v27, s37, v13')
    Lp = k.newlab('pp')
    k.lab(Lp)
    k('s_mov_b64 exec, s[42:43]')
    for u in range(4):
        k('global_load_dwordx4 %s, v16, s[34:35] offset:%d sc1' % (vr(PX + 4 * u, 4), u * 512))
    k('s_mov_b64 exec, s[48:49]')
    for pr in range(2):
        k('global_load_dwordx4 %s, v19, s[34:35] offset:%d sc1' % (vr(PMS[pr], 4), pr * 256))
    k('s_add_u32 s%d, s%d, 1' % (S_TO, S_TO))
    k('s_cmp_gt_u32 s%d, %d' % (S_TO, TO_LIMIT)); k('s_cbranch_scc1 %s' % Lend)
    k('s_waitcnt vmcnt(0)')
    maxchain(k, list(range(56, 60)) + list(range(28, 32)), 61)
    k('v_cmp_eq_u32 s[66:67], -1, v61')
    k('s_mov_b64 exec, s[42:43]')
    maxchain(k, range(PX, PX + 16), 60)
    k('v_cmp_eq_u32 vcc, -1, v60')
    k('s_mov_b64 exec, -1')
    k('s_or_b64 vcc, vcc, s[66:67]')
    k('s_cbranch_vccnz %s' % Lp)
    stamp(k, 3)
    for u in range(4):
        for dt in range(2):
            c = '0' if u == 0 else vr(OA + 4 * dt, 4)
            k('v_mfma_f32_16x16x32_bf16 %s, %s, %s, %s' % (vr(OA + 4 * dt, 4), vr(UTF + 4 * (u * 2 + dt), 4), vr(PX + 4 * u, 4), c))
    for pr in range(2):
        for dt in range(2):
            k('v_mfma_f32_16x16x32_bf16 %s, %s, %s, %s' % (vr(OA + 4 * dt, 4), vr(VM + (pr * 2 + dt) * 4, 4), vr(PMS[pr], 4), vr(OA + 4 * dt, 4)))
    k.nop(8)
    k('ds_write_b128 v14, %s' % vr(OA, 4)); k('ds_write_b128 v14, %s offset:1024' % vr(OA + 4, 4))
    k('s_waitcnt lgkmcnt(0)'); k('s_barrier')
    stamp(k, 4)
    k('s_cmp_ge_u32 s10, 2'); k('s_cbranch_scc1 %s' % LOn)
    for w in range(4): k('ds_read_b128 %s, v27 offset:%d' % (vr(LT + 4 * w, 4), w * 2048))
    k('s_waitcnt lgkmcnt(2)')
    for r in (0, 2): k('v_pk_add_f32 %s, %s, %s' % (vr(LT + r, 2), vr(LT + r, 2), vr(LT + 4 + r, 2)))
    k('s_waitcnt lgkmcnt(0)')
    for r in (0, 2): k('v_pk_add_f32 %s, %s, %s' % (vr(LT + 8 + r, 2), vr(LT + 8 + r, 2), vr(LT + 12 + r, 2)))
    for r in (0, 2): k('v_pk_add_f32 %s, %s, %s' % (vr(LT + r, 2), vr(LT + r, 2), vr(LT + 8 + r, 2)))
    k('v_cvt_pk_bf16_f32 v%d, v%d, v%d' % (LT + 4, LT, LT + 1)); k('v_cvt_pk_bf16_f32 v%d, v%d, v%d' % (LT + 5, LT + 2, LT + 3))
    k('s_mov_b64 exec, s[42:43]')
    pub_store(k, 'global_store_dwordx2 v15, %s, s[46:47]' % vr(LT + 4, 2))
    k('s_mov_b64 exec, -1')
    k.lab(LOn)
    stamp(k, 5)
    stamp_flush(k, 6, 62)
    k('s_add_u32 s30, s30, %d' % MEM_STRIDE); k('s_addc_u32 s31, s31, 0')
    k('s_add_u32 s46, s46, %d' % MEM_STRIDE); k('s_addc_u32 s47, s47, 0')
    k('s_add_u32 s70, s70, %d' % MEM_STRIDE); k('s_addc_u32 s71, s71, 0')
    k('s_add_u32 s74, s74, 4'); k('s_addc_u32 s75, s75, 0')
    k('s_add_u32 s32, s32, %d' % (16 * 28 * 1024)); k('s_addc_u32 s33, s33, 0')
    k('s_add_u32 s34, s34, %d' % P_STEP); k('s_addc_u32 s35, s35, 0')
    k('s_add_u32 s38, s38, %d' % UM_STEP); k('s_addc_u32 s39, s39, 0')
    k('s_xor_b32 s37, s37, 8192')
    k('s_add_u32 s36, s36, 1'); k('s_branch %s' % LOl)
    k.lab(Lpf)
    k.ldarg(4, 'ws')
    k('v_lshrrev_b32 v2, 6, v0'); k('s_nop 0'); k('v_readfirstlane_b32 s10, v2')
    k('s_mov_b32 s92, 0'); k('s_mov_b32 s36, 0')
    k('s_waitcnt lgkmcnt(0)')
    k.addoff(66, 4, WS['UF']); k.addoff(68, 4, WS['HP']); k.addoff(30, 4, WS['MEMF'])
    Lpl, Lnw, Lnp, Lpp = k.newlab('pl'), k.newlab('nw'), k.newlab('npc'), k.newlab('pp')
    k.lab(Lpl)
    k('s_and_b32 s24, s36, 3'); k('s_cmp_lg_u32 s24, 0'); k('s_cbranch_scc1 %s' % Lnw)
    k('s_lshl_b32 s62, s36, 4')
    k.wait_cnt(4, 62, C_UF, 56, Lend, vt=(10, 11), swave=10)
    k.lab(Lnw)
    k('s_mul_i32 s64, s36, %d' % (16 * 28 * 1024))
    k.touch(66, 64, 16 * 28 * 1024, 10, vt=(10, 11))
    k('s_mul_i32 s64, s36, %d' % (2 * 28 * 512))
    k.touch(68, 64, 2 * 28 * 512, 10, vt=(10, 11))
    k('s_cmp_lt_u32 s36, 2'); k('s_cbranch_scc1 %s' % Lnp)
    k('s_sub_u32 s24, s36, 1'); k('s_lshl_b32 s24, s24, 13'); k('v_mov_b32 v10, s24')
    k.lab(Lpp)
    k('global_load_dword v11, v10, s[30:31] sc1')
    k('s_add_u32 s92, s92, 1'); k('s_cmp_gt_u32 s92, %d' % (1 << 18)); k('s_cbranch_scc1 %s' % Lend)
    k('s_waitcnt vmcnt(0)')
    k('v_cmp_eq_u32 vcc, -1, v11'); k('s_nop 1')
    k('s_cbranch_vccz %s' % Lnp)
    k('s_sleep 8'); k('s_branch %s' % Lpp)
    k.lab(Lnp)
    k('s_add_u32 s36, s36, 1'); k('s_cmp_lt_u32 s36, 63'); k('s_cbranch_scc1 %s' % Lpl)
    k('s_branch %s' % Lend)
    if worker:
        k.lab(Lw)
        k('s_cmp_ge_u32 s2, 256'); k('s_cbranch_scc1 %s' % Lend)
        k('s_lshr_b32 s3, s2, 3'); k('s_sub_u32 s90, s2, s3'); k('s_sub_u32 s90, s90, 1')
        k('s_mov_b32 s91, s90'); k('s_mov_b32 s92, 0')
        for wk, w0, nw in worker:
            Lwl, Lsk = k.newlab('wl'), k.newlab('sk')
            if wk.name.startswith('f2'):
                k('s_cmp_ge_u32 s91, 112'); k('s_cbranch_scc1 %s' % Lsk)
                k.sdiv(90, 91, 7, 223)
                k('s_mul_i32 s87, s90, 7'); k('s_sub_u32 s87, s91, s87')
                k.lab(Lwl)
                k.sdiv(86, 90, 7, 63)
                k('s_mul_i32 s85, s86, 7'); k('s_sub_u32 s84, s90, s85')
                k('s_add_u32 s85, s85, s87')
                k('s_cmp_ge_u32 s85, 32'); k('s_cbranch_scc1 %s' % Lsk)
                k('s_mul_i32 s2, s85, 7'); k('s_add_u32 s2, s2, s84')
                k.L += wk.L
                k('s_barrier')
                k('s_add_u32 s90, s90, 16'); k('s_branch %s' % Lwl)
                k.lab(Lsk)
                continue
            k('s_sub_u32 s90, s91, %d' % w0)
            k('s_cmp_ge_u32 s90, %d' % nw); k('s_cbranch_scc1 %s' % Lsk)
            k.lab(Lwl)
            k('s_mov_b32 s2, s90')
            k.L += wk.L
            k('s_barrier')
            k('s_add_u32 s90, s90, %d' % nw)
            k('s_cmp_lt_u32 s90, %d' % wk.grid); k('s_cbranch_scc1 %s' % Lwl)
            k.lab(Lsk)
    k.lab(Lend)
    return k
```

```python
from fw import *
from k_prep import rnd_bf16

def setbase(k, sdst, spec, sws, sbatch):
    kind, key, bstride = spec
    if kind == 'ws':
        k.addoff(sdst, sws, key)
    if bstride:
        k('s_mul_i32 s40, s%d, %d' % (sbatch, bstride))
        k('s_add_u32 s%d, s%d, s40' % (sdst, sdst)); k('s_addc_u32 s%d, s%d, 0' % (sdst + 1, sdst + 1))

def k_gemm(name, A, lda, B, ldb, C, ldc, K, MT, NT, WM, WN, tiles_m, tiles_n, batch=1, epi='plain', scale=None, D=2, nmajor=False, signal=False, wait=None, sig=None, KC=64, sigsh=0, transA=False, FD=2):
    TM, TN = 32 * MT * WM, 32 * NT * WN
    RS = KC * 2 + 16; SPR = KC // 8; RPP = 256 // SPR; LSP = SPR.bit_length() - 1; NKS = KC // 16
    PA, PB = TM * SPR // 256, TN * SPR // 256
    BS = (TM + TN) * RS
    NC = K // KC
    tot = tiles_m * tiles_n * batch
    vAo = 8; vBo = vAo + PA
    vst = (vBo + PB + 12 + 3) // 4 * 4
    vmisc = vBo + PB
    v_lwa, v_lwb, v_fa, v_fb, v_lwa_c, v_lwb_c, v_fa_c, v_fb_c = range(vmisc, vmisc + 8)
    vfr = vst + (PA + PB) * 4 * D
    nfr = (MT + NT) * 4
    vend = vfr + FD * nfr
    vtmp = vst
    nv = max(vend + 8, vtmp + 64)
    k = Kern(name, grid=tot, lds=2 * BS, vgpr=nv, agpr=MT * NT * 16, sgpr=64)
    Lend, Lloop, Lnold, Lnow = k.newlab('end'), k.newlab('loop'), k.newlab('nold'), k.newlab('now')
    k('s_cmp_ge_u32 s2, %d' % tot); k('s_cbranch_scc1 %s' % Lend)
    k.ldarg(4, 'ws')
    if A[0] == 'arg': k.ldarg(6, A[1])
    if B[0] == 'arg': k.ldarg(8, B[1])
    if C[0] == 'arg': k.ldarg(10, C[1])
    if epi == 'ffn1': k.ldarg(12, 'b1')
    if epi == 'ffn2': k.ldarg(12, 'b2')
    if batch > 1:
        k('s_lshr_b32 s43, s2, 3'); k('s_and_b32 s44, s2, 7')
        k.sdiv(20, 43, tiles_m * tiles_n, tot // 8 - 1)
        k('s_mul_i32 s21, s20, %d' % (tiles_m * tiles_n)); k('s_sub_u32 s21, s43, s21')
        k('s_mul_i32 s44, s44, %d' % (batch // 8)); k('s_add_u32 s20, s20, s44')
    else:
        k('s_mov_b32 s20, 0'); k('s_mov_b32 s21, s2')
    if nmajor:
        k.sdiv(23, 21, tiles_m, tiles_m * tiles_n - 1)
        k('s_mul_i32 s22, s23, %d' % tiles_m); k('s_sub_u32 s22, s21, s22')
    else:
        k.sdiv(22, 21, tiles_n, tiles_m * tiles_n - 1)
        k('s_mul_i32 s23, s22, %d' % tiles_n); k('s_sub_u32 s23, s21, s23')
    k('v_and_b32 v1, 63, v0')
    k('v_lshrrev_b32 v2, 6, v0')
    k('s_nop 0')
    k('v_readfirstlane_b32 s24, v2')
    k('s_waitcnt lgkmcnt(0)')
    setbase(k, 6, A, 4, 20); setbase(k, 8, B, 4, 20); setbase(k, 10, C, 4, 20)
    if wait is not None:
        base, sh, target = wait
        k('s_mul_i32 s42, s23, %d' % (TN * ldb))
        k.touch(8, 42, TN * ldb, 24)
        k('s_lshr_b32 s41, s22, %d' % sh); k('s_lshl_b32 s41, s41, 6')
        tb = 8 if epi == 'ffn1' else 16
        k.wait_cnt(4, 41, base, target, Lend, swave=24, acq=True)
        k.ts(tb)
        k.ts(tb + 1)
        k('s_mul_i32 s42, s22, %d' % (TM * lda))
        if epi == 'ffn2':
            sl = TM * lda // tiles_n
            k('s_mul_i32 s43, s23, %d' % sl); k('s_add_u32 s42, s42, s43')
            k.touch(6, 42, sl, 24)
        else:
            k.touch(6, 42, TM * lda, 24)
    if WN == 1: k('s_mov_b32 s25, s24'); k('s_mov_b32 s26, 0')
    elif WM == 1: k('s_mov_b32 s25, 0'); k('s_mov_b32 s26, s24')
    else: k('s_lshr_b32 s25, s24, 1'); k('s_and_b32 s26, s24, 1')
    k('v_lshrrev_b32 v2, %d, v0' % LSP)
    k('v_and_b32 v3, %d, v0' % (SPR - 1))
    k('v_lshlrev_b32 v3, 4, v3')
    k('s_mul_i32 s27, s22, %d' % TM)
    k('s_mul_i32 s28, s23, %d' % TN)
    k('s_mov_b32 s29, %d' % lda); k('s_mov_b32 s30, %d' % ldb)
    if transA:
        assert MT == 1 and TM == 64 and KC == 64
        k('v_mul_lo_u32 v4, v2, s29'); k('s_lshl_b32 s31, s27, 1'); k('v_add3_u32 v%d, v4, v3, s31' % vAo)
    else:
        k('v_add_u32 v4, s27, v2'); k('v_mul_lo_u32 v4, v4, s29'); k('v_add_u32 v%d, v4, v3' % vAo)
    for i in range(1, PA): k('v_add_u32 v%d, %d, v%d' % (vAo + i, RPP * lda, vAo + i - 1))
    k('v_add_u32 v4, s28, v2'); k('v_mul_lo_u32 v4, v4, s30'); k('v_add_u32 v%d, v4, v3' % vBo)
    for i in range(1, PB): k('v_add_u32 v%d, %d, v%d' % (vBo + i, RPP * ldb, vBo + i - 1))
    k('v_mul_u32_u24 v4, %d, v2' % RS); k('v_add_u32 v%d, v4, v3' % v_lwa)
    k('v_add_u32 v%d, %d, v%d' % (v_lwb, TM * RS, v_lwa))
    k('v_and_b32 v4, 31, v1'); k('v_lshrrev_b32 v5, 5, v1'); k('v_lshlrev_b32 v5, 4, v5')
    if transA:
        k('s_mul_i32 s31, s25, 32'); k('v_add_u32 v6, s31, v4'); k('v_lshlrev_b32 v6, 1, v6')
        k('v_lshrrev_b32 v7, 5, v1'); k('v_mul_u32_u24 v7, %d, v7' % (8 * RS)); k('v_add_u32 v%d, v6, v7' % v_fa)
    else:
        k('s_mul_i32 s31, s25, %d' % (32 * MT)); k('v_add_u32 v6, s31, v4'); k('v_mul_u32_u24 v6, %d, v6' % RS); k('v_add_u32 v%d, v6, v5' % v_fa)
    k('s_mul_i32 s31, s26, %d' % (32 * NT)); k('v_add_u32 v6, s31, v4'); k('v_mul_u32_u24 v6, %d, v6' % RS); k('v_add_u32 v6, v6, v5')
    k('v_add_u32 v%d, %d, v6' % (v_fb, TM * RS))
    for i in range(MT * NT * 16): k('v_accvgpr_write_b32 a%d, 0' % i)
    P = PA + PB
    def loads(c):
        st = vst + (c % D) * P * 4
        for i in range(PA): k('global_load_dwordx4 %s, v%d, s[6:7]' % (vr(st + 4 * i, 4), vAo + i))
        for i in range(PB): k('global_load_dwordx4 %s, v%d, s[8:9]' % (vr(st + 4 * (PA + i), 4), vBo + i))
        k('s_add_u32 s6, s6, %d' % (KC * lda if transA else KC * 2)); k('s_addc_u32 s7, s7, 0')
        k('s_add_u32 s8, s8, %d' % (KC * 2)); k('s_addc_u32 s9, s9, 0')
    def writes(c):
        st = vst + (c % D) * P * 4
        va, vb = (v_lwa, v_lwb) if c % 2 == 0 else (v_lwa_c, v_lwb_c)
        for i in range(PA): k('ds_write_b128 v%d, %s offset:%d' % (va, vr(st + 4 * i, 4), i * RPP * RS))
        for i in range(PB): k('ds_write_b128 v%d, %s offset:%d' % (vb, vr(st + 4 * (PA + i), 4), i * RPP * RS))
    k('v_add_u32 v%d, %d, v%d' % (v_fa_c, BS, v_fa)); k('v_add_u32 v%d, %d, v%d' % (v_fb_c, BS, v_fb))
    k('v_add_u32 v%d, %d, v%d' % (v_lwa_c, BS, v_lwa)); k('v_add_u32 v%d, %d, v%d' % (v_lwb_c, BS, v_lwb))
    for c in range(min(D, NC)): loads(c)
    k('s_waitcnt vmcnt(%d)' % ((min(D, NC) - 1) * P))
    writes(0)
    k('s_waitcnt lgkmcnt(0)'); k('s_barrier')
    for c in range(NC):
        if c + D < NC: loads(c + D)
        fa, fb = (v_fa, v_fb) if c % 2 == 0 else (v_fa_c, v_fb_c)
        def rd(ks):
            base = vfr + (ks % FD) * nfr
            for mt in range(MT): k('ds_read_b128 %s, v%d offset:%d' % (vr(base + 4 * mt, 4), fa, mt * 32 * RS + ks * 32))
            for nt in range(NT): k('ds_read_b128 %s, v%d offset:%d' % (vr(base + 4 * (MT + nt), 4), fb, nt * 32 * RS + ks * 32))
        if transA:
            for ks in range(NKS):
                base = vfr
                for j in range(8): k('ds_read_u16 v%d, v%d offset:%d' % (vend + j, fa, (16 * ks + j) * RS))
                for nt in range(NT): k('ds_read_b128 %s, v%d offset:%d' % (vr(base + 4 * (MT + nt), 4), fb, nt * 32 * RS + ks * 32))
                k('s_waitcnt lgkmcnt(0)')
                for j in range(4): k('v_lshl_or_b32 v%d, v%d, 16, v%d' % (base + j, vend + 2 * j + 1, vend + 2 * j))
                k('s_nop 1')
                for nt in range(NT):
                    k('v_mfma_f32_32x32x16_bf16 %s, %s, %s, %s' % (ar(nt * 16, 16), vr(base + 4 * (MT + nt), 4), vr(base, 4), ar(nt * 16, 16)))
        else:
            for j in range(FD - 1): rd(j)
        for ks in range(0 if transA else NKS):
            if ks + FD - 1 < NKS: rd(ks + FD - 1)
            k('s_waitcnt lgkmcnt(%d)' % ((min(NKS - 1, ks + FD - 1) - ks) * (MT + NT)))
            base = vfr + (ks % FD) * nfr
            for mt in range(MT):
                for nt in range(NT):
                    a = (mt * NT + nt) * 16
                    k('v_mfma_f32_32x32x16_bf16 %s, %s, %s, %s' % (ar(a, 16), vr(base + 4 * (MT + nt), 4), vr(base + 4 * mt, 4), ar(a, 16)))
        if c + 1 < NC:
            inflight = min(NC - 1, c + D) - (c + 1)
            k('s_waitcnt vmcnt(%d)' % (inflight * P))
            writes(c + 1)
            k('s_waitcnt lgkmcnt(0)'); k('s_barrier')
    k.nop(16)
    if wait is not None: k.ts(tb + 2)
    k('v_and_b32 v4, 31, v1'); k('v_lshrrev_b32 v5, 5, v1')
    k('s_mul_i32 s31, s25, %d' % (32 * MT)); k('s_add_u32 s31, s31, s27')
    k('v_add_u32 v4, s31, v4')
    k('s_mul_i32 s36, s26, %d' % (32 * NT)); k('s_add_u32 s36, s36, s28')
    k('v_lshlrev_b32 v5, 2, v5'); k('v_add_u32 v5, s36, v5')
    k('s_mov_b32 s37, %d' % ldc)
    k('v_mul_lo_u32 v6, v4, s37')
    k('v_lshl_add_u32 v6, v5, 1, v6')
    if epi == 'bxf':
        k('v_lshrrev_b32 v6, 4, v4'); k('v_mul_u32_u24 v6, 224, v6')
        k('s_lshr_b32 s38, s36, 5'); k('v_add_u32 v6, s38, v6')
        k('v_lshlrev_b32 v6, 6, v6'); k('v_and_b32 v7, 15, v4'); k('v_add_u32 v6, v6, v7')
        k('v_lshlrev_b32 v6, 4, v6'); k('v_lshrrev_b32 v7, 5, v1'); k('v_lshl_add_u32 v6, v7, 3, v6')
    if epi == 'uf':
        k('s_lshr_b32 s38, s36, 5'); k('s_mul_i32 s38, s38, 448')
        k('v_lshrrev_b32 v6, 4, v4'); k('v_add_u32 v6, s38, v6')
        k('v_lshlrev_b32 v6, 6, v6'); k('v_and_b32 v7, 15, v4'); k('v_add_u32 v6, v6, v7')
        k('v_lshrrev_b32 v7, 5, v1'); k('v_lshl_add_u32 v6, v7, 4, v6')
        k('v_lshlrev_b32 v6, 4, v6')
    if epi in ('ffn1', 'ffn2'):
        k('v_lshlrev_b32 v7, 1, v5')
    if epi == 'ffn2':
        k.addoff(14, 4, WS['MOD'] + 5 * 448 * 4)
        k.addoff(16, 4, WS['X1'])
        k('v_lshlrev_b32 v2, 2, v5')
    tset = 0
    for mt in range(MT):
        for nt in range(NT):
            for q in range(4):
                t = vtmp + (tset % 4) * 16; tset += 1
                a = (mt * NT + nt) * 16 + 4 * q
                noff = 32 * nt + 8 * q
                if epi in ('ffn1', 'ffn2'):
                    k('global_load_dwordx2 %s, v7, s[12:13] offset:%d' % (vr(t + 4, 2), noff * 2))
                if epi == 'ffn2':
                    k('global_load_dwordx4 %s, v2, s[14:15] offset:%d' % (vr(t + 8, 4), noff * 4))
                    k('global_load_dwordx2 %s, v6, s[16:17] offset:%d' % (vr(t + 6, 2), noff * 2))
                for r in range(4): k('v_accvgpr_read_b32 v%d, a%d' % (t + r, a + r))
                if epi in ('bxf', 'uf'):
                    k('v_cvt_pk_bf16_f32 v%d, v%d, v%d' % (t + 4, t, t + 1))
                    k('v_cvt_pk_bf16_f32 v%d, v%d, v%d' % (t + 5, t + 2, t + 3))
                    if epi == 'bxf':
                        k('global_store_dwordx2 v6, %s, s[10:11] offset:%d%s' % (vr(t + 4, 2), nt * 1024 + q * 256, ' sc1' if sig is not None else ''))
                    else:
                        sfx = ' sc1' if signal else ''
                        if nt == 0:
                            k('global_store_dwordx2 v6, %s, s[10:11] offset:%d%s' % (vr(t + 4, 2), (q & 1) * 512 + (q >> 1) * 8, sfx))
                        else:
                            k('v_add_u32 v7, %d, v6' % (nt * 448 * 1024))
                            k('global_store_dwordx2 v7, %s, s[10:11] offset:%d%s' % (vr(t + 4, 2), (q & 1) * 512 + (q >> 1) * 8, sfx))
                elif epi == 'plain':
                    if scale is not None:
                        for r in range(4): k('v_mul_f32 v%d, 0x%08x, v%d' % (t + r, scale, t + r))
                    k('v_cvt_pk_bf16_f32 v%d, v%d, v%d' % (t + 4, t, t + 1))
                    k('v_cvt_pk_bf16_f32 v%d, v%d, v%d' % (t + 5, t + 2, t + 3))
                    k('global_store_dwordx2 v6, %s, s[10:11] offset:%d' % (vr(t + 4, 2), noff * 2))
                else:
                    rnd_bf16(k, (t, t + 1), t, t + 1, t + 12); rnd_bf16(k, (t + 2, t + 3), t + 2, t + 3, t + 12)
                    k('s_waitcnt vmcnt(0)')
                    for j in range(2):
                        k('v_lshlrev_b32 v%d, 16, v%d' % (t + 12, t + 4 + j)); k('v_and_b32 v%d, 0xffff0000, v%d' % (t + 13, t + 4 + j))
                        k('v_add_f32 v%d, v%d, v%d' % (t + 2 * j, t + 2 * j, t + 12)); k('v_add_f32 v%d, v%d, v%d' % (t + 2 * j + 1, t + 2 * j + 1, t + 13))
                    rnd_bf16(k, (t, t + 1), t, t + 1, t + 12); rnd_bf16(k, (t + 2, t + 3), t + 2, t + 3, t + 12)
                    if epi == 'ffn1':
                        for r in range(4):
                            z = t + r; u = t + 12
                            k('v_mul_f32 v%d, v%d, v%d' % (u, z, z))
                            k('v_mov_b32 v%d, 0x3d372713' % (u + 1))
                            k('v_fma_f32 v%d, v%d, v%d, 1.0' % (u, u, u + 1))
                            k('v_mul_f32 v%d, v%d, v%d' % (u, u, z))
                            k('v_mul_f32 v%d, 0x%08x, v%d' % (u, 0xc0135761, u))
                            k('v_exp_f32 v%d, v%d' % (u, u))
                            k('s_nop 0')
                            k('v_add_f32 v%d, 1.0, v%d' % (u, u))
                            k('v_rcp_f32 v%d, v%d' % (u, u))
                            k('s_nop 0')
                            k('v_mul_f32 v%d, v%d, v%d' % (z, z, u))
                    else:
                        for r in range(4): k('v_mul_f32 v%d, v%d, v%d' % (t + r, t + r, t + 8 + r))
                        rnd_bf16(k, (t, t + 1), t, t + 1, t + 12); rnd_bf16(k, (t + 2, t + 3), t + 2, t + 3, t + 12)
                        for j in range(2):
                            k('v_lshlrev_b32 v%d, 16, v%d' % (t + 12, t + 6 + j)); k('v_and_b32 v%d, 0xffff0000, v%d' % (t + 13, t + 6 + j))
                            k('v_add_f32 v%d, v%d, v%d' % (t + 2 * j, t + 2 * j, t + 12)); k('v_add_f32 v%d, v%d, v%d' % (t + 2 * j + 1, t + 2 * j + 1, t + 13))
                    k('v_cvt_pk_bf16_f32 v%d, v%d, v%d' % (t + 14, t, t + 1))
                    k('v_cvt_pk_bf16_f32 v%d, v%d, v%d' % (t + 15, t + 2, t + 3))
                    k('global_store_dwordx2 v6, %s, s[10:11] offset:%d%s' % (vr(t + 14, 2), noff * 2, ' sc1' if sig is not None else ''))
        if mt < MT - 1:
            k('v_add_u32 v6, %d, v6' % ({'bxf': 2 * 224 * 1024, 'uf': 2 * 1024}.get(epi, 32 * ldc)))
    if wait is not None:
        k('s_waitcnt vmcnt(0)'); k.ts(tb + 3)
    if signal:
        k('s_lshl_b32 s23, s23, 6')
        k.release_signal(4, 23, C_UF, wb=False)
    if sig is not None:
        k('s_lshl_b32 s22, s22, 6')
        k.release_signal(4, 22, sig, wb=False)
        if wait is not None: k.ts(tb + 4)
    k.lab(Lend)
    return k
```

```python
import sys
from fw import *
from k_prep import *
from k_gemm import *
from k_chain import *
from k_attn import *
import k_chain as KC, os
KC.STAMP = bool(os.environ.get('STAMP'))
kerns = []
p0 = k_prep0()
ln1 = k_ln('ln1_kernel', True, 0, WS['H'], 0, 1, extra=True, waitmod=True)
g1 = k_gemm('g1_kernel', ('arg','Wk',512), 8192, ('arg','Wq',512), 8192, ('ws',WS['MT'],448*448*2), 896, 256, 1,1,2,2, 7,7, batch=16, scale=0x3d800000, D=4, FD=4, fr=WS['MFR'])
g2 = k_gemm('g2_kernel', ('arg','Wo',256*448*2), 896, ('arg','Wv',512), 8192, ('ws',WS['NT'],448*448*2), 896, 256, 1,1,2,2, 7,7, batch=16, D=4, transA=True, fr=WS['NFR'])
kerns.append(merge('prea_kernel', [p0, g1, g2, ln1]))
g3 = k_gemm('g3_kernel', ('ws',WS['H'],0), 896, ('ws',WS['MT'],0), 896, ('ws',WS['BXF'],0), 7168*2, 448, 2,2,2,2, 16,56, epi='bxf', D=3, sig=C_BX)
g4 = k_gemm('g4_kernel', ('ws',WS['NT'],0), 896, ('ws',WS['H'],0), 896, ('ws',WS['UF'],0), 2048*2, 448, 2,2,2,2, 56,16, epi='uf', D=3, nmajor=True, signal=True)
at = k_attn(inchain=True)
f1 = k_gemm('f1_kernel', ('ws',WS['H2'],0), 896, ('ws',WS['W1T'],0), 896, ('ws',WS['HID'],0), 1792*2, 448, 1,1,2,2, 32,28, epi='ffn1', D=4, FD=4, wait=(C_CA, 1, 8), sig=C_CF)
f2 = k_gemm('f2_kernel', ('ws',WS['HID'],0), 3584, ('ws',WS['W2T'],0), 3584, ('arg','out',0), 896, 1792, 1,1,2,2, 32,7, epi='ffn2', D=3, KC=128, FD=4, wait=(C_CF, 0, 28))
kerns.append(k_chain(worker=[(g4,0,224), (g3,0,224), (at,0,128), (f1,128,96), (f2,0,112)]))
launches = list(kerns)
emit(kerns, launches, sys.argv[1] if len(sys.argv) > 1 else 'adaLN_cond__memory_aug_recurrent_mem_tr__dense_activation_gelu__prompt.s')
```

```python
from fw import *

def k_prep0():
    NMOD, NTR, NFILL = 21, 392, 64
    tot = NMOD + NTR + NFILL
    k = Kern('prep0_kernel', grid=tot, lds=64*144, vgpr=96, sgpr=96)
    Lend, Ltr, Lfill = k.newlab('end'), k.newlab('tr'), k.newlab('fill')
    k('s_cmp_ge_u32 s2, %d' % tot); k('s_cbranch_scc1 %s' % Lend)
    k.ldarg(4, 'c'); k.ldarg(6, 'wmod'); k.ldarg(8, 'ws'); k.ldarg(12, 'Wo'); k.ldarg(14, 'w1'); k.ldarg(16, 'w2'); k.ldarg(18, 'mem0'); k.ldarg(80, 'dbg')
    k('v_and_b32 v1, 63, v0')
    k('v_lshrrev_b32 v2, 6, v0')
    k('s_nop 0')
    k('v_readfirstlane_b32 s10, v2')
    k('s_waitcnt lgkmcnt(0)')
    k('s_cmp_ge_u32 s2, %d' % NMOD); k('s_cbranch_scc1 %s' % Ltr)
    k('s_mul_i32 s11, s10, 112')
    k('v_add_u32 v2, s11, v1')
    k('v_min_u32 v3, 47, v1')
    k('v_add_u32 v3, 64, v3')
    k('v_add_u32 v3, s11, v3')
    k('v_lshlrev_b32 v2, 1, v2'); k('v_lshlrev_b32 v3, 1, v3')
    k('global_load_ushort v4, v2, s[4:5]')
    k('global_load_ushort v5, v3, s[4:5]')
    k('s_mul_i32 s20, s11, 5376')
    k('s_lshl_b32 s21, s2, 8')
    k('s_add_u32 s20, s20, s21')
    k('v_lshlrev_b32 v6, 2, v1')
    k('v_add_u32 v6, s20, v6')
    k('s_waitcnt vmcnt(0)')
    for r in (4, 5):
        k('v_lshlrev_b32 v%d, 16, v%d' % (r, r))
        k('v_mul_f32 v7, 0xbfb8aa3b, v%d' % r)
        k('v_exp_f32 v7, v7')
        k('s_nop 0')
        k('v_add_f32 v7, 1.0, v7')
        k('v_rcp_f32 v7, v7')
        k('s_nop 0')
        k('v_mul_f32 v%d, v%d, v7' % (r, r))
    k('v_cvt_pk_bf16_f32 v7, v4, v5')
    k('v_lshlrev_b32 v4, 16, v7')
    k('v_and_b32 v5, 0xffff0000, v7')
    k('v_mov_b32 v8, 0'); k('v_mov_b32 v9, 0')
    for b in range(2):
        for i in range(56):
            k('global_load_dword v%d, v6, s[6:7]' % (16 + i))
            k('v_add_u32 v6, 5376, v6')
        for i in range(56):
            kk = b * 56 + i
            src, lane = (4, kk) if kk < 64 else (5, kk - 64)
            k('v_readlane_b32 s%d, v%d, %d' % (24 + i, src, lane))
        k('s_waitcnt vmcnt(0)')
        for i in range(56):
            k('v_lshlrev_b32 v10, 16, v%d' % (16 + i))
            k('v_and_b32 v11, 0xffff0000, v%d' % (16 + i))
            k('v_fmac_f32 v8, s%d, v10' % (24 + i))
            k('v_fmac_f32 v9, s%d, v11' % (24 + i))
    k('v_lshlrev_b32 v10, 3, v0')
    k('ds_write_b64 v10, v[8:9]')
    k('s_waitcnt lgkmcnt(0)')
    k('s_barrier')
    k('s_cmp_lg_u32 s10, 0'); k('s_cbranch_scc1 %s' % Lend)
    k('ds_read_b64 v[12:13], v10 offset:512')
    k('ds_read_b64 v[14:15], v10 offset:1024')
    k('ds_read_b64 v[16:17], v10 offset:1536')
    k('s_waitcnt lgkmcnt(0)')
    for r in (12, 14, 16):
        k('v_add_f32 v8, v8, v%d' % r); k('v_add_f32 v9, v9, v%d' % (r + 1))
    k('v_cvt_pk_bf16_f32 v7, v8, v9')
    k('v_lshlrev_b32 v8, 16, v7'); k('v_and_b32 v9, 0xffff0000, v7')
    k('v_add_f32 v12, 1.0, v8'); k('v_add_f32 v13, 1.0, v9')
    k('v_cvt_pk_bf16_f32 v7, v12, v13')
    k('v_lshlrev_b32 v12, 16, v7'); k('v_and_b32 v13, 0xffff0000, v7')
    k('s_lshl_b32 s21, s2, 7')
    k('v_lshlrev_b32 v14, 1, v1'); k('v_add_u32 v14, s21, v14')
    k('v_subrev_u32 v15, 448, v14')
    k('v_cmp_gt_u32 vcc, 448, v15')
    k('s_nop 1')
    k('s_mov_b64 s[22:23], vcc')
    k('v_subrev_u32 v15, 1792, v14')
    k('v_cmp_gt_u32 vcc, 448, v15')
    k('s_nop 1')
    k('s_or_b64 vcc, vcc, s[22:23]')
    k('s_nop 1')
    k('v_cndmask_b32 v8, v8, v12, vcc'); k('v_cndmask_b32 v9, v9, v13, vcc')
    k('v_lshlrev_b32 v14, 2, v14')
    k('global_store_dwordx2 v14, v[8:9], s[8:9] offset:%d sc1' % WS['MOD'])
    k('s_waitcnt vmcnt(0)')
    k('v_mov_b32 v14, 128'); k('v_mov_b32 v15, 1')
    k('s_mov_b64 exec, 1')
    k('global_atomic_add v14, v15, s[80:81] sc1')
    k('s_branch %s' % Lend)
    k.lab(Ltr)
    k('s_cmp_ge_u32 s2, %d' % (NMOD + NTR)); k('s_cbranch_scc1 %s' % Lfill)
    L1, L2, Lc = k.newlab('t1'), k.newlab('t2'), k.newlab('tc')
    k('s_sub_u32 s20, s2, %d' % NMOD); k('s_add_u32 s20, s20, 448')
    k('s_cmp_ge_u32 s20, 448'); k('s_cbranch_scc1 %s' % L1)
    k.sdiv(21, 20, 28, 447)
    k('s_mul_i32 s22, s21, 28'); k('s_sub_u32 s20, s20, s22')
    k.sdiv(23, 20, 7, 27)
    k('s_mul_i32 s22, s23, 7'); k('s_sub_u32 s24, s20, s22')
    k('s_mul_i32 s22, s21, 229376')
    k('s_add_u32 s30, s12, s22'); k('s_addc_u32 s31, s13, 0')
    k('s_add_u32 s22, s22, 0x%x' % WS['WOT'])
    k('s_add_u32 s32, s8, s22'); k('s_addc_u32 s33, s9, 0')
    k('s_mov_b32 s25, %d' % (448 * 2)); k('s_mov_b32 s26, %d' % (256 * 2))
    k('s_branch %s' % Lc)
    k.lab(L1)
    k('s_cmp_ge_u32 s20, 644'); k('s_cbranch_scc1 %s' % L2)
    k('s_sub_u32 s20, s20, 448')
    k.sdiv(23, 20, 28, 195)
    k('s_mul_i32 s22, s23, 28'); k('s_sub_u32 s24, s20, s22')
    k('s_mov_b32 s30, s14'); k('s_mov_b32 s31, s15')
    k.addoff(32, 8, WS['W1T'])
    k('s_mov_b32 s25, %d' % (1792 * 2)); k('s_mov_b32 s26, %d' % (448 * 2))
    k('s_branch %s' % Lc)
    k.lab(L2)
    k('s_sub_u32 s20, s20, 644')
    k.sdiv(23, 20, 7, 195)
    k('s_mul_i32 s22, s23, 7'); k('s_sub_u32 s24, s20, s22')
    k('s_mov_b32 s30, s16'); k('s_mov_b32 s31, s17')
    k.addoff(32, 8, WS['W2T'])
    k('s_mov_b32 s25, %d' % (448 * 2)); k('s_mov_b32 s26, %d' % (1792 * 2))
    k.lab(Lc)
    k('v_lshrrev_b32 v2, 3, v0')
    k('v_and_b32 v3, 7, v0')
    k('s_lshl_b32 s27, s23, 6')
    k('s_lshl_b32 s28, s24, 6')
    k('v_add_u32 v4, s27, v2')
    k('v_mul_lo_u32 v4, v4, s25')
    k('v_lshlrev_b32 v5, 4, v3')
    k('s_lshl_b32 s29, s28, 1')
    k('v_add3_u32 v4, v4, v5, s29')
    k('s_lshl_b32 s34, s25, 5')
    k('v_add_u32 v6, s34, v4')
    k('global_load_dwordx4 v[16:19], v4, s[30:31]')
    k('global_load_dwordx4 v[20:23], v6, s[30:31]')
    k('v_mul_u32_u24 v7, 144, v2')
    k('v_add_u32 v7, v7, v5')
    k('s_waitcnt vmcnt(0)')
    k('ds_write_b128 v7, v[16:19]')
    k('ds_write_b128 v7, v[20:23] offset:4608')
    k('s_waitcnt lgkmcnt(0)')
    k('s_barrier')
    k('v_mul_u32_u24 v7, %d, v3' % (8 * 144))
    k('v_lshl_add_u32 v7, v2, 1, v7')
    for p in range(2):
        for i in range(8):
            k('ds_read_u16 v%d, v7 offset:%d' % (32 + p * 8 + i, i * 144 + p * 64))
    k('v_add_u32 v4, s28, v2')
    k('v_mul_lo_u32 v4, v4, s26')
    k('s_lshl_b32 s29, s27, 1')
    k('v_add3_u32 v4, v4, v5, s29')
    k('s_lshl_b32 s34, s26, 5')
    k('v_add_u32 v6, s34, v4')
    k('s_waitcnt lgkmcnt(0)')
    for j in range(8):
        k('v_lshl_or_b32 v%d, v%d, 16, v%d' % (24 + j, 33 + 2 * j, 32 + 2 * j))
    k('global_store_dwordx4 v4, v[24:27], s[32:33]')
    k('global_store_dwordx4 v6, v[28:31], s[32:33]')
    k('s_branch %s' % Lend)
    k.lab(Lfill)
    Lf1 = k.newlab('f1'); Lf2 = k.newlab('f2')
    k('s_sub_u32 s20, s2, %d' % (NMOD + NTR))
    k('v_lshlrev_b32 v2, 4, v0')
    k('s_lshl_b32 s21, s20, 13')
    k('s_add_u32 s22, s21, 0x%x' % WS['MEMF'])
    k('s_add_u32 s30, s8, s22'); k('s_addc_u32 s31, s9, 0')
    k('s_lshl_b32 s21, s20, 14')
    k('s_add_u32 s21, s21, 0x%x' % WS['P'])
    k('s_add_u32 s32, s8, s21'); k('s_addc_u32 s33, s9, 0')
    for r in range(4, 8): k('v_mov_b32 v%d, -1' % r)
    k('v_add_u32 v3, 4096, v2')
    k('s_cmp_eq_u32 s20, 0'); k('s_cbranch_scc1 %s' % Lf1)
    k('global_store_dwordx4 v2, v[4:7], s[30:31]')
    k('global_store_dwordx4 v3, v[4:7], s[30:31]')
    k('s_branch %s' % Lf2)
    k.lab(Lf1)
    k.addoff(24, 8, WS['CNT'])
    for r in range(12, 16): k('v_mov_b32 v%d, 0' % r)
    k('global_store_dwordx4 v2, v[12:15], s[24:25]')
    k('global_store_dwordx4 v3, v[12:15], s[24:25]')
    k.addoff(26, 8, WS['MEMF2'])
    k('v_and_b32 v8, 7, v0'); k('v_mul_u32_u24 v8, 896, v8')
    k('v_lshrrev_b32 v9, 3, v0')
    k('v_lshl_add_u32 v10, v9, 4, v8')
    k('global_load_dwordx4 v[12:15], v10, s[18:19]')
    k('s_waitcnt vmcnt(0)')
    k('global_store_dwordx4 v2, v[12:15], s[30:31]')
    k('global_store_dwordx4 v2, v[12:15], s[26:27]')
    k('v_cmp_gt_u32 vcc, 192, v0'); k('s_and_saveexec_b64 s[22:23], vcc')
    k('global_load_dwordx4 v[12:15], v10, s[18:19] offset:512')
    k('s_waitcnt vmcnt(0)')
    k('global_store_dwordx4 v3, v[12:15], s[30:31]')
    k('global_store_dwordx4 v3, v[12:15], s[26:27]')
    k('s_mov_b64 exec, s[22:23]')
    k.lab(Lf2)
    for i in range(4):
        k('global_store_dwordx4 v2, v[4:7], s[32:33]')
        if i < 3: k('v_add_u32 v2, 4096, v2')
    k.lab(Lend)
    return k

def wave_allreduce_add(k, v, t):
    for n in (8, 4, 2, 1):
        k('s_nop 1')
        k('v_add_f32_dpp v%d, v%d, v%d row_ror:%d row_mask:0xf bank_mask:0xf' % (v, v, v, n))
    for op in ('v_permlane16_swap_b32', 'v_permlane32_swap_b32'):
        k('v_mov_b32 v%d, v%d' % (t, v)); k('v_mov_b32 v%d, v%d' % (t + 1, v))
        k('s_nop 1')
        k('%s v%d, v%d' % (op, t, t + 1))
        k('s_nop 1')
        k('v_add_f32 v%d, v%d, v%d' % (v, t, t + 1))

def rnd_bf16(k, dsts, a, b, t):
    k('v_cvt_pk_bf16_f32 v%d, v%d, v%d' % (t, a, b))
    k('v_lshlrev_b32 v%d, 16, v%d' % (dsts[0], t))
    k('v_and_b32 v%d, 0xffff0000, v%d' % (dsts[1], t))

def k_ln(name, src_is_input, src_off, dst_off, sh_idx, opc_idx, extra=False, waitmod=False):
    k = Kern(name, grid=512, vgpr=64, sgpr=48)
    Lend = k.newlab('end')
    k('s_cmp_ge_u32 s2, 512'); k('s_cbranch_scc1 %s' % Lend)
    k.ldarg(4, 'x'); k.ldarg(8, 'ws')
    if waitmod: k.ldarg(26, 'dbg')
    k('v_and_b32 v1, 63, v0')
    k('v_lshrrev_b32 v2, 6, v0')
    k('s_lshl_b32 s10, s2, 2')
    k('v_add_u32 v2, s10, v2')
    k('v_mul_u32_u24 v2, 896, v2')
    k('v_min_u32 v3, 55, v1')
    k('v_lshl_add_u32 v2, v3, 4, v2')
    k('v_lshlrev_b32 v4, 5, v3')
    k('s_waitcnt lgkmcnt(0)')
    if not src_is_input:
        k.addoff(4, 8, src_off)
    k.addoff(12, 8, dst_off)
    k('global_load_dwordx4 v[8:11], v2, s[4:5]')
    k.addoff(14, 8, WS['MOD'] + sh_idx * 448 * 4)
    k.addoff(16, 8, WS['MOD'] + opc_idx * 448 * 4)
    sfx = ''
    if waitmod:
        sfx = ' sc1'
        Lw, Ld = k.newlab('mw'), k.newlab('md')
        k('s_mov_b32 s28, 0'); k('v_mov_b32 v5, 128')
        k.lab(Lw)
        k('global_load_dword v6, v5, s[26:27] sc1')
        k('s_add_u32 s28, s28, 1'); k('s_cmp_gt_u32 s28, %d' % (1 << 18)); k('s_cbranch_scc1 %s' % Ld)
        k('s_waitcnt vmcnt(0)')
        k('v_cmp_gt_u32 vcc, 21, v6'); k('s_nop 1'); k('s_cbranch_vccz %s' % Ld)
        k('s_sleep 8'); k('s_branch %s' % Lw)
        k.lab(Ld)
    k('global_load_dwordx4 v[32:35], v4, s[14:15]' + sfx)
    k('global_load_dwordx4 v[36:39], v4, s[14:15] offset:16' + sfx)
    k('global_load_dwordx4 v[40:43], v4, s[16:17]' + sfx)
    k('global_load_dwordx4 v[44:47], v4, s[16:17] offset:16' + sfx)
    k('v_cmp_gt_u32 s[20:21], 56, v1')
    k('s_waitcnt vmcnt(4)')
    for i in range(4):
        k('v_lshlrev_b32 v%d, 16, v%d' % (16 + 2 * i, 8 + i))
        k('v_and_b32 v%d, 0xffff0000, v%d' % (17 + 2 * i, 8 + i))
    k('v_add_f32 v24, v16, v17')
    for i in range(2, 8): k('v_add_f32 v24, v24, v%d' % (16 + i))
    k('v_cndmask_b32 v24, 0, v24, s[20:21]')
    wave_allreduce_add(k, 24, 26)
    k('v_mul_f32 v24, 0x%08x, v24' % 0x3b124925)
    k('v_mov_b32 v25, 0')
    for i in range(8):
        k('v_sub_f32 v28, v%d, v24' % (16 + i))
        k('v_fmac_f32 v25, v28, v28')
    k('v_cndmask_b32 v25, 0, v25, s[20:21]')
    wave_allreduce_add(k, 25, 26)
    k('v_mul_f32 v25, 0x%08x, v25' % 0x3b124925)
    rnd_bf16(k, (24, 25), 24, 25, 26)
    k('v_add_f32 v25, 0x3727c5ac, v25')
    rnd_bf16(k, (25, 26), 25, 25, 27)
    k('v_sqrt_f32 v25, v25')
    k('s_nop 0')
    rnd_bf16(k, (25, 26), 25, 25, 27)
    k('v_rcp_f32 v26, v25')
    k('s_nop 0')
    k('s_waitcnt vmcnt(0)')
    for i in range(0, 8, 2):
        a, b = 16 + i, 17 + i
        k('v_sub_f32 v%d, v%d, v24' % (a, a)); k('v_sub_f32 v%d, v%d, v24' % (b, b))
        rnd_bf16(k, (a, b), a, b, 27)
        for r in (a, b):
            k('v_mul_f32 v28, v%d, v26' % r)
            k('v_fma_f32 v29, -v28, v25, v%d' % r)
            k('v_fma_f32 v%d, v29, v26, v28' % r)
        rnd_bf16(k, (a, b), a, b, 27)
        k('v_mul_f32 v%d, v%d, v%d' % (a, a, 40 + i)); k('v_mul_f32 v%d, v%d, v%d' % (b, b, 41 + i))
        rnd_bf16(k, (a, b), a, b, 27)
        k('v_add_f32 v%d, v%d, v%d' % (a, a, 32 + i)); k('v_add_f32 v%d, v%d, v%d' % (b, b, 33 + i))
        k('v_cvt_pk_bf16_f32 v%d, v%d, v%d' % (48 + i // 2, a, b))
    if extra:
        k('v_lshrrev_b32 v52, 6, v0'); k('v_add_u32 v52, s10, v52')
        k('v_lshrrev_b32 v53, 4, v52'); k('v_and_b32 v54, 15, v52')
        k('v_mul_u32_u24 v55, 14, v53'); k('v_lshrrev_b32 v56, 2, v3'); k('v_add_u32 v55, v55, v56')
        k('v_lshlrev_b32 v55, 6, v55'); k('v_and_b32 v56, 3, v3'); k('v_lshl_add_u32 v55, v56, 4, v55'); k('v_add_u32 v55, v55, v54')
        k('v_lshlrev_b32 v55, 4, v55')
        k('v_mul_u32_u24 v57, 28, v53'); k('v_lshrrev_b32 v56, 1, v3'); k('v_add_u32 v57, v57, v56')
        k('v_lshlrev_b32 v57, 6, v57'); k('v_and_b32 v56, 1, v3'); k('v_lshl_add_u32 v57, v56, 5, v57'); k('v_add_u32 v57, v57, v54')
        k('v_lshlrev_b32 v57, 3, v57')
        k.addoff(22, 8, WS['HF']); k.addoff(24, 8, WS['HP'])
    k('s_mov_b64 exec, s[20:21]')
    k('global_store_dwordx4 v2, v[48:51], s[12:13]')
    if extra:
        k('global_store_dwordx4 v55, v[48:51], s[22:23]')
        k('global_store_dwordx2 v57, v[48:49], s[24:25]')
        k('global_store_dwordx2 v57, v[50:51], s[24:25] offset:128')
    k.lab(Lend)
    return k
```

```python
from fw import *

LOG2E = 0x3fb8aa3b
S_FAST = 44
S_TO = 45
TO_LIMIT = 1 << 18

def pub_store(k, instr):
    Lf, Le = k.newlab('pf'), k.newlab('pe')
    k('s_cmp_eq_u32 s%d, 1' % S_FAST); k('s_cbranch_scc1 %s' % Lf)
    k(instr + ' sc1'); k('s_branch %s' % Le)
    k.lab(Lf); k(instr); k.lab(Le)

def maxchain(k, regs, t):
    regs = list(regs)
    k('v_max_u32 v%d, v%d, v%d' % (t, regs[0], regs[1]))
    i = 2
    while i < len(regs):
        if i + 1 < len(regs):
            k('v_max3_u32 v%d, v%d, v%d, v%d' % (t, t, regs[i], regs[i + 1])); i += 2
        else:
            k('v_max_u32 v%d, v%d, v%d' % (t, t, regs[i])); i += 1

def poll(k, issue, regs, t, Lbail):
    Lp = k.newlab('poll')
    k.lab(Lp)
    issue()
    k('s_add_u32 s%d, s%d, 1' % (S_TO, S_TO))
    k('s_cmp_gt_u32 s%d, %d' % (S_TO, TO_LIMIT)); k('s_cbranch_scc1 %s' % Lbail)
    k('s_waitcnt vmcnt(0)')
    maxchain(k, regs, t)
    k('v_cmp_eq_u32 vcc, -1, v%d' % t)
    k('s_nop 1')
    k('s_cbranch_vccnz %s' % Lp)

def xlane(k, op, v, t):
    for pl in ('v_permlane16_swap_b32', 'v_permlane32_swap_b32'):
        k('v_mov_b32 v%d, v%d' % (t, v))
        k('s_nop 1')
        k('%s v%d, v%d' % (pl, t, v))
        k('s_nop 1')
        k('%s v%d, v%d, v%d' % (op, v, t, v))

RED = 114688
STAMP = False
DBGOFF = 128 << 20
def stamp(k, idx):
    if not STAMP: return
    k('s_memtime s[%d:%d]' % (50 + 2 * idx, 51 + 2 * idx))
def stamp_flush(k, n, va):
    if not STAMP: return
    k('s_waitcnt lgkmcnt(0)')
    k('s_lshr_b32 s76, s2, 3'); k('s_lshl_b32 s76, s76, 2'); k('s_add_u32 s76, s76, s10'); k('s_lshl_b32 s76, s76, 6'); k('s_add_u32 s76, s76, s36'); k('s_lshl_b32 s76, s76, 6')
    k('s_add_u32 s76, s76, 0x%x' % DBGOFF)
    k('s_add_u32 s78, s4, s76'); k('s_addc_u32 s79, s5, 0')
    k('s_mov_b64 exec, 1')
    k('v_mov_b32 v%d, 0' % va)
    for i in range(n):
        k('v_mov_b32 v60, s%d' % (50 + 2 * i))
        k('global_store_dword v%d, v60, s[78:79] offset:%d' % (va, 4 * i))
    k('s_mov_b64 exec, -1')
MB = RED + 24576
def k_chain(worker=None):
    k = Kern('chain_kernel', grid=256, lds=MB + 14336, vgpr=256, agpr=256, sgpr=102)
    Lend, LO = k.newlab('end'), k.newlab('O')
    Lw = k.newlab('wk')
    k('s_and_b32 s3, s2, 7'); k('s_cmp_lg_u32 s3, 0'); k('s_cbranch_scc1 %s' % (Lw if worker else Lend))
    Lpf = k.newlab('pf')
    k('s_cmp_eq_u32 s2, 240'); k('s_cbranch_scc1 %s' % Lpf)
    k('s_cmp_ge_u32 s2, 240'); k('s_cbranch_scc1 %s' % Lend)
    k('s_lshr_b32 s3, s2, 3')
    k.ldarg(4, 'ws'); k.ldarg(6, 'dbg')
    k('v_and_b32 v1, 63, v0')
    k('v_lshrrev_b32 v2, 6, v0')
    k('s_nop 0')
    k('v_readfirstlane_b32 s10, v2')
    k('v_and_b32 v2, 15, v1')
    k('v_lshrrev_b32 v3, 4, v1')
    k('s_mov_b32 s%d, 0' % S_TO)
    k('s_getreg_b32 s20, hwreg(HW_REG_XCC_ID)')
    k('s_and_b32 s20, s20, 0xff'); k('s_add_u32 s20, s20, 1')
    k('s_waitcnt lgkmcnt(0)')
    k('v_mov_b32 v5, s20'); k('s_lshl_b32 s21, s3, 2'); k('v_mov_b32 v6, s21')
    k('s_mov_b64 exec, 1')
    k('global_store_dword v6, v5, s[6:7] sc1')
    k('s_mov_b64 exec, -1')
    def handshake():
        k('v_min_u32 v60, 29, v1'); k('v_lshlrev_b32 v60, 2, v60')
        Lx = k.newlab('xp')
        k.lab(Lx)
        k('global_load_dword v17, v60, s[6:7] sc1')
        k('s_add_u32 s%d, s%d, 1' % (S_TO, S_TO))
        k('s_cmp_gt_u32 s%d, %d' % (S_TO, TO_LIMIT)); k('s_cbranch_scc1 %s' % Lend)
        k('s_waitcnt vmcnt(0)')
        k('v_cmp_eq_u32 vcc, 0, v17'); k('s_nop 1'); k('s_cbranch_vccnz %s' % Lx)
        k('v_cmp_ne_u32 vcc, s20, v17'); k('s_nop 1')
        k('s_cmp_eq_u64 vcc, 0'); k('s_cselect_b32 s%d, 1, 0' % S_FAST)
    k('s_add_u32 s91, s3, 208')
    k.ts(1)
    k('v_lshlrev_b32 v9, 4, v1')
    k('s_lshl_b32 s21, s10, 10'); k('v_add_u32 v5, s21, v9')
    k('s_add_u32 s22, s10, 4'); k('s_min_u32 s22, s22, 6'); k('s_lshl_b32 s22, s22, 10'); k('v_add_u32 v6, s22, v9')
    k('v_lshrrev_b32 v7, 5, v1'); k('v_lshlrev_b32 v7, 10, v7')
    k('v_bfe_u32 v8, v1, 3, 2'); k('v_lshl_add_u32 v7, v8, 8, v7')
    k('v_and_b32 v8, 7, v1'); k('v_lshl_add_u32 v7, v8, 4, v7'); k('v_add_u32 v7, %d, v7' % MB)
    k('s_lshl_b32 s21, s21, 1'); k('v_add_u32 v8, s21, v7')
    k('s_lshl_b32 s22, s22, 1'); k('v_add_u32 v4, s22, v7')
    k('v_add_u32 v18, %d, v9' % MB)
    k('v_cmp_gt_u32 s[40:41], 32, v1')
    k('v_cmp_gt_u32 s[42:43], 8, v2')
    k('s_and_b64 s[48:49], s[40:41], s[42:43]')
    for r in range(64, 68): k('v_mov_b32 v%d, 0' % r)
    k('v_lshlrev_b32 v19, 4, v0'); k('v_add_u32 v19, %d, v19' % MB)
    for j in range(4):
        if j == 3:
            k('v_cmp_gt_u32 vcc, 128, v0'); k('s_and_saveexec_b64 s[22:23], vcc')
        k('ds_write_b128 v19, v[64:67] offset:%d' % (j * 4096))
    k('s_mov_b64 exec, -1')
    k('s_waitcnt lgkmcnt(0)'); k('s_barrier')
    MF = 64
    Q = 112
    def qloads():
        k('global_load_dwordx4 %s, v5, s[30:31] sc1' % vr(Q, 4))
        k('global_load_dwordx4 %s, v6, s[30:31] sc1' % vr(Q + 4, 4))
    def gather_mem():
        poll(k, qloads, range(Q, Q + 8), 60, Lend)
        k('ds_write_b128 v8, %s' % vr(Q, 4)); k('ds_write_b128 v4, %s' % vr(Q + 4, 4))
        k('s_waitcnt lgkmcnt(0)'); k('s_barrier')
    def mread(kk): k('ds_read_b128 %s, v18 offset:%d' % (vr(MF + 4 * kk, 4), kk * 1024))
    k('s_cmp_ge_u32 s3, 16'); k('s_cbranch_scc1 %s' % LO)
    ACC = 32
    def mfrag(f): return ar(4 * f, 4) if f < 64 else vr(120 + 4 * (f - 64), 4)
    k('s_mul_i32 s21, s3, %d' % (448 * 448 * 2)); k('s_mul_i32 s24, s10, %d' % (98 * 1024)); k('s_add_u32 s21, s21, s24')
    k('s_add_u32 s21, s21, 0x%x' % WS['MFR'])
    k('s_add_u32 s22, s4, s21'); k('s_addc_u32 s23, s5, 0')
    for f in range(98):
        k('global_load_dwordx4 %s, v9, s[22:23] offset:%d' % (mfrag(f), (f % 4) * 1024))
        if f % 4 == 3:
            k('s_add_u32 s22, s22, 4096'); k('s_addc_u32 s23, s23, 0')
    k('s_mul_i32 s24, s10, %d' % (7 * 512))
    k('v_lshlrev_b32 v11, 3, v1'); k('v_add_u32 v11, s24, v11')
    k('v_add_u32 v12, %d, v11' % (28 * 512))
    k('v_lshrrev_b32 v13, 1, v3'); k('v_lshl_add_u32 v13, v13, 4, v2'); k('v_lshlrev_b32 v13, 4, v13')
    k('v_and_b32 v14, 1, v3'); k('v_lshl_add_u32 v13, v14, 3, v13'); k('v_add_u32 v13, s24, v13'); k('v_add_u32 v13, %d, v13' % MB)
    k('s_mul_i32 s24, s10, 3072'); k('s_add_u32 s24, s24, %d' % RED)
    k('v_add_u32 v14, s24, v9'); k('v_add_u32 v15, %d, v9' % RED)
    k.addoff(30, 4, WS['MEMF']); k.addoff(32, 4, WS['HP'])
    k.addoff(34, 4, WS['P'])
    k('v_lshlrev_b32 v16, 4, v2'); k('v_lshl_add_u32 v16, v3, 7, v16')
    k('s_lshr_b32 s24, s3, 1'); k('s_lshl_b32 s24, s24, 8'); k('s_and_b32 s25, s3, 1'); k('s_lshl_b32 s25, s25, 3')
    k('s_add_u32 s24, s24, s25'); k('s_add_u32 s24, s24, 8192'); k('v_add_u32 v19, s24, v16')
    k('s_lshl_b32 s24, s3, 9'); k('v_add_u32 v16, s24, v16')
    k('v_mov_b32 v61, 0xf149f2ca')
    k('v_mov_b32 v62, 0x%08x' % LOG2E)
    k('s_mov_b32 s36, 0')
    k('s_mov_b32 s37, 0')
    k('s_waitcnt vmcnt(0)')
    LS, LSn = k.newlab('S'), k.newlab('Sn')
    handshake()
    k.ts(2)
    k.lab(LS)
    stamp(k, 0)
    gather_mem()
    stamp(k, 1)
    HN = {1: 0, 2: 4, 0: 8}
    def hload(n):
        jt = (1, 2, 0)[n // 4]; q = n % 4
        t0, t1 = 2 * q, min(2 * q + 1, 6)
        if jt == 0:
            k('ds_read_b64 %s, v13 offset:%d' % (vr(MF + 4 * n, 2), t0 * 512))
            k('ds_read_b64 %s, v13 offset:%d' % (vr(MF + 4 * n + 2, 2), t1 * 512))
        else:
            va = 11 if jt == 1 else 12
            k('global_load_dwordx2 %s, v%d, s[32:33] offset:%d' % (vr(MF + 4 * n, 2), va, t0 * 512))
            k('global_load_dwordx2 %s, v%d, s[32:33] offset:%d' % (vr(MF + 4 * n + 2, 2), va, t1 * 512))
    for kk in range(14): mread(kk)
    def bm(tt, kk):
        c = '0' if kk == 0 else vr(ACC + 4 * tt, 4)
        k('v_mfma_f32_16x16x32_bf16 %s, %s, %s, %s' % (vr(ACC + 4 * tt, 4), mfrag(tt * 14 + kk), vr(MF + 4 * kk, 4), c))
    for kk in range(12):
        if kk < 8: k('s_waitcnt lgkmcnt(%d)' % min(13 - kk, 15))
        elif kk == 8: k('s_waitcnt lgkmcnt(0)')
        for tt in range(7): bm(tt, kk)
        hload(kk)
    k('v_add_u32 v17, s37, v14')
    SA = [20, 24, 28]
    def fin(q):
        ts_ = [2 * q, 2 * q + 1] if q < 3 else [6]
        for kk in (12, 13):
            for tt in ts_: bm(tt, kk)
    def cvt(q):
        a = ACC + 8 * q
        k('v_cvt_pk_bf16_f32 v%d, v%d, v%d' % (a, a, a + 1))
        k('v_cvt_pk_bf16_f32 v%d, v%d, v%d' % (a + 1, a + 2, a + 3))
        if q < 3:
            k('v_cvt_pk_bf16_f32 v%d, v%d, v%d' % (a + 2, a + 4, a + 5))
            k('v_cvt_pk_bf16_f32 v%d, v%d, v%d' % (a + 3, a + 6, a + 7))
        else:
            k('v_mov_b32 v%d, 0' % (a + 2)); k('v_mov_b32 v%d, 0' % (a + 3))
    def score(q):
        for jt in range(3):
            c = '0' if q == 0 else vr(SA[jt], 4)
            k('v_mfma_f32_16x16x32_bf16 %s, %s, %s, %s' % (vr(SA[jt], 4), vr(MF + 4 * (HN[jt] + q), 4), vr(ACC + 8 * q, 4), c))
    fin(0); fin(1); k.nop(5); cvt(0); fin(2)
    k('s_waitcnt vmcnt(0) lgkmcnt(0)')
    score(0); cvt(1); fin(3); score(1); k.nop(2); cvt(2); k.nop(2); score(2); k.nop(2); cvt(3); k.nop(2); score(3)
    stamp(k, 2)
    k.nop(8)
    for jt in range(3): k('ds_write_b128 v17, %s offset:%d' % (vr(SA[jt], 4), jt * 1024))
    stamp(k, 3)
    k('s_waitcnt lgkmcnt(0)'); k('s_barrier')
    stamp(k, 4)
    k('s_cmp_lg_u32 s10, 0'); k('s_cbranch_scc1 %s' % LSn)
    k('v_add_u32 v17, s37, v15')
    for w in range(1, 4):
        for jt in range(3):
            k('ds_read_b128 %s, v17 offset:%d' % (vr(MF + 12 * (w - 1) + 4 * jt, 4), w * 3072 + jt * 1024))
    for w in range(1, 4):
        k('s_waitcnt lgkmcnt(%d)' % (3 * (3 - w)))
        for jt in range(3):
            for r in (0, 2):
                k('v_pk_add_f32 %s, %s, %s' % (vr(SA[jt] + r, 2), vr(SA[jt] + r, 2), vr(MF + 12 * (w - 1) + 4 * jt + r, 2)))
    sc = [SA[jt] + r for jt in range(3) for r in range(4)]
    for r in range(4): k('v_cndmask_b32 v%d, v61, v%d, s[40:41]' % (SA[0] + r, SA[0] + r))
    T = MF + 40
    k('v_max3_f32 v%d, v%d, v%d, v%d' % (T, sc[4], sc[5], sc[6]))
    k('v_max3_f32 v%d, v%d, v%d, v%d' % (T + 1, sc[7], sc[8], sc[9]))
    k('v_max3_f32 v%d, v%d, v%d, v%d' % (T + 2, sc[10], sc[11], sc[0]))
    k('v_max3_f32 v%d, v%d, v%d, v%d' % (T + 3, sc[1], sc[2], sc[3]))
    k('v_max3_f32 v%d, v%d, v%d, v%d' % (T, T, T + 1, T + 2))
    k('v_max_f32 v%d, v%d, v%d' % (T, T, T + 3))
    xlane(k, 'v_max_f32', T, T + 1)
    k('v_mul_f32 v%d, v62, v%d' % (T, T))
    k('v_mov_b32 v%d, v%d' % (T + 1, T)); k('v_mov_b32 v63, v62')
    for jt in range(3):
        for r in (0, 2): k('v_pk_fma_f32 %s, %s, v[62:63], %s neg_lo:[0,0,1] neg_hi:[0,0,1]' % (vr(SA[jt] + r, 2), vr(SA[jt] + r, 2), vr(T, 2)))
    for r in sc: k('v_exp_f32 v%d, v%d' % (r, r))
    k('s_nop 0')
    for j in range(3): k('v_pk_add_f32 %s, %s, %s' % (vr(T + 2 * j, 2), vr(SA[j], 2), vr(SA[j] + 2, 2)))
    k('v_pk_add_f32 %s, %s, %s' % (vr(T, 2), vr(T, 2), vr(T + 2, 2)))
    k('v_pk_add_f32 %s, %s, %s' % (vr(T, 2), vr(T, 2), vr(T + 4, 2)))
    k('v_add_f32 v%d, v%d, v%d' % (T, T, T + 1))
    xlane(k, 'v_add_f32', T, T + 1)
    k('v_rcp_f32 v%d, v%d' % (T, T))
    k('s_nop 0')
    k('v_mov_b32 v%d, v%d' % (T + 1, T))
    for jt in range(3):
        for r in (0, 2): k('v_pk_mul_f32 %s, %s, %s' % (vr(SA[jt] + r, 2), vr(SA[jt] + r, 2), vr(T, 2)))
    PK = MF + 48
    k('v_cvt_pk_bf16_f32 v%d, v%d, v%d' % (PK, sc[4], sc[5])); k('v_cvt_pk_bf16_f32 v%d, v%d, v%d' % (PK + 1, sc[6], sc[7]))
    k('v_cvt_pk_bf16_f32 v%d, v%d, v%d' % (PK + 2, sc[8], sc[9])); k('v_cvt_pk_bf16_f32 v%d, v%d, v%d' % (PK + 3, sc[10], sc[11]))
    k('v_cvt_pk_bf16_f32 v%d, v%d, v%d' % (PK + 4, sc[0], sc[1])); k('v_cvt_pk_bf16_f32 v%d, v%d, v%d' % (PK + 5, sc[2], sc[3]))
    Lf, Le = k.newlab('pf'), k.newlab('pe')
    k('s_cmp_eq_u32 s%d, 1' % S_FAST); k('s_cbranch_scc1 %s' % Lf)
    k('s_mov_b64 exec, s[42:43]')
    k('global_store_dwordx4 v16, %s, s[34:35] sc1' % vr(PK, 4))
    k('s_mov_b64 exec, s[48:49]')
    k('global_store_dwordx2 v19, %s, s[34:35] sc1' % vr(PK + 4, 2))
    k('s_branch %s' % Le)
    k.lab(Lf)
    k('s_mov_b64 exec, s[42:43]')
    k('global_store_dwordx4 v16, %s, s[34:35]' % vr(PK, 4))
    k('s_mov_b64 exec, s[48:49]')
    k('global_store_dwordx2 v19, %s, s[34:35]' % vr(PK + 4, 2))
    k.lab(Le)
    k('s_mov_b64 exec, -1')
    k('s_nop 1')
    k.lab(LSn)
    stamp(k, 5)
    stamp_flush(k, 6, 31)
    k('s_add_u32 s30, s30, %d' % MEM_STRIDE); k('s_addc_u32 s31, s31, 0')
    k('s_add_u32 s32, s32, %d' % (2 * 28 * 512)); k('s_addc_u32 s33, s33, 0')
    k('s_add_u32 s34, s34, %d' % P_STEP); k('s_addc_u32 s35, s35, 0')
    k('s_xor_b32 s37, s37, 12288')
    k('s_add_u32 s36, s36, 1'); k('s_cmp_lt_u32 s36, 63'); k('s_cbranch_scc1 %s' % LS)
    k('s_branch %s' % Lend)
    k.lab(LO)
    k('s_sub_u32 s3, s3, 16')
    def nfrag(f): return ar(4 * f, 4) if f < 64 else vr(176 + 4 * (f - 64), 4)
    UTF = 120
    VM = 152
    VA = 168
    OA = 32
    LT = 40
    UO = 20
    k('s_mul_i32 s24, s10, %d' % (4 * 28)); k('s_lshl_b32 s25, s3, 1'); k('s_add_u32 s24, s24, s25'); k('s_mul_i32 s24, s24, %d' % (14 * 1024))
    k('s_add_u32 s24, s24, 0x%x' % WS['NFR'])
    k('s_add_u32 s76, s4, s24'); k('s_addc_u32 s77, s5, 0')
    k('s_mul_i32 s26, s10, 28672'); k('v_add_u32 v12, s26, v9')
    for u in (3, 0, 1, 2):
        for dt in range(2):
            for kk in range(14):
                if kk % 4 == 0:
                    k('s_add_u32 s22, s76, %d' % ((u * 28 + dt) * 14 * 1024 + kk * 1024)); k('s_addc_u32 s23, s77, 0')
                dst = nfrag((u * 2 + dt) * 14 + kk) if u < 3 else vr(MF + 4 * kk, 4)
                k('global_load_dwordx4 %s, v9, s[22:23] offset:%d' % (dst, (kk % 4) * 1024))
            if u == 3:
                k('s_waitcnt vmcnt(0)')
                for kk in range(14):
                    k('ds_write_b128 v12, %s offset:%d' % (vr(MF + 4 * kk, 4), (dt * 14 + kk) * 1024))
                k('s_waitcnt lgkmcnt(0)')
    k('s_mul_i32 s24, s10, %d' % (4 * 28)); k('s_lshl_b32 s25, s3, 1'); k('s_add_u32 s24, s24, s25'); k('s_lshl_b32 s24, s24, 10')
    k('v_add_u32 v%d, s24, v9' % UO)
    for u in range(1, 4): k('v_add_u32 v%d, %d, v%d' % (UO + u, 28 * 1024, UO + u - 1))
    k('s_mul_i32 s24, s10, %d' % (2 * 28)); k('s_add_u32 s24, s24, s25'); k('s_lshl_b32 s24, s24, 9')
    k('v_add_u32 v%d, s24, v9' % (UO + 4)); k('v_add_u32 v%d, %d, v%d' % (UO + 5, 28 * 512, UO + 4))
    k('v_lshrrev_b32 v15, 1, v3'); k('v_lshlrev_b32 v15, 7, v15'); k('v_lshl_add_u32 v15, v2, 4, v15')
    k('v_and_b32 v14, 1, v3'); k('v_lshl_add_u32 v15, v14, 3, v15')
    k('s_lshl_b32 s25, s3, 9'); k('s_lshl_b32 s26, s10, 8'); k('s_add_u32 s25, s25, s26'); k('v_add_u32 v15, s25, v15')
    k('v_lshlrev_b32 v16, 4, v2'); k('v_lshl_add_u32 v16, v3, 7, v16')
    k('s_lshl_b32 s25, s10, 9'); k('s_add_u32 s25, s25, 8192'); k('v_add_u32 v19, s25, v16')
    k('s_lshl_b32 s25, s10, 11'); k('v_add_u32 v16, s25, v16')
    k('v_lshlrev_b32 v26, 4, v2'); k('v_lshl_add_u32 v26, v3, 7, v26'); k('v_add_u32 v63, 4096, v26')
    for r in range(56, 60): k('v_mov_b32 v%d, 0' % r)
    for r in range(28, 32): k('v_mov_b32 v%d, 0' % r)
    handshake()
    k('s_lshl_b32 s24, s10, 11'); k('s_add_u32 s24, s24, %d' % RED); k('v_add_u32 v17, s24, v9')
    k('s_lshl_b32 s24, s10, 10'); k('s_add_u32 s24, s24, %d' % RED); k('v_add_u32 v13, s24, v9')
    k.addoff(30, 4, WS['MEMF']); k.addoff(32, 4, WS['UF']); k.addoff(38, 4, WS['UMF']); k.addoff(46, 4, WS['MEMF'] + MEM_STRIDE); k.addoff(68, 4, WS['CNT']); k.addoff(70, 4, WS['MEMF2']); k.addoff(74, 4, WS['CNT'] + C_CM - 4)
    k.addoff(34, 4, WS['P'])
    k('s_mov_b32 s36, 0'); k('s_mov_b32 s37, 0')
    k('s_waitcnt vmcnt(0)')
    LOl, LOn, LOu = k.newlab('Ol'), k.newlab('On'), k.newlab('Ou')
    k.ts(2)
    k.lab(LOl)
    stamp(k, 0)
    gather_mem()
    stamp(k, 1)
    for kk in range(14): mread(kk)
    def cmsig():
        Lns = k.newlab('ns')
        k('s_cmp_lg_u32 s10, 3'); k('s_cbranch_scc1 %s' % Lns)
        k('v_mov_b32 v60, 0'); k('v_mov_b32 v61, 1')
        k('s_mov_b64 exec, 1')
        k('global_atomic_add v60, v61, s[74:75] sc1')
        k('s_mov_b64 exec, -1')
        k.lab(Lns)
    Lz = k.newlab('z')
    k('s_cmp_eq_u32 s36, 0'); k('s_cbranch_scc1 %s' % Lz)
    cmsig()
    k.lab(Lz)
    k('s_cmp_eq_u32 s36, 63'); k('s_cbranch_scc1 %s' % LOu)
    Lnf, Lfp = k.newlab('nf'), k.newlab('fp')
    k('s_and_b32 s24, s36, 3'); k('s_cmp_lg_u32 s24, 0'); k('s_cbranch_scc1 %s' % Lnf)
    k('s_lshl_b32 s24, s36, 4'); k('v_mov_b32 v60, s24')
    k.lab(Lfp)
    k('global_load_dword v61, v60, s[68:69] sc1')
    k('s_add_u32 s%d, s%d, 1' % (S_TO, S_TO))
    k('s_cmp_gt_u32 s%d, %d' % (S_TO, TO_LIMIT)); k('s_cbranch_scc1 %s' % Lend)
    k('s_waitcnt vmcnt(0)')
    k('v_cmp_gt_u32 vcc, 56, v61'); k('s_nop 1'); k('s_cbranch_vccnz %s' % Lfp)
    k.lab(Lnf)
    for u in range(4):
        for dt in range(2):
            n = u * 2 + dt
            k('global_load_dwordx4 %s, v%d, s[32:33] offset:%d sc1' % (vr(UTF + 4 * n, 4), UO + u, dt * 1024))
    k.lab(LOu)
    def finish(n):
        u, dt = n // 2, n % 2
        a = VA + 4 * (n & 1)
        d = VM + ((u >> 1) * 2 + dt) * 4 + 2 * (u & 1)
        k('v_cvt_pk_bf16_f32 v%d, v%d, v%d' % (d, a, a + 1))
        k('v_cvt_pk_bf16_f32 v%d, v%d, v%d' % (d + 1, a + 2, a + 3))
        if u & 1:
            k('s_mov_b64 exec, s[40:41]')
            k('global_store_dwordx4 v%d, %s, s[38:39] offset:%d sc1' % (UO + 4 + (u >> 1), vr(d - 2, 4), dt * 512))
            k('s_mov_b64 exec, -1')
    for n in range(8):
        u, dt = n // 2, n % 2
        a = VA + 4 * (n & 1)
        if u == 3:
            for j in range(4): k('ds_read_b128 %s, v12 offset:%d' % (vr(LT + 4 * j, 4), (dt * 14 + j) * 1024))
        for kk in range(14):
            c = '0' if kk == 0 else vr(a, 4)
            if n == 0: k('s_waitcnt lgkmcnt(%d)' % (13 - kk))
            if u < 3:
                b = nfrag((u * 2 + dt) * 14 + kk)
            else:
                b = vr(LT + 4 * (kk % 4), 4)
                k('s_waitcnt lgkmcnt(%d)' % min(3, 13 - kk))
            k('v_mfma_f32_16x16x32_bf16 %s, %s, %s, %s' % (vr(a, 4), vr(MF + 4 * kk, 4), b, c))
            if u == 3 and kk + 4 < 14:
                k('ds_read_b128 %s, v12 offset:%d' % (vr(LT + 4 * (kk % 4), 4), (dt * 14 + kk + 4) * 1024))
            if kk == 10 and n > 0: finish(n - 1)
        if n == 0:
            Lm2 = k.newlab('m2')
            k('s_cmp_lg_u32 s10, 3'); k('s_cbranch_scc1 %s' % Lm2)
            k('s_cmp_lg_u32 s3, 0'); k('s_cbranch_scc1 %s' % Lm2)
            k('s_mov_b64 exec, s[42:43]')
            for kk in range(14):
                k('global_store_dwordx4 v%d, %s, s[70:71] offset:%d sc1' % (26 if kk < 8 else 63, vr(MF + 4 * kk, 4), (kk % 8) * 512))
            k('s_mov_b64 exec, -1')
            k.lab(Lm2)
    k.nop(10)
    finish(7)
    stamp(k, 2)
    Lgo = k.newlab('go')
    k('s_cmp_lg_u32 s36, 63'); k('s_cbranch_scc1 %s' % Lgo)
    k('s_waitcnt vmcnt(0)'); k('s_barrier')
    k('s_add_u32 s74, s74, 4'); k('s_addc_u32 s75, s75, 0')
    cmsig()
    k('s_add_u32 s91, s3, 224')
    k.ts(0)
    k('s_branch %s' % Lend)
    k.lab(Lgo)
    PX = MF
    PMS = (56, 28)
    k('v_add_u32 v14, s37, v17')
    k('v_add_u32 v27, s37, v13')
    Lp = k.newlab('pp')
    k.lab(Lp)
    k('s_mov_b64 exec, s[42:43]')
    for u in range(4):
        k('global_load_dwordx4 %s, v16, s[34:35] offset:%d sc1' % (vr(PX + 4 * u, 4), u * 512))
    k('s_mov_b64 exec, s[48:49]')
    for pr in range(2):
        k('global_load_dwordx4 %s, v19, s[34:35] offset:%d sc1' % (vr(PMS[pr], 4), pr * 256))
    k('s_add_u32 s%d, s%d, 1' % (S_TO, S_TO))
    k('s_cmp_gt_u32 s%d, %d' % (S_TO, TO_LIMIT)); k('s_cbranch_scc1 %s' % Lend)
    k('s_waitcnt vmcnt(0)')
    maxchain(k, list(range(56, 60)) + list(range(28, 32)), 61)
    k('v_cmp_eq_u32 s[66:67], -1, v61')
    k('s_mov_b64 exec, s[42:43]')
    maxchain(k, range(PX, PX + 16), 60)
    k('v_cmp_eq_u32 vcc, -1, v60')
    k('s_mov_b64 exec, -1')
    k('s_or_b64 vcc, vcc, s[66:67]')
    k('s_cbranch_vccnz %s' % Lp)
    stamp(k, 3)
    for u in range(4):
        for dt in range(2):
            c = '0' if u == 0 else vr(OA + 4 * dt, 4)
            k('v_mfma_f32_16x16x32_bf16 %s, %s, %s, %s' % (vr(OA + 4 * dt, 4), vr(UTF + 4 * (u * 2 + dt), 4), vr(PX + 4 * u, 4), c))
    for pr in range(2):
        for dt in range(2):
            k('v_mfma_f32_16x16x32_bf16 %s, %s, %s, %s' % (vr(OA + 4 * dt, 4), vr(VM + (pr * 2 + dt) * 4, 4), vr(PMS[pr], 4), vr(OA + 4 * dt, 4)))
    k.nop(8)
    k('ds_write_b128 v14, %s' % vr(OA, 4)); k('ds_write_b128 v14, %s offset:1024' % vr(OA + 4, 4))
    k('s_waitcnt lgkmcnt(0)'); k('s_barrier')
    stamp(k, 4)
    k('s_cmp_ge_u32 s10, 2'); k('s_cbranch_scc1 %s' % LOn)
    for w in range(4): k('ds_read_b128 %s, v27 offset:%d' % (vr(LT + 4 * w, 4), w * 2048))
    k('s_waitcnt lgkmcnt(2)')
    for r in (0, 2): k('v_pk_add_f32 %s, %s, %s' % (vr(LT + r, 2), vr(LT + r, 2), vr(LT + 4 + r, 2)))
    k('s_waitcnt lgkmcnt(0)')
    for r in (0, 2): k('v_pk_add_f32 %s, %s, %s' % (vr(LT + 8 + r, 2), vr(LT + 8 + r, 2), vr(LT + 12 + r, 2)))
    for r in (0, 2): k('v_pk_add_f32 %s, %s, %s' % (vr(LT + r, 2), vr(LT + r, 2), vr(LT + 8 + r, 2)))
    k('v_cvt_pk_bf16_f32 v%d, v%d, v%d' % (LT + 4, LT, LT + 1)); k('v_cvt_pk_bf16_f32 v%d, v%d, v%d' % (LT + 5, LT + 2, LT + 3))
    k('s_mov_b64 exec, s[42:43]')
    pub_store(k, 'global_store_dwordx2 v15, %s, s[46:47]' % vr(LT + 4, 2))
    k('s_mov_b64 exec, -1')
    k.lab(LOn)
    if TS:
        Lt = k.newlab('t'); k('s_cmp_lg_u32 s36, 0'); k('s_cbranch_scc1 %s' % Lt); k.ts(3); k.lab(Lt)
    stamp(k, 5)
    stamp_flush(k, 6, 62)
    k('s_add_u32 s30, s30, %d' % MEM_STRIDE); k('s_addc_u32 s31, s31, 0')
    k('s_add_u32 s46, s46, %d' % MEM_STRIDE); k('s_addc_u32 s47, s47, 0')
    k('s_add_u32 s70, s70, %d' % MEM_STRIDE); k('s_addc_u32 s71, s71, 0')
    k('s_add_u32 s74, s74, 4'); k('s_addc_u32 s75, s75, 0')
    k('s_add_u32 s32, s32, %d' % (16 * 28 * 1024)); k('s_addc_u32 s33, s33, 0')
    k('s_add_u32 s34, s34, %d' % P_STEP); k('s_addc_u32 s35, s35, 0')
    k('s_add_u32 s38, s38, %d' % UM_STEP); k('s_addc_u32 s39, s39, 0')
    k('s_xor_b32 s37, s37, 8192')
    k('s_add_u32 s36, s36, 1'); k('s_branch %s' % LOl)
    k.lab(Lpf)
    k.ldarg(4, 'ws')
    k('v_lshrrev_b32 v2, 6, v0'); k('s_nop 0'); k('v_readfirstlane_b32 s10, v2')
    k('s_mov_b32 s92, 0'); k('s_mov_b32 s36, 0')
    k('s_waitcnt lgkmcnt(0)')
    k.addoff(66, 4, WS['UF']); k.addoff(68, 4, WS['HP']); k.addoff(30, 4, WS['MEMF'])
    Lpl, Lnw, Lnp, Lpp = k.newlab('pl'), k.newlab('nw'), k.newlab('npc'), k.newlab('pp')
    k.lab(Lpl)
    k('s_and_b32 s24, s36, 3'); k('s_cmp_lg_u32 s24, 0'); k('s_cbranch_scc1 %s' % Lnw)
    k('s_lshl_b32 s62, s36, 4')
    k.wait_cnt(4, 62, C_UF, 56, Lend, vt=(10, 11), swave=10)
    k.lab(Lnw)
    k('s_mul_i32 s64, s36, %d' % (16 * 28 * 1024))
    k.touch(66, 64, 16 * 28 * 1024, 10, vt=(10, 11))
    k('s_mul_i32 s64, s36, %d' % (2 * 28 * 512))
    k.touch(68, 64, 2 * 28 * 512, 10, vt=(10, 11))
    k('s_cmp_lt_u32 s36, 2'); k('s_cbranch_scc1 %s' % Lnp)
    k('s_sub_u32 s24, s36, 1'); k('s_lshl_b32 s24, s24, 13'); k('v_mov_b32 v10, s24')
    k.lab(Lpp)
    k('global_load_dword v11, v10, s[30:31] sc1')
    k('s_add_u32 s92, s92, 1'); k('s_cmp_gt_u32 s92, %d' % (1 << 18)); k('s_cbranch_scc1 %s' % Lend)
    k('s_waitcnt vmcnt(0)')
    k('v_cmp_eq_u32 vcc, -1, v11'); k('s_nop 1')
    k('s_cbranch_vccz %s' % Lnp)
    k('s_sleep 8'); k('s_branch %s' % Lpp)
    k.lab(Lnp)
    k('s_add_u32 s36, s36, 1'); k('s_cmp_lt_u32 s36, 63'); k('s_cbranch_scc1 %s' % Lpl)
    k('s_branch %s' % Lend)
    if worker:
        k.lab(Lw)
        k('s_cmp_ge_u32 s2, 256'); k('s_cbranch_scc1 %s' % Lend)
        k('s_lshr_b32 s3, s2, 3'); k('s_sub_u32 s90, s2, s3'); k('s_sub_u32 s90, s90, 1')
        k('s_mov_b32 s91, s90'); k('s_mov_b32 s92, 0')
        k.ldarg(4, 'ws'); k('s_waitcnt lgkmcnt(0)'); k.ts(24)
        for wk, w0, nw in worker:
            Lwl, Lsk = k.newlab('wl'), k.newlab('sk')
            if wk.name.startswith('f2'):
                k('s_cmp_ge_u32 s91, 112'); k('s_cbranch_scc1 %s' % Lsk)
                k.sdiv(90, 91, 7, 223)
                k('s_mul_i32 s87, s90, 7'); k('s_sub_u32 s87, s91, s87')
                k.lab(Lwl)
                k.sdiv(86, 90, 7, 63)
                k('s_mul_i32 s85, s86, 7'); k('s_sub_u32 s84, s90, s85')
                k('s_add_u32 s85, s85, s87')
                k('s_cmp_ge_u32 s85, 32'); k('s_cbranch_scc1 %s' % Lsk)
                k('s_mul_i32 s2, s85, 7'); k('s_add_u32 s2, s2, s84')
                k.L += wk.L
                k('s_barrier')
                k('s_add_u32 s90, s90, 16'); k('s_branch %s' % Lwl)
                k.lab(Lsk)
                continue
            k('s_sub_u32 s90, s91, %d' % w0)
            k('s_cmp_ge_u32 s90, %d' % nw); k('s_cbranch_scc1 %s' % Lsk)
            k.lab(Lwl)
            k('s_mov_b32 s2, s90')
            k.L += wk.L
            k('s_barrier')
            k('s_add_u32 s90, s90, %d' % nw)
            k('s_cmp_lt_u32 s90, %d' % wk.grid); k('s_cbranch_scc1 %s' % Lwl)
            k.lab(Lsk)
    k.lab(Lend)
    return k
```

```python
from fw import *
from k_prep import rnd_bf16

def setbase(k, sdst, spec, sws, sbatch):
    kind, key, bstride = spec
    if kind == 'ws':
        k.addoff(sdst, sws, key)
    if bstride:
        k('s_mul_i32 s40, s%d, %d' % (sbatch, bstride))
        k('s_add_u32 s%d, s%d, s40' % (sdst, sdst)); k('s_addc_u32 s%d, s%d, 0' % (sdst + 1, sdst + 1))

def k_gemm(name, A, lda, B, ldb, C, ldc, K, MT, NT, WM, WN, tiles_m, tiles_n, batch=1, epi='plain', scale=None, D=2, nmajor=False, signal=False, wait=None, sig=None, KC=64, sigsh=0, transA=False, FD=2, fr=None):
    TM, TN = 32 * MT * WM, 32 * NT * WN
    RS = KC * 2 + 16; SPR = KC // 8; RPP = 256 // SPR; LSP = SPR.bit_length() - 1; NKS = KC // 16
    PA, PB = TM * SPR // 256, TN * SPR // 256
    BS = (TM + TN) * RS
    NC = K // KC
    tot = tiles_m * tiles_n * batch
    vAo = 8; vBo = vAo + PA
    vst = (vBo + PB + 12 + 3) // 4 * 4
    vmisc = vBo + PB
    v_lwa, v_lwb, v_fa, v_fb, v_lwa_c, v_lwb_c, v_fa_c, v_fb_c = range(vmisc, vmisc + 8)
    vfr = vst + (PA + PB) * 4 * D
    nfr = (MT + NT) * 4
    vend = vfr + FD * nfr
    vtmp = vst
    nv = max(vend + 8, vtmp + 64)
    k = Kern(name, grid=tot, lds=2 * BS, vgpr=nv, agpr=MT * NT * 16, sgpr=64)
    Lend, Lloop, Lnold, Lnow = k.newlab('end'), k.newlab('loop'), k.newlab('nold'), k.newlab('now')
    k('s_cmp_ge_u32 s2, %d' % tot); k('s_cbranch_scc1 %s' % Lend)
    k.ldarg(4, 'ws')
    if A[0] == 'arg': k.ldarg(6, A[1])
    if B[0] == 'arg': k.ldarg(8, B[1])
    if C[0] == 'arg': k.ldarg(10, C[1])
    if epi == 'ffn1': k.ldarg(12, 'b1')
    if epi == 'ffn2': k.ldarg(12, 'b2')
    if batch > 1:
        k('s_lshr_b32 s43, s2, 3'); k('s_and_b32 s44, s2, 7')
        k.sdiv(20, 43, tiles_m * tiles_n, tot // 8 - 1)
        k('s_mul_i32 s21, s20, %d' % (tiles_m * tiles_n)); k('s_sub_u32 s21, s43, s21')
        k('s_mul_i32 s44, s44, %d' % (batch // 8)); k('s_add_u32 s20, s20, s44')
    else:
        k('s_mov_b32 s20, 0'); k('s_mov_b32 s21, s2')
    if nmajor:
        k.sdiv(23, 21, tiles_m, tiles_m * tiles_n - 1)
        k('s_mul_i32 s22, s23, %d' % tiles_m); k('s_sub_u32 s22, s21, s22')
    else:
        k.sdiv(22, 21, tiles_n, tiles_m * tiles_n - 1)
        k('s_mul_i32 s23, s22, %d' % tiles_n); k('s_sub_u32 s23, s21, s23')
    k('v_and_b32 v1, 63, v0')
    k('v_lshrrev_b32 v2, 6, v0')
    k('s_nop 0')
    k('v_readfirstlane_b32 s24, v2')
    k('s_waitcnt lgkmcnt(0)')
    setbase(k, 6, A, 4, 20); setbase(k, 8, B, 4, 20); setbase(k, 10, C, 4, 20)
    if wait is not None:
        base, sh, target = wait
        k('s_mul_i32 s42, s23, %d' % (TN * ldb))
        k.touch(8, 42, TN * ldb, 24)
        k('s_lshr_b32 s41, s22, %d' % sh); k('s_lshl_b32 s41, s41, 6')
        tb = 8 if epi == 'ffn1' else 16
        k.wait_cnt(4, 41, base, target, Lend, swave=24, acq=True)
        k.ts(tb)
        k.ts(tb + 1)
        k('s_mul_i32 s42, s22, %d' % (TM * lda))
        if epi == 'ffn2':
            sl = TM * lda // tiles_n
            k('s_mul_i32 s43, s23, %d' % sl); k('s_add_u32 s42, s42, s43')
            k.touch(6, 42, sl, 24)
        else:
            k.touch(6, 42, TM * lda, 24)
    if WN == 1: k('s_mov_b32 s25, s24'); k('s_mov_b32 s26, 0')
    elif WM == 1: k('s_mov_b32 s25, 0'); k('s_mov_b32 s26, s24')
    else: k('s_lshr_b32 s25, s24, 1'); k('s_and_b32 s26, s24, 1')
    k('v_lshrrev_b32 v2, %d, v0' % LSP)
    k('v_and_b32 v3, %d, v0' % (SPR - 1))
    k('v_lshlrev_b32 v3, 4, v3')
    k('s_mul_i32 s27, s22, %d' % TM)
    k('s_mul_i32 s28, s23, %d' % TN)
    k('s_mov_b32 s29, %d' % lda); k('s_mov_b32 s30, %d' % ldb)
    if transA:
        assert MT == 1 and TM == 64 and KC == 64
        k('v_mul_lo_u32 v4, v2, s29'); k('s_lshl_b32 s31, s27, 1'); k('v_add3_u32 v%d, v4, v3, s31' % vAo)
    else:
        k('v_add_u32 v4, s27, v2'); k('v_mul_lo_u32 v4, v4, s29'); k('v_add_u32 v%d, v4, v3' % vAo)
    for i in range(1, PA): k('v_add_u32 v%d, %d, v%d' % (vAo + i, RPP * lda, vAo + i - 1))
    k('v_add_u32 v4, s28, v2'); k('v_mul_lo_u32 v4, v4, s30'); k('v_add_u32 v%d, v4, v3' % vBo)
    for i in range(1, PB): k('v_add_u32 v%d, %d, v%d' % (vBo + i, RPP * ldb, vBo + i - 1))
    k('v_mul_u32_u24 v4, %d, v2' % RS); k('v_add_u32 v%d, v4, v3' % v_lwa)
    k('v_add_u32 v%d, %d, v%d' % (v_lwb, TM * RS, v_lwa))
    k('v_and_b32 v4, 31, v1'); k('v_lshrrev_b32 v5, 5, v1'); k('v_lshlrev_b32 v5, 4, v5')
    if transA:
        k('s_mul_i32 s31, s25, 32'); k('v_add_u32 v6, s31, v4'); k('v_lshlrev_b32 v6, 1, v6')
        k('v_lshrrev_b32 v7, 5, v1'); k('v_mul_u32_u24 v7, %d, v7' % (8 * RS)); k('v_add_u32 v%d, v6, v7' % v_fa)
    else:
        k('s_mul_i32 s31, s25, %d' % (32 * MT)); k('v_add_u32 v6, s31, v4'); k('v_mul_u32_u24 v6, %d, v6' % RS); k('v_add_u32 v%d, v6, v5' % v_fa)
    k('s_mul_i32 s31, s26, %d' % (32 * NT)); k('v_add_u32 v6, s31, v4'); k('v_mul_u32_u24 v6, %d, v6' % RS); k('v_add_u32 v6, v6, v5')
    k('v_add_u32 v%d, %d, v6' % (v_fb, TM * RS))
    for i in range(MT * NT * 16): k('v_accvgpr_write_b32 a%d, 0' % i)
    P = PA + PB
    def loads(c):
        st = vst + (c % D) * P * 4
        for i in range(PA): k('global_load_dwordx4 %s, v%d, s[6:7]' % (vr(st + 4 * i, 4), vAo + i))
        for i in range(PB): k('global_load_dwordx4 %s, v%d, s[8:9]' % (vr(st + 4 * (PA + i), 4), vBo + i))
        k('s_add_u32 s6, s6, %d' % (KC * lda if transA else KC * 2)); k('s_addc_u32 s7, s7, 0')
        k('s_add_u32 s8, s8, %d' % (KC * 2)); k('s_addc_u32 s9, s9, 0')
    def writes(c):
        st = vst + (c % D) * P * 4
        va, vb = (v_lwa, v_lwb) if c % 2 == 0 else (v_lwa_c, v_lwb_c)
        for i in range(PA): k('ds_write_b128 v%d, %s offset:%d' % (va, vr(st + 4 * i, 4), i * RPP * RS))
        for i in range(PB): k('ds_write_b128 v%d, %s offset:%d' % (vb, vr(st + 4 * (PA + i), 4), i * RPP * RS))
    k('v_add_u32 v%d, %d, v%d' % (v_fa_c, BS, v_fa)); k('v_add_u32 v%d, %d, v%d' % (v_fb_c, BS, v_fb))
    k('v_add_u32 v%d, %d, v%d' % (v_lwa_c, BS, v_lwa)); k('v_add_u32 v%d, %d, v%d' % (v_lwb_c, BS, v_lwb))
    for c in range(min(D, NC)): loads(c)
    k('s_waitcnt vmcnt(%d)' % ((min(D, NC) - 1) * P))
    writes(0)
    k('s_waitcnt lgkmcnt(0)'); k('s_barrier')
    for c in range(NC):
        if c + D < NC: loads(c + D)
        fa, fb = (v_fa, v_fb) if c % 2 == 0 else (v_fa_c, v_fb_c)
        def rd(ks):
            base = vfr + (ks % FD) * nfr
            for mt in range(MT): k('ds_read_b128 %s, v%d offset:%d' % (vr(base + 4 * mt, 4), fa, mt * 32 * RS + ks * 32))
            for nt in range(NT): k('ds_read_b128 %s, v%d offset:%d' % (vr(base + 4 * (MT + nt), 4), fb, nt * 32 * RS + ks * 32))
        if transA:
            for ks in range(NKS):
                base = vfr
                for j in range(8): k('ds_read_u16 v%d, v%d offset:%d' % (vend + j, fa, (16 * ks + j) * RS))
                for nt in range(NT): k('ds_read_b128 %s, v%d offset:%d' % (vr(base + 4 * (MT + nt), 4), fb, nt * 32 * RS + ks * 32))
                k('s_waitcnt lgkmcnt(0)')
                for j in range(4): k('v_lshl_or_b32 v%d, v%d, 16, v%d' % (base + j, vend + 2 * j + 1, vend + 2 * j))
                k('s_nop 1')
                for nt in range(NT):
                    k('v_mfma_f32_32x32x16_bf16 %s, %s, %s, %s' % (ar(nt * 16, 16), vr(base + 4 * (MT + nt), 4), vr(base, 4), ar(nt * 16, 16)))
        else:
            for j in range(FD - 1): rd(j)
        for ks in range(0 if transA else NKS):
            if ks + FD - 1 < NKS: rd(ks + FD - 1)
            k('s_waitcnt lgkmcnt(%d)' % ((min(NKS - 1, ks + FD - 1) - ks) * (MT + NT)))
            base = vfr + (ks % FD) * nfr
            for mt in range(MT):
                for nt in range(NT):
                    a = (mt * NT + nt) * 16
                    k('v_mfma_f32_32x32x16_bf16 %s, %s, %s, %s' % (ar(a, 16), vr(base + 4 * (MT + nt), 4), vr(base + 4 * mt, 4), ar(a, 16)))
        if c + 1 < NC:
            inflight = min(NC - 1, c + D) - (c + 1)
            k('s_waitcnt vmcnt(%d)' % (inflight * P))
            writes(c + 1)
            k('s_waitcnt lgkmcnt(0)'); k('s_barrier')
    k.nop(16)
    if wait is not None: k.ts(tb + 2)
    k('v_and_b32 v4, 31, v1'); k('v_lshrrev_b32 v5, 5, v1')
    k('s_mul_i32 s31, s25, %d' % (32 * MT)); k('s_add_u32 s31, s31, s27')
    k('v_add_u32 v4, s31, v4')
    k('s_mul_i32 s36, s26, %d' % (32 * NT)); k('s_add_u32 s36, s36, s28')
    k('v_lshlrev_b32 v5, 2, v5'); k('v_add_u32 v5, s36, v5')
    k('s_mov_b32 s37, %d' % ldc)
    k('v_mul_lo_u32 v6, v4, s37')
    k('v_lshl_add_u32 v6, v5, 1, v6')
    if epi == 'bxf':
        k('v_lshrrev_b32 v6, 4, v4'); k('v_mul_u32_u24 v6, 224, v6')
        k('s_lshr_b32 s38, s36, 5'); k('v_add_u32 v6, s38, v6')
        k('v_lshlrev_b32 v6, 6, v6'); k('v_and_b32 v7, 15, v4'); k('v_add_u32 v6, v6, v7')
        k('v_lshlrev_b32 v6, 4, v6'); k('v_lshrrev_b32 v7, 5, v1'); k('v_lshl_add_u32 v6, v7, 3, v6')
    if epi == 'uf':
        k('s_lshr_b32 s38, s36, 5'); k('s_mul_i32 s38, s38, 448')
        k('v_lshrrev_b32 v6, 4, v4'); k('v_add_u32 v6, s38, v6')
        k('v_lshlrev_b32 v6, 6, v6'); k('v_and_b32 v7, 15, v4'); k('v_add_u32 v6, v6, v7')
        k('v_lshrrev_b32 v7, 5, v1'); k('v_lshl_add_u32 v6, v7, 4, v6')
        k('v_lshlrev_b32 v6, 4, v6')
    if fr is not None:
        assert MT == 1 and NT == 1
        k.addoff(14, 4, fr)
        k('s_mul_i32 s38, s20, 28'); k('v_lshrrev_b32 v7, 4, v4'); k('v_add_u32 v7, s38, v7'); k('v_mul_u32_u24 v7, 14, v7')
        k('s_lshr_b32 s38, s36, 5'); k('v_add_u32 v7, s38, v7'); k('v_lshlrev_b32 v7, 6, v7')
        k('v_and_b32 v2, 15, v4'); k('v_add_u32 v7, v7, v2'); k('v_lshlrev_b32 v7, 4, v7')
        k('v_lshrrev_b32 v2, 5, v1'); k('v_lshl_add_u32 v7, v2, 3, v7')
    if epi in ('ffn1', 'ffn2'):
        k('v_lshlrev_b32 v7, 1, v5')
    if epi == 'ffn2':
        k.addoff(14, 4, WS['MOD'] + 5 * 448 * 4)
        k.addoff(16, 4, WS['X1'])
        k('v_lshlrev_b32 v2, 2, v5')
    tset = 0
    for mt in range(MT):
        for nt in range(NT):
            for q in range(4):
                t = vtmp + (tset % 4) * 16; tset += 1
                a = (mt * NT + nt) * 16 + 4 * q
                noff = 32 * nt + 8 * q
                if epi in ('ffn1', 'ffn2'):
                    k('global_load_dwordx2 %s, v7, s[12:13] offset:%d' % (vr(t + 4, 2), noff * 2))
                if epi == 'ffn2':
                    k('global_load_dwordx4 %s, v2, s[14:15] offset:%d' % (vr(t + 8, 4), noff * 4))
                    k('global_load_dwordx2 %s, v6, s[16:17] offset:%d' % (vr(t + 6, 2), noff * 2))
                for r in range(4): k('v_accvgpr_read_b32 v%d, a%d' % (t + r, a + r))
                if epi in ('bxf', 'uf'):
                    k('v_cvt_pk_bf16_f32 v%d, v%d, v%d' % (t + 4, t, t + 1))
                    k('v_cvt_pk_bf16_f32 v%d, v%d, v%d' % (t + 5, t + 2, t + 3))
                    if epi == 'bxf':
                        k('global_store_dwordx2 v6, %s, s[10:11] offset:%d%s' % (vr(t + 4, 2), nt * 1024 + q * 256, ' sc1' if sig is not None else ''))
                    else:
                        sfx = ' sc1' if signal else ''
                        if nt == 0:
                            k('global_store_dwordx2 v6, %s, s[10:11] offset:%d%s' % (vr(t + 4, 2), (q & 1) * 512 + (q >> 1) * 8, sfx))
                        else:
                            k('v_add_u32 v7, %d, v6' % (nt * 448 * 1024))
                            k('global_store_dwordx2 v7, %s, s[10:11] offset:%d%s' % (vr(t + 4, 2), (q & 1) * 512 + (q >> 1) * 8, sfx))
                elif epi == 'plain':
                    if scale is not None:
                        for r in range(4): k('v_mul_f32 v%d, 0x%08x, v%d' % (t + r, scale, t + r))
                    k('v_cvt_pk_bf16_f32 v%d, v%d, v%d' % (t + 4, t, t + 1))
                    k('v_cvt_pk_bf16_f32 v%d, v%d, v%d' % (t + 5, t + 2, t + 3))
                    k('global_store_dwordx2 v6, %s, s[10:11] offset:%d' % (vr(t + 4, 2), noff * 2))
                    if fr is not None:
                        k('global_store_dwordx2 v7, %s, s[14:15] offset:%d' % (vr(t + 4, 2), q * 256))
                else:
                    rnd_bf16(k, (t, t + 1), t, t + 1, t + 12); rnd_bf16(k, (t + 2, t + 3), t + 2, t + 3, t + 12)
                    k('s_waitcnt vmcnt(0)')
                    for j in range(2):
                        k('v_lshlrev_b32 v%d, 16, v%d' % (t + 12, t + 4 + j)); k('v_and_b32 v%d, 0xffff0000, v%d' % (t + 13, t + 4 + j))
                        k('v_add_f32 v%d, v%d, v%d' % (t + 2 * j, t + 2 * j, t + 12)); k('v_add_f32 v%d, v%d, v%d' % (t + 2 * j + 1, t + 2 * j + 1, t + 13))
                    rnd_bf16(k, (t, t + 1), t, t + 1, t + 12); rnd_bf16(k, (t + 2, t + 3), t + 2, t + 3, t + 12)
                    if epi == 'ffn1':
                        for r in range(4):
                            z = t + r; u = t + 12
                            k('v_mul_f32 v%d, v%d, v%d' % (u, z, z))
                            k('v_mov_b32 v%d, 0x3d372713' % (u + 1))
                            k('v_fma_f32 v%d, v%d, v%d, 1.0' % (u, u, u + 1))
                            k('v_mul_f32 v%d, v%d, v%d' % (u, u, z))
                            k('v_mul_f32 v%d, 0x%08x, v%d' % (u, 0xc0135761, u))
                            k('v_exp_f32 v%d, v%d' % (u, u))
                            k('s_nop 0')
                            k('v_add_f32 v%d, 1.0, v%d' % (u, u))
                            k('v_rcp_f32 v%d, v%d' % (u, u))
                            k('s_nop 0')
                            k('v_mul_f32 v%d, v%d, v%d' % (z, z, u))
                    else:
                        for r in range(4): k('v_mul_f32 v%d, v%d, v%d' % (t + r, t + r, t + 8 + r))
                        rnd_bf16(k, (t, t + 1), t, t + 1, t + 12); rnd_bf16(k, (t + 2, t + 3), t + 2, t + 3, t + 12)
                        for j in range(2):
                            k('v_lshlrev_b32 v%d, 16, v%d' % (t + 12, t + 6 + j)); k('v_and_b32 v%d, 0xffff0000, v%d' % (t + 13, t + 6 + j))
                            k('v_add_f32 v%d, v%d, v%d' % (t + 2 * j, t + 2 * j, t + 12)); k('v_add_f32 v%d, v%d, v%d' % (t + 2 * j + 1, t + 2 * j + 1, t + 13))
                    k('v_cvt_pk_bf16_f32 v%d, v%d, v%d' % (t + 14, t, t + 1))
                    k('v_cvt_pk_bf16_f32 v%d, v%d, v%d' % (t + 15, t + 2, t + 3))
                    k('global_store_dwordx2 v6, %s, s[10:11] offset:%d%s' % (vr(t + 14, 2), noff * 2, ' sc1' if sig is not None else ''))
        if mt < MT - 1:
            k('v_add_u32 v6, %d, v6' % ({'bxf': 2 * 224 * 1024, 'uf': 2 * 1024}.get(epi, 32 * ldc)))
    if wait is not None:
        k('s_waitcnt vmcnt(0)'); k.ts(tb + 3)
    if signal:
        k('s_lshl_b32 s23, s23, 6')
        k.release_signal(4, 23, C_UF, wb=False)
    if sig is not None:
        k('s_lshl_b32 s22, s22, 6')
        k.release_signal(4, 22, sig, wb=False)
        if wait is not None: k.ts(tb + 4)
    k.lab(Lend)
    return k
```

```python
from fw import *

LOG2E = 0x3fb8aa3b
S_FAST = 44
S_TO = 45
TO_LIMIT = 1 << 18

def pub_store(k, instr):
    Lf, Le = k.newlab('pf'), k.newlab('pe')
    k('s_cmp_eq_u32 s%d, 1' % S_FAST); k('s_cbranch_scc1 %s' % Lf)
    k(instr + ' sc1'); k('s_branch %s' % Le)
    k.lab(Lf); k(instr); k.lab(Le)

def maxchain(k, regs, t):
    regs = list(regs)
    k('v_max_u32 v%d, v%d, v%d' % (t, regs[0], regs[1]))
    i = 2
    while i < len(regs):
        if i + 1 < len(regs):
            k('v_max3_u32 v%d, v%d, v%d, v%d' % (t, t, regs[i], regs[i + 1])); i += 2
        else:
            k('v_max_u32 v%d, v%d, v%d' % (t, t, regs[i])); i += 1

def poll(k, issue, regs, t, Lbail):
    Lp = k.newlab('poll')
    k.lab(Lp)
    issue()
    k('s_add_u32 s%d, s%d, 1' % (S_TO, S_TO))
    k('s_cmp_gt_u32 s%d, %d' % (S_TO, TO_LIMIT)); k('s_cbranch_scc1 %s' % Lbail)
    k('s_waitcnt vmcnt(0)')
    maxchain(k, regs, t)
    k('v_cmp_eq_u32 vcc, -1, v%d' % t)
    k('s_nop 1')
    k('s_cbranch_vccnz %s' % Lp)

def xlane(k, op, v, t):
    for pl in ('v_permlane16_swap_b32', 'v_permlane32_swap_b32'):
        k('v_mov_b32 v%d, v%d' % (t, v))
        k('s_nop 1')
        k('%s v%d, v%d' % (pl, t, v))
        k('s_nop 1')
        k('%s v%d, v%d, v%d' % (op, v, t, v))

RED = 114688
STAMP = False
DBGOFF = 128 << 20
def stamp(k, idx):
    if not STAMP: return
    k('s_memtime s[%d:%d]' % (50 + 2 * idx, 51 + 2 * idx))
def stamp_flush(k, n, va):
    if not STAMP: return
    k('s_waitcnt lgkmcnt(0)')
    k('s_lshr_b32 s76, s2, 3'); k('s_lshl_b32 s76, s76, 2'); k('s_add_u32 s76, s76, s10'); k('s_lshl_b32 s76, s76, 6'); k('s_add_u32 s76, s76, s36'); k('s_lshl_b32 s76, s76, 6')
    k('s_add_u32 s76, s76, 0x%x' % DBGOFF)
    k('s_add_u32 s78, s4, s76'); k('s_addc_u32 s79, s5, 0')
    k('s_mov_b64 exec, 1')
    k('v_mov_b32 v%d, 0' % va)
    for i in range(n):
        k('v_mov_b32 v60, s%d' % (50 + 2 * i))
        k('global_store_dword v%d, v60, s[78:79] offset:%d' % (va, 4 * i))
    k('s_mov_b64 exec, -1')
MB = RED + 24576
def k_chain(worker=None):
    k = Kern('chain_kernel', grid=256, lds=MB + 14336, vgpr=256, agpr=256, sgpr=102)
    Lend, LO = k.newlab('end'), k.newlab('O')
    Lw = k.newlab('wk')
    k('s_and_b32 s3, s2, 7'); k('s_cmp_lg_u32 s3, 0'); k('s_cbranch_scc1 %s' % (Lw if worker else Lend))
    Lpf = k.newlab('pf')
    k('s_cmp_eq_u32 s2, 240'); k('s_cbranch_scc1 %s' % Lpf)
    k('s_cmp_ge_u32 s2, 240'); k('s_cbranch_scc1 %s' % Lend)
    k('s_lshr_b32 s3, s2, 3')
    k.ldarg(4, 'ws'); k.ldarg(6, 'dbg')
    k('v_and_b32 v1, 63, v0')
    k('v_lshrrev_b32 v2, 6, v0')
    k('s_nop 0')
    k('v_readfirstlane_b32 s10, v2')
    k('v_and_b32 v2, 15, v1')
    k('v_lshrrev_b32 v3, 4, v1')
    k('s_mov_b32 s%d, 0' % S_TO)
    k('s_getreg_b32 s20, hwreg(HW_REG_XCC_ID)')
    k('s_and_b32 s20, s20, 0xff'); k('s_add_u32 s20, s20, 1')
    k('s_waitcnt lgkmcnt(0)')
    k('v_mov_b32 v5, s20'); k('s_lshl_b32 s21, s3, 2'); k('v_mov_b32 v6, s21')
    k('s_mov_b64 exec, 1')
    k('global_store_dword v6, v5, s[6:7] sc1')
    k('s_mov_b64 exec, -1')
    def handshake():
        k('v_min_u32 v60, 29, v1'); k('v_lshlrev_b32 v60, 2, v60')
        Lx = k.newlab('xp')
        k.lab(Lx)
        k('global_load_dword v17, v60, s[6:7] sc1')
        k('s_add_u32 s%d, s%d, 1' % (S_TO, S_TO))
        k('s_cmp_gt_u32 s%d, %d' % (S_TO, TO_LIMIT)); k('s_cbranch_scc1 %s' % Lend)
        k('s_waitcnt vmcnt(0)')
        k('v_cmp_eq_u32 vcc, 0, v17'); k('s_nop 1'); k('s_cbranch_vccnz %s' % Lx)
        k('v_cmp_ne_u32 vcc, s20, v17'); k('s_nop 1')
        k('s_cmp_eq_u64 vcc, 0'); k('s_cselect_b32 s%d, 1, 0' % S_FAST)
    k('s_add_u32 s91, s3, 208')
    k.ts(1)
    k('v_lshlrev_b32 v9, 4, v1')
    k('s_lshl_b32 s21, s10, 10'); k('v_add_u32 v5, s21, v9')
    k('s_add_u32 s22, s10, 4'); k('s_min_u32 s22, s22, 6'); k('s_lshl_b32 s22, s22, 10'); k('v_add_u32 v6, s22, v9')
    k('v_lshrrev_b32 v7, 5, v1'); k('v_lshlrev_b32 v7, 10, v7')
    k('v_bfe_u32 v8, v1, 3, 2'); k('v_lshl_add_u32 v7, v8, 8, v7')
    k('v_and_b32 v8, 7, v1'); k('v_lshl_add_u32 v7, v8, 4, v7'); k('v_add_u32 v7, %d, v7' % MB)
    k('s_lshl_b32 s21, s21, 1'); k('v_add_u32 v8, s21, v7')
    k('s_lshl_b32 s22, s22, 1'); k('v_add_u32 v4, s22, v7')
    k('v_add_u32 v18, %d, v9' % MB)
    k('v_cmp_gt_u32 s[40:41], 32, v1')
    k('v_cmp_gt_u32 s[42:43], 8, v2')
    k('s_and_b64 s[48:49], s[40:41], s[42:43]')
    for r in range(64, 68): k('v_mov_b32 v%d, 0' % r)
    k('v_lshlrev_b32 v19, 4, v0'); k('v_add_u32 v19, %d, v19' % MB)
    for j in range(4):
        if j == 3:
            k('v_cmp_gt_u32 vcc, 128, v0'); k('s_and_saveexec_b64 s[22:23], vcc')
        k('ds_write_b128 v19, v[64:67] offset:%d' % (j * 4096))
    k('s_mov_b64 exec, -1')
    k('s_waitcnt lgkmcnt(0)'); k('s_barrier')
    MF = 64
    Q = 112
    def qloads():
        k('global_load_dwordx4 %s, v5, s[30:31] sc1' % vr(Q, 4))
        k('global_load_dwordx4 %s, v6, s[30:31] sc1' % vr(Q + 4, 4))
    def gather_mem():
        poll(k, qloads, range(Q, Q + 8), 60, Lend)
        k('ds_write_b128 v8, %s' % vr(Q, 4)); k('ds_write_b128 v4, %s' % vr(Q + 4, 4))
        k('s_waitcnt lgkmcnt(0)'); k('s_barrier')
    def mread(kk): k('ds_read_b128 %s, v18 offset:%d' % (vr(MF + 4 * kk, 4), kk * 1024))
    k('s_cmp_ge_u32 s3, 16'); k('s_cbranch_scc1 %s' % LO)
    ACC = 32
    def mfrag(f): return ar(4 * f, 4) if f < 64 else vr(120 + 4 * (f - 64), 4)
    k('s_mul_i32 s21, s3, %d' % (448 * 448 * 2)); k('s_mul_i32 s24, s10, %d' % (98 * 1024)); k('s_add_u32 s21, s21, s24')
    k('s_add_u32 s21, s21, 0x%x' % WS['MFR'])
    k('s_add_u32 s22, s4, s21'); k('s_addc_u32 s23, s5, 0')
    for f in range(98):
        k('global_load_dwordx4 %s, v9, s[22:23] offset:%d' % (mfrag(f), (f % 4) * 1024))
        if f % 4 == 3:
            k('s_add_u32 s22, s22, 4096'); k('s_addc_u32 s23, s23, 0')
    k('s_mul_i32 s24, s10, %d' % (7 * 512))
    k('v_lshlrev_b32 v11, 3, v1'); k('v_add_u32 v11, s24, v11')
    k('v_add_u32 v12, %d, v11' % (28 * 512))
    k('v_lshrrev_b32 v13, 1, v3'); k('v_lshl_add_u32 v13, v13, 4, v2'); k('v_lshlrev_b32 v13, 4, v13')
    k('v_and_b32 v14, 1, v3'); k('v_lshl_add_u32 v13, v14, 3, v13'); k('v_add_u32 v13, s24, v13'); k('v_add_u32 v13, %d, v13' % MB)
    k('s_mul_i32 s24, s10, 3072'); k('s_add_u32 s24, s24, %d' % RED)
    k('v_add_u32 v14, s24, v9'); k('v_add_u32 v15, %d, v9' % RED)
    k.addoff(30, 4, WS['MEMF']); k.addoff(32, 4, WS['HP'])
    k.addoff(34, 4, WS['P'])
    k('s_lshl_b32 s24, s3, 10'); k('v_add_u32 v16, s24, v9')
    k('v_mov_b32 v61, 0xf149f2ca')
    k('v_mov_b32 v62, 0x%08x' % LOG2E)
    k('s_mov_b32 s36, 0')
    k('s_mov_b32 s37, 0')
    k('s_waitcnt vmcnt(0)')
    LS, LSn = k.newlab('S'), k.newlab('Sn')
    handshake()
    k.ts(2)
    k.lab(LS)
    stamp(k, 0)
    gather_mem()
    stamp(k, 1)
    HN = {1: 0, 2: 4, 0: 8}
    def hload(n):
        jt = (1, 2, 0)[n // 4]; q = n % 4
        t0, t1 = 2 * q, min(2 * q + 1, 6)
        if jt == 0:
            k('ds_read_b64 %s, v13 offset:%d' % (vr(MF + 4 * n, 2), t0 * 512))
            k('ds_read_b64 %s, v13 offset:%d' % (vr(MF + 4 * n + 2, 2), t1 * 512))
        else:
            va = 11 if jt == 1 else 12
            k('global_load_dwordx2 %s, v%d, s[32:33] offset:%d' % (vr(MF + 4 * n, 2), va, t0 * 512))
            k('global_load_dwordx2 %s, v%d, s[32:33] offset:%d' % (vr(MF + 4 * n + 2, 2), va, t1 * 512))
    for kk in range(14): mread(kk)
    def bm(tt, kk):
        c = '0' if kk == 0 else vr(ACC + 4 * tt, 4)
        k('v_mfma_f32_16x16x32_bf16 %s, %s, %s, %s' % (vr(ACC + 4 * tt, 4), mfrag(tt * 14 + kk), vr(MF + 4 * kk, 4), c))
    for kk in range(12):
        if kk < 8: k('s_waitcnt lgkmcnt(%d)' % min(13 - kk, 15))
        elif kk == 8: k('s_waitcnt lgkmcnt(0)')
        for tt in range(7): bm(tt, kk)
        hload(kk)
    k('v_add_u32 v17, s37, v14')
    SA = [20, 24, 28]
    def fin(q):
        ts_ = [2 * q, 2 * q + 1] if q < 3 else [6]
        for kk in (12, 13):
            for tt in ts_: bm(tt, kk)
    def cvt(q):
        a = ACC + 8 * q
        k('v_cvt_pk_bf16_f32 v%d, v%d, v%d' % (a, a, a + 1))
        k('v_cvt_pk_bf16_f32 v%d, v%d, v%d' % (a + 1, a + 2, a + 3))
        if q < 3:
            k('v_cvt_pk_bf16_f32 v%d, v%d, v%d' % (a + 2, a + 4, a + 5))
            k('v_cvt_pk_bf16_f32 v%d, v%d, v%d' % (a + 3, a + 6, a + 7))
        else:
            k('v_mov_b32 v%d, 0' % (a + 2)); k('v_mov_b32 v%d, 0' % (a + 3))
    def score(q):
        for jt in range(3):
            c = '0' if q == 0 else vr(SA[jt], 4)
            k('v_mfma_f32_16x16x32_bf16 %s, %s, %s, %s' % (vr(SA[jt], 4), vr(MF + 4 * (HN[jt] + q), 4), vr(ACC + 8 * q, 4), c))
    fin(0); fin(1); k.nop(5); cvt(0); fin(2)
    k('s_waitcnt vmcnt(0) lgkmcnt(0)')
    score(0); cvt(1); fin(3); score(1); k.nop(2); cvt(2); k.nop(2); score(2); k.nop(2); cvt(3); k.nop(2); score(3)
    stamp(k, 2)
    k.nop(8)
    for jt in range(3): k('ds_write_b128 v17, %s offset:%d' % (vr(SA[jt], 4), jt * 1024))
    stamp(k, 3)
    k('s_waitcnt lgkmcnt(0)'); k('s_barrier')
    stamp(k, 4)
    k('s_cmp_lg_u32 s10, 0'); k('s_cbranch_scc1 %s' % LSn)
    k('v_add_u32 v17, s37, v15')
    for w in range(1, 4):
        for jt in range(3):
            k('ds_read_b128 %s, v17 offset:%d' % (vr(MF + 12 * (w - 1) + 4 * jt, 4), w * 3072 + jt * 1024))
    for w in range(1, 4):
        k('s_waitcnt lgkmcnt(%d)' % (3 * (3 - w)))
        for jt in range(3):
            for r in (0, 2):
                k('v_pk_add_f32 %s, %s, %s' % (vr(SA[jt] + r, 2), vr(SA[jt] + r, 2), vr(MF + 12 * (w - 1) + 4 * jt + r, 2)))
    sc = [SA[jt] + r for jt in range(3) for r in range(4)]
    for r in range(4): k('v_cndmask_b32 v%d, v61, v%d, s[40:41]' % (SA[0] + r, SA[0] + r))
    T = MF + 40
    k('v_max3_f32 v%d, v%d, v%d, v%d' % (T, sc[4], sc[5], sc[6]))
    k('v_max3_f32 v%d, v%d, v%d, v%d' % (T + 1, sc[7], sc[8], sc[9]))
    k('v_max3_f32 v%d, v%d, v%d, v%d' % (T + 2, sc[10], sc[11], sc[0]))
    k('v_max3_f32 v%d, v%d, v%d, v%d' % (T + 3, sc[1], sc[2], sc[3]))
    k('v_max3_f32 v%d, v%d, v%d, v%d' % (T, T, T + 1, T + 2))
    k('v_max_f32 v%d, v%d, v%d' % (T, T, T + 3))
    xlane(k, 'v_max_f32', T, T + 1)
    k('v_mul_f32 v%d, v62, v%d' % (T, T))
    k('v_mov_b32 v%d, v%d' % (T + 1, T)); k('v_mov_b32 v63, v62')
    for jt in range(3):
        for r in (0, 2): k('v_pk_fma_f32 %s, %s, v[62:63], %s neg_lo:[0,0,1] neg_hi:[0,0,1]' % (vr(SA[jt] + r, 2), vr(SA[jt] + r, 2), vr(T, 2)))
    for r in sc: k('v_exp_f32 v%d, v%d' % (r, r))
    k('s_nop 0')
    for j in range(3): k('v_pk_add_f32 %s, %s, %s' % (vr(T + 2 * j, 2), vr(SA[j], 2), vr(SA[j] + 2, 2)))
    k('v_pk_add_f32 %s, %s, %s' % (vr(T, 2), vr(T, 2), vr(T + 2, 2)))
    k('v_pk_add_f32 %s, %s, %s' % (vr(T, 2), vr(T, 2), vr(T + 4, 2)))
    k('v_add_f32 v%d, v%d, v%d' % (T, T, T + 1))
    xlane(k, 'v_add_f32', T, T + 1)
    k('v_rcp_f32 v%d, v%d' % (T, T))
    k('s_nop 0')
    k('v_mov_b32 v%d, v%d' % (T + 1, T))
    for jt in range(3):
        for r in (0, 2): k('v_pk_mul_f32 %s, %s, %s' % (vr(SA[jt] + r, 2), vr(SA[jt] + r, 2), vr(T, 2)))
    PK = MF + 48
    k('v_cvt_pk_bf16_f32 v%d, v%d, v%d' % (PK, sc[4], sc[5])); k('v_cvt_pk_bf16_f32 v%d, v%d, v%d' % (PK + 1, sc[6], sc[7]))
    k('v_cvt_pk_bf16_f32 v%d, v%d, v%d' % (PK + 2, sc[8], sc[9])); k('v_cvt_pk_bf16_f32 v%d, v%d, v%d' % (PK + 3, sc[10], sc[11]))
    k('v_cvt_pk_bf16_f32 v%d, v%d, v%d' % (PK + 4, sc[0], sc[1])); k('v_cvt_pk_bf16_f32 v%d, v%d, v%d' % (PK + 5, sc[2], sc[3]))
    k('s_nop 1')
    k('v_mov_b32_dpp v%d, v%d row_ror:8 row_mask:0xf bank_mask:0xf' % (PK + 6, PK + 4))
    k('v_mov_b32_dpp v%d, v%d row_ror:8 row_mask:0xf bank_mask:0xf' % (PK + 7, PK + 5))
    k('v_cndmask_b32 v%d, v%d, v%d, s[42:43]' % (PK, PK + 6, PK))
    k('v_cndmask_b32 v%d, v%d, v%d, s[42:43]' % (PK + 1, PK + 7, PK + 1))
    k('v_cndmask_b32 v%d, 0, v%d, s[42:43]' % (PK + 2, PK + 2))
    k('v_cndmask_b32 v%d, 0, v%d, s[42:43]' % (PK + 3, PK + 3))
    pub_store(k, 'global_store_dwordx4 v16, %s, s[34:35]' % vr(PK, 4))
    k('s_nop 1')
    k.lab(LSn)
    stamp(k, 5)
    stamp_flush(k, 6, 31)
    k('s_add_u32 s30, s30, %d' % MEM_STRIDE); k('s_addc_u32 s31, s31, 0')
    k('s_add_u32 s32, s32, %d' % (2 * 28 * 512)); k('s_addc_u32 s33, s33, 0')
    k('s_add_u32 s34, s34, %d' % P_STEP); k('s_addc_u32 s35, s35, 0')
    k('s_xor_b32 s37, s37, 12288')
    k('s_add_u32 s36, s36, 1'); k('s_cmp_lt_u32 s36, 63'); k('s_cbranch_scc1 %s' % LS)
    k('s_branch %s' % Lend)
    k.lab(LO)
    k('s_sub_u32 s3, s3, 16')
    def nfrag(f): return ar(4 * f, 4) if f < 64 else vr(176 + 4 * (f - 64), 4)
    UTF = 120
    VM = 152
    VA = 168
    OA = 32
    LT = 40
    UO = 20
    k('s_mul_i32 s24, s10, %d' % (4 * 28)); k('s_lshl_b32 s25, s3, 1'); k('s_add_u32 s24, s24, s25'); k('s_mul_i32 s24, s24, %d' % (14 * 1024))
    k('s_add_u32 s24, s24, 0x%x' % WS['NFR'])
    k('s_add_u32 s76, s4, s24'); k('s_addc_u32 s77, s5, 0')
    k('s_mul_i32 s26, s10, 28672'); k('v_add_u32 v12, s26, v9')
    for u in (3, 0, 1, 2):
        for dt in range(2):
            for kk in range(14):
                if kk % 4 == 0:
                    k('s_add_u32 s22, s76, %d' % ((u * 28 + dt) * 14 * 1024 + kk * 1024)); k('s_addc_u32 s23, s77, 0')
                dst = nfrag((u * 2 + dt) * 14 + kk) if u < 3 else vr(MF + 4 * kk, 4)
                k('global_load_dwordx4 %s, v9, s[22:23] offset:%d' % (dst, (kk % 4) * 1024))
            if u == 3:
                k('s_waitcnt vmcnt(0)')
                for kk in range(14):
                    k('ds_write_b128 v12, %s offset:%d' % (vr(MF + 4 * kk, 4), (dt * 14 + kk) * 1024))
                k('s_waitcnt lgkmcnt(0)')
    k('s_mul_i32 s24, s10, %d' % (4 * 28)); k('s_lshl_b32 s25, s3, 1'); k('s_add_u32 s24, s24, s25'); k('s_lshl_b32 s24, s24, 10')
    k('v_add_u32 v%d, s24, v9' % UO)
    for u in range(1, 4): k('v_add_u32 v%d, %d, v%d' % (UO + u, 28 * 1024, UO + u - 1))
    k('s_mul_i32 s24, s10, %d' % (2 * 28)); k('s_add_u32 s24, s24, s25'); k('s_lshl_b32 s24, s24, 9')
    k('v_add_u32 v%d, s24, v9' % (UO + 4)); k('v_add_u32 v%d, %d, v%d' % (UO + 5, 28 * 512, UO + 4))
    k('v_lshrrev_b32 v15, 1, v3'); k('v_lshlrev_b32 v15, 7, v15'); k('v_lshl_add_u32 v15, v2, 4, v15')
    k('v_and_b32 v14, 1, v3'); k('v_lshl_add_u32 v15, v14, 3, v15')
    k('s_lshl_b32 s25, s3, 9'); k('s_lshl_b32 s26, s10, 8'); k('s_add_u32 s25, s25, s26'); k('v_add_u32 v15, s25, v15')
    k('s_lshl_b32 s25, s10, 12'); k('v_add_u32 v16, s25, v9')
    k('v_lshlrev_b32 v26, 4, v2'); k('v_lshl_add_u32 v26, v3, 7, v26'); k('v_add_u32 v63, 4096, v26')
    for r in range(56, 60): k('v_mov_b32 v%d, 0' % r)
    for r in range(28, 32): k('v_mov_b32 v%d, 0' % r)
    handshake()
    k('s_lshl_b32 s24, s10, 11'); k('s_add_u32 s24, s24, %d' % RED); k('v_add_u32 v17, s24, v9')
    k('s_lshl_b32 s24, s10, 10'); k('s_add_u32 s24, s24, %d' % RED); k('v_add_u32 v13, s24, v9')
    k.addoff(30, 4, WS['MEMFB']); k.addoff(80, 4, WS['MEMFB'] + MEM_STRIDE); k.addoff(32, 4, WS['UF']); k.addoff(38, 4, WS['UMF']); k.addoff(46, 4, WS['MEMF'] + MEM_STRIDE); k.addoff(68, 4, WS['CNT']); k.addoff(70, 4, WS['MEMF2']); k.addoff(74, 4, WS['CNT'] + C_CM - 4)
    k.addoff(34, 4, WS['P'])
    k('s_mov_b32 s36, 0'); k('s_mov_b32 s37, 0')
    k('s_waitcnt vmcnt(0)')
    LOl, LOn, LOu = k.newlab('Ol'), k.newlab('On'), k.newlab('Ou')
    k.ts(2)
    k.lab(LOl)
    stamp(k, 0)
    gather_mem()
    stamp(k, 1)
    for kk in range(14): mread(kk)
    def cmsig():
        Lns = k.newlab('ns')
        k('s_cmp_lg_u32 s10, 3'); k('s_cbranch_scc1 %s' % Lns)
        k('v_mov_b32 v60, 0'); k('v_mov_b32 v61, 1')
        k('s_mov_b64 exec, 1')
        k('global_atomic_add v60, v61, s[74:75] sc1')
        k('s_mov_b64 exec, -1')
        k.lab(Lns)
    Lz = k.newlab('z')
    k('s_cmp_eq_u32 s36, 0'); k('s_cbranch_scc1 %s' % Lz)
    cmsig()
    k.lab(Lz)
    k('s_cmp_eq_u32 s36, 63'); k('s_cbranch_scc1 %s' % LOu)
    Lnf, Lfp = k.newlab('nf'), k.newlab('fp')
    k('s_and_b32 s24, s36, 3'); k('s_cmp_lg_u32 s24, 0'); k('s_cbranch_scc1 %s' % Lnf)
    k('s_lshl_b32 s24, s36, 4'); k('v_mov_b32 v60, s24')
    k.lab(Lfp)
    k('global_load_dword v61, v60, s[68:69] sc1')
    k('s_add_u32 s%d, s%d, 1' % (S_TO, S_TO))
    k('s_cmp_gt_u32 s%d, %d' % (S_TO, TO_LIMIT)); k('s_cbranch_scc1 %s' % Lend)
    k('s_waitcnt vmcnt(0)')
    k('v_cmp_gt_u32 vcc, 56, v61'); k('s_nop 1'); k('s_cbranch_vccnz %s' % Lfp)
    k.lab(Lnf)
    for u in range(4):
        for dt in range(2):
            n = u * 2 + dt
            k('global_load_dwordx4 %s, v%d, s[32:33] offset:%d sc1' % (vr(UTF + 4 * n, 4), UO + u, dt * 1024))
    k.lab(LOu)
    def finish(n):
        u, dt = n // 2, n % 2
        a = VA + 4 * (n & 1)
        d = VM + ((u >> 1) * 2 + dt) * 4 + 2 * (u & 1)
        k('v_cvt_pk_bf16_f32 v%d, v%d, v%d' % (d, a, a + 1))
        k('v_cvt_pk_bf16_f32 v%d, v%d, v%d' % (d + 1, a + 2, a + 3))
        if u & 1:
            k('s_mov_b64 exec, s[40:41]')
            k('global_store_dwordx4 v%d, %s, s[38:39] offset:%d sc1' % (UO + 4 + (u >> 1), vr(d - 2, 4), dt * 512))
            k('s_mov_b64 exec, -1')
    for n in range(8):
        u, dt = n // 2, n % 2
        a = VA + 4 * (n & 1)
        if u == 3:
            for j in range(4): k('ds_read_b128 %s, v12 offset:%d' % (vr(LT + 4 * j, 4), (dt * 14 + j) * 1024))
        for kk in range(14):
            c = '0' if kk == 0 else vr(a, 4)
            if n == 0: k('s_waitcnt lgkmcnt(%d)' % (13 - kk))
            if u < 3:
                b = nfrag((u * 2 + dt) * 14 + kk)
            else:
                b = vr(LT + 4 * (kk % 4), 4)
                k('s_waitcnt lgkmcnt(%d)' % min(3, 13 - kk))
            k('v_mfma_f32_16x16x32_bf16 %s, %s, %s, %s' % (vr(a, 4), vr(MF + 4 * kk, 4), b, c))
            if u == 3 and kk + 4 < 14:
                k('ds_read_b128 %s, v12 offset:%d' % (vr(LT + 4 * (kk % 4), 4), (dt * 14 + kk + 4) * 1024))
            if kk == 10 and n > 0: finish(n - 1)
        if n == 0:
            Lm2 = k.newlab('m2')
            k('s_cmp_lg_u32 s10, 3'); k('s_cbranch_scc1 %s' % Lm2)
            k('s_cmp_lg_u32 s3, 0'); k('s_cbranch_scc1 %s' % Lm2)
            k('s_mov_b64 exec, s[42:43]')
            for kk in range(14):
                k('global_store_dwordx4 v%d, %s, s[70:71] offset:%d sc1' % (26 if kk < 8 else 63, vr(MF + 4 * kk, 4), (kk % 8) * 512))
            k('s_mov_b64 exec, -1')
            k.lab(Lm2)
    k.nop(10)
    finish(7)
    stamp(k, 2)
    Lgo = k.newlab('go')
    k('s_cmp_lg_u32 s36, 63'); k('s_cbranch_scc1 %s' % Lgo)
    k('s_waitcnt vmcnt(0)'); k('s_barrier')
    k('s_add_u32 s74, s74, 4'); k('s_addc_u32 s75, s75, 0')
    cmsig()
    k('s_add_u32 s91, s3, 224')
    k.ts(0)
    k('s_branch %s' % Lend)
    k.lab(Lgo)
    PX = MF
    PMS = (56, 28)
    k('v_add_u32 v14, s37, v17')
    k('v_add_u32 v27, s37, v13')
    def ploads():
        for u in range(4):
            k('global_load_dwordx4 %s, v16, s[34:35] offset:%d sc1' % (vr(PX + 4 * u, 4), u * 1024))
    poll(k, ploads, range(PX, PX + 16), 60, Lend)
    for u in range(4):
        for j in range(2):
            k('v_mov_b32_dpp v%d, v%d row_ror:8 row_mask:0xf bank_mask:0xf' % (PMS[u >> 1] + 2 * (u & 1) + j, PX + 4 * u + j))
    stamp(k, 3)
    for u in range(4):
        for dt in range(2):
            c = '0' if u == 0 else vr(OA + 4 * dt, 4)
            k('v_mfma_f32_16x16x32_bf16 %s, %s, %s, %s' % (vr(OA + 4 * dt, 4), vr(UTF + 4 * (u * 2 + dt), 4), vr(PX + 4 * u, 4), c))
    for pr in range(2):
        for dt in range(2):
            k('v_mfma_f32_16x16x32_bf16 %s, %s, %s, %s' % (vr(OA + 4 * dt, 4), vr(VM + (pr * 2 + dt) * 4, 4), vr(PMS[pr], 4), vr(OA + 4 * dt, 4)))
    k.nop(8)
    k('ds_write_b128 v14, %s' % vr(OA, 4)); k('ds_write_b128 v14, %s offset:1024' % vr(OA + 4, 4))
    k('s_waitcnt lgkmcnt(0)'); k('s_barrier')
    stamp(k, 4)
    k('s_cmp_ge_u32 s10, 2'); k('s_cbranch_scc1 %s' % LOn)
    for w in range(4): k('ds_read_b128 %s, v27 offset:%d' % (vr(LT + 4 * w, 4), w * 2048))
    k('s_waitcnt lgkmcnt(2)')
    for r in (0, 2): k('v_pk_add_f32 %s, %s, %s' % (vr(LT + r, 2), vr(LT + r, 2), vr(LT + 4 + r, 2)))
    k('s_waitcnt lgkmcnt(0)')
    for r in (0, 2): k('v_pk_add_f32 %s, %s, %s' % (vr(LT + 8 + r, 2), vr(LT + 8 + r, 2), vr(LT + 12 + r, 2)))
    for r in (0, 2): k('v_pk_add_f32 %s, %s, %s' % (vr(LT + r, 2), vr(LT + r, 2), vr(LT + 8 + r, 2)))
    k('v_cvt_pk_bf16_f32 v%d, v%d, v%d' % (LT + 4, LT, LT + 1)); k('v_cvt_pk_bf16_f32 v%d, v%d, v%d' % (LT + 5, LT + 2, LT + 3))
    k('s_mov_b64 exec, s[42:43]')
    pub_store(k, 'global_store_dwordx2 v15, %s, s[46:47]' % vr(LT + 4, 2))
    pub_store(k, 'global_store_dwordx2 v15, %s, s[80:81]' % vr(LT + 4, 2))
    k('s_mov_b64 exec, -1')
    k.lab(LOn)
    if TS:
        Lt = k.newlab('t'); k('s_cmp_lg_u32 s36, 0'); k('s_cbranch_scc1 %s' % Lt); k.ts(3); k.lab(Lt)
    stamp(k, 5)
    stamp_flush(k, 6, 62)
    k('s_add_u32 s30, s30, %d' % MEM_STRIDE); k('s_addc_u32 s31, s31, 0')
    k('s_add_u32 s46, s46, %d' % MEM_STRIDE); k('s_addc_u32 s47, s47, 0')
    k('s_add_u32 s80, s80, %d' % MEM_STRIDE); k('s_addc_u32 s81, s81, 0')
    k('s_add_u32 s70, s70, %d' % MEM_STRIDE); k('s_addc_u32 s71, s71, 0')
    k('s_add_u32 s74, s74, 4'); k('s_addc_u32 s75, s75, 0')
    k('s_add_u32 s32, s32, %d' % (16 * 28 * 1024)); k('s_addc_u32 s33, s33, 0')
    k('s_add_u32 s34, s34, %d' % P_STEP); k('s_addc_u32 s35, s35, 0')
    k('s_add_u32 s38, s38, %d' % UM_STEP); k('s_addc_u32 s39, s39, 0')
    k('s_xor_b32 s37, s37, 8192')
    k('s_add_u32 s36, s36, 1'); k('s_branch %s' % LOl)
    k.lab(Lpf)
    k.ldarg(4, 'ws')
    k('v_lshrrev_b32 v2, 6, v0'); k('s_nop 0'); k('v_readfirstlane_b32 s10, v2')
    k('s_mov_b32 s92, 0'); k('s_mov_b32 s36, 0')
    k('s_waitcnt lgkmcnt(0)')
    k.addoff(66, 4, WS['UF']); k.addoff(68, 4, WS['HP']); k.addoff(30, 4, WS['MEMF'])
    Lpl, Lnw, Lnp, Lpp = k.newlab('pl'), k.newlab('nw'), k.newlab('npc'), k.newlab('pp')
    k.lab(Lpl)
    k('s_and_b32 s24, s36, 3'); k('s_cmp_lg_u32 s24, 0'); k('s_cbranch_scc1 %s' % Lnw)
    k('s_lshl_b32 s62, s36, 4')
    k.wait_cnt(4, 62, C_UF, 56, Lend, vt=(10, 11), swave=10)
    k.lab(Lnw)
    k('s_mul_i32 s64, s36, %d' % (16 * 28 * 1024))
    k.touch(66, 64, 16 * 28 * 1024, 10, vt=(10, 11))
    k('s_mul_i32 s64, s36, %d' % (2 * 28 * 512))
    k.touch(68, 64, 2 * 28 * 512, 10, vt=(10, 11))
    k('s_cmp_lt_u32 s36, 2'); k('s_cbranch_scc1 %s' % Lnp)
    k('s_sub_u32 s24, s36, 1'); k('s_lshl_b32 s24, s24, 13'); k('v_mov_b32 v10, s24')
    k.lab(Lpp)
    k('global_load_dword v11, v10, s[30:31] sc1')
    k('s_add_u32 s92, s92, 1'); k('s_cmp_gt_u32 s92, %d' % (1 << 18)); k('s_cbranch_scc1 %s' % Lend)
    k('s_waitcnt vmcnt(0)')
    k('v_cmp_eq_u32 vcc, -1, v11'); k('s_nop 1')
    k('s_cbranch_vccz %s' % Lnp)
    k('s_sleep 8'); k('s_branch %s' % Lpp)
    k.lab(Lnp)
    k('s_add_u32 s36, s36, 1'); k('s_cmp_lt_u32 s36, 63'); k('s_cbranch_scc1 %s' % Lpl)
    k('s_branch %s' % Lend)
    if worker:
        k.lab(Lw)
        k('s_cmp_ge_u32 s2, 256'); k('s_cbranch_scc1 %s' % Lend)
        k('s_lshr_b32 s3, s2, 3'); k('s_sub_u32 s90, s2, s3'); k('s_sub_u32 s90, s90, 1')
        k('s_mov_b32 s91, s90'); k('s_mov_b32 s92, 0')
        k.ldarg(4, 'ws'); k('s_waitcnt lgkmcnt(0)'); k.ts(24)
        for wk, w0, nw in worker:
            Lwl, Lsk = k.newlab('wl'), k.newlab('sk')
            if wk.name.startswith('f2'):
                k('s_cmp_ge_u32 s91, 112'); k('s_cbranch_scc1 %s' % Lsk)
                k.sdiv(90, 91, 7, 223)
                k('s_mul_i32 s87, s90, 7'); k('s_sub_u32 s87, s91, s87')
                k.lab(Lwl)
                k.sdiv(86, 90, 7, 63)
                k('s_mul_i32 s85, s86, 7'); k('s_sub_u32 s84, s90, s85')
                k('s_add_u32 s85, s85, s87')
                k('s_cmp_ge_u32 s85, 32'); k('s_cbranch_scc1 %s' % Lsk)
                k('s_mul_i32 s2, s85, 7'); k('s_add_u32 s2, s2, s84')
                k.L += wk.L
                k('s_barrier')
                k('s_add_u32 s90, s90, 16'); k('s_branch %s' % Lwl)
                k.lab(Lsk)
                continue
            k('s_sub_u32 s90, s91, %d' % w0)
            k('s_cmp_ge_u32 s90, %d' % nw); k('s_cbranch_scc1 %s' % Lsk)
            k.lab(Lwl)
            k('s_mov_b32 s2, s90')
            k.L += wk.L
            k('s_barrier')
            k('s_add_u32 s90, s90, %d' % nw)
            k('s_cmp_lt_u32 s90, %d' % wk.grid); k('s_cbranch_scc1 %s' % Lwl)
            k.lab(Lsk)
    k.lab(Lend)
    return k
```

```python
from fw import *

def k_prep0():
    NMOD, NTR, NFILL = 21, 392, 64
    tot = NMOD + NTR + NFILL
    k = Kern('prep0_kernel', grid=tot, lds=64*144, vgpr=96, sgpr=96)
    Lend, Ltr, Lfill = k.newlab('end'), k.newlab('tr'), k.newlab('fill')
    k('s_cmp_ge_u32 s2, %d' % tot); k('s_cbranch_scc1 %s' % Lend)
    k.ldarg(4, 'c'); k.ldarg(6, 'wmod'); k.ldarg(8, 'ws'); k.ldarg(12, 'Wo'); k.ldarg(14, 'w1'); k.ldarg(16, 'w2'); k.ldarg(18, 'mem0'); k.ldarg(80, 'dbg')
    k('v_and_b32 v1, 63, v0')
    k('v_lshrrev_b32 v2, 6, v0')
    k('s_nop 0')
    k('v_readfirstlane_b32 s10, v2')
    k('s_waitcnt lgkmcnt(0)')
    k('s_cmp_ge_u32 s2, %d' % NMOD); k('s_cbranch_scc1 %s' % Ltr)
    k('s_mul_i32 s11, s10, 112')
    k('v_add_u32 v2, s11, v1')
    k('v_min_u32 v3, 47, v1')
    k('v_add_u32 v3, 64, v3')
    k('v_add_u32 v3, s11, v3')
    k('v_lshlrev_b32 v2, 1, v2'); k('v_lshlrev_b32 v3, 1, v3')
    k('global_load_ushort v4, v2, s[4:5]')
    k('global_load_ushort v5, v3, s[4:5]')
    k('s_mul_i32 s20, s11, 5376')
    k('s_lshl_b32 s21, s2, 8')
    k('s_add_u32 s20, s20, s21')
    k('v_lshlrev_b32 v6, 2, v1')
    k('v_add_u32 v6, s20, v6')
    k('s_waitcnt vmcnt(0)')
    for r in (4, 5):
        k('v_lshlrev_b32 v%d, 16, v%d' % (r, r))
        k('v_mul_f32 v7, 0xbfb8aa3b, v%d' % r)
        k('v_exp_f32 v7, v7')
        k('s_nop 0')
        k('v_add_f32 v7, 1.0, v7')
        k('v_rcp_f32 v7, v7')
        k('s_nop 0')
        k('v_mul_f32 v%d, v%d, v7' % (r, r))
    k('v_cvt_pk_bf16_f32 v7, v4, v5')
    k('v_lshlrev_b32 v4, 16, v7')
    k('v_and_b32 v5, 0xffff0000, v7')
    k('v_mov_b32 v8, 0'); k('v_mov_b32 v9, 0')
    for b in range(2):
        for i in range(56):
            k('global_load_dword v%d, v6, s[6:7]' % (16 + i))
            k('v_add_u32 v6, 5376, v6')
        for i in range(56):
            kk = b * 56 + i
            src, lane = (4, kk) if kk < 64 else (5, kk - 64)
            k('v_readlane_b32 s%d, v%d, %d' % (24 + i, src, lane))
        k('s_waitcnt vmcnt(0)')
        for i in range(56):
            k('v_lshlrev_b32 v10, 16, v%d' % (16 + i))
            k('v_and_b32 v11, 0xffff0000, v%d' % (16 + i))
            k('v_fmac_f32 v8, s%d, v10' % (24 + i))
            k('v_fmac_f32 v9, s%d, v11' % (24 + i))
    k('v_lshlrev_b32 v10, 3, v0')
    k('ds_write_b64 v10, v[8:9]')
    k('s_waitcnt lgkmcnt(0)')
    k('s_barrier')
    k('s_cmp_lg_u32 s10, 0'); k('s_cbranch_scc1 %s' % Lend)
    k('ds_read_b64 v[12:13], v10 offset:512')
    k('ds_read_b64 v[14:15], v10 offset:1024')
    k('ds_read_b64 v[16:17], v10 offset:1536')
    k('s_waitcnt lgkmcnt(0)')
    for r in (12, 14, 16):
        k('v_add_f32 v8, v8, v%d' % r); k('v_add_f32 v9, v9, v%d' % (r + 1))
    k('v_cvt_pk_bf16_f32 v7, v8, v9')
    k('v_lshlrev_b32 v8, 16, v7'); k('v_and_b32 v9, 0xffff0000, v7')
    k('v_add_f32 v12, 1.0, v8'); k('v_add_f32 v13, 1.0, v9')
    k('v_cvt_pk_bf16_f32 v7, v12, v13')
    k('v_lshlrev_b32 v12, 16, v7'); k('v_and_b32 v13, 0xffff0000, v7')
    k('s_lshl_b32 s21, s2, 7')
    k('v_lshlrev_b32 v14, 1, v1'); k('v_add_u32 v14, s21, v14')
    k('v_subrev_u32 v15, 448, v14')
    k('v_cmp_gt_u32 vcc, 448, v15')
    k('s_nop 1')
    k('s_mov_b64 s[22:23], vcc')
    k('v_subrev_u32 v15, 1792, v14')
    k('v_cmp_gt_u32 vcc, 448, v15')
    k('s_nop 1')
    k('s_or_b64 vcc, vcc, s[22:23]')
    k('s_nop 1')
    k('v_cndmask_b32 v8, v8, v12, vcc'); k('v_cndmask_b32 v9, v9, v13, vcc')
    k('v_lshlrev_b32 v14, 2, v14')
    k('global_store_dwordx2 v14, v[8:9], s[8:9] offset:%d sc1' % WS['MOD'])
    k('s_waitcnt vmcnt(0)')
    k('v_mov_b32 v14, 128'); k('v_mov_b32 v15, 1')
    k('s_mov_b64 exec, 1')
    k('global_atomic_add v14, v15, s[80:81] sc1')
    k('s_branch %s' % Lend)
    k.lab(Ltr)
    k('s_cmp_ge_u32 s2, %d' % (NMOD + NTR)); k('s_cbranch_scc1 %s' % Lfill)
    L1, L2, Lc = k.newlab('t1'), k.newlab('t2'), k.newlab('tc')
    k('s_sub_u32 s20, s2, %d' % NMOD); k('s_add_u32 s20, s20, 448')
    k('s_cmp_ge_u32 s20, 448'); k('s_cbranch_scc1 %s' % L1)
    k.sdiv(21, 20, 28, 447)
    k('s_mul_i32 s22, s21, 28'); k('s_sub_u32 s20, s20, s22')
    k.sdiv(23, 20, 7, 27)
    k('s_mul_i32 s22, s23, 7'); k('s_sub_u32 s24, s20, s22')
    k('s_mul_i32 s22, s21, 229376')
    k('s_add_u32 s30, s12, s22'); k('s_addc_u32 s31, s13, 0')
    k('s_add_u32 s22, s22, 0x%x' % WS['WOT'])
    k('s_add_u32 s32, s8, s22'); k('s_addc_u32 s33, s9, 0')
    k('s_mov_b32 s25, %d' % (448 * 2)); k('s_mov_b32 s26, %d' % (256 * 2))
    k('s_branch %s' % Lc)
    k.lab(L1)
    k('s_cmp_ge_u32 s20, 644'); k('s_cbranch_scc1 %s' % L2)
    k('s_sub_u32 s20, s20, 448')
    k.sdiv(23, 20, 28, 195)
    k('s_mul_i32 s22, s23, 28'); k('s_sub_u32 s24, s20, s22')
    k('s_mov_b32 s30, s14'); k('s_mov_b32 s31, s15')
    k.addoff(32, 8, WS['W1T'])
    k('s_mov_b32 s25, %d' % (1792 * 2)); k('s_mov_b32 s26, %d' % (448 * 2))
    k('s_branch %s' % Lc)
    k.lab(L2)
    k('s_sub_u32 s20, s20, 644')
    k.sdiv(23, 20, 7, 195)
    k('s_mul_i32 s22, s23, 7'); k('s_sub_u32 s24, s20, s22')
    k('s_mov_b32 s30, s16'); k('s_mov_b32 s31, s17')
    k.addoff(32, 8, WS['W2T'])
    k('s_mov_b32 s25, %d' % (448 * 2)); k('s_mov_b32 s26, %d' % (1792 * 2))
    k.lab(Lc)
    k('v_lshrrev_b32 v2, 3, v0')
    k('v_and_b32 v3, 7, v0')
    k('s_lshl_b32 s27, s23, 6')
    k('s_lshl_b32 s28, s24, 6')
    k('v_add_u32 v4, s27, v2')
    k('v_mul_lo_u32 v4, v4, s25')
    k('v_lshlrev_b32 v5, 4, v3')
    k('s_lshl_b32 s29, s28, 1')
    k('v_add3_u32 v4, v4, v5, s29')
    k('s_lshl_b32 s34, s25, 5')
    k('v_add_u32 v6, s34, v4')
    k('global_load_dwordx4 v[16:19], v4, s[30:31]')
    k('global_load_dwordx4 v[20:23], v6, s[30:31]')
    k('v_mul_u32_u24 v7, 144, v2')
    k('v_add_u32 v7, v7, v5')
    k('s_waitcnt vmcnt(0)')
    k('ds_write_b128 v7, v[16:19]')
    k('ds_write_b128 v7, v[20:23] offset:4608')
    k('s_waitcnt lgkmcnt(0)')
    k('s_barrier')
    k('v_mul_u32_u24 v7, %d, v3' % (8 * 144))
    k('v_lshl_add_u32 v7, v2, 1, v7')
    for p in range(2):
        for i in range(8):
            k('ds_read_u16 v%d, v7 offset:%d' % (32 + p * 8 + i, i * 144 + p * 64))
    k('v_add_u32 v4, s28, v2')
    k('v_mul_lo_u32 v4, v4, s26')
    k('s_lshl_b32 s29, s27, 1')
    k('v_add3_u32 v4, v4, v5, s29')
    k('s_lshl_b32 s34, s26, 5')
    k('v_add_u32 v6, s34, v4')
    k('s_waitcnt lgkmcnt(0)')
    for j in range(8):
        k('v_lshl_or_b32 v%d, v%d, 16, v%d' % (24 + j, 33 + 2 * j, 32 + 2 * j))
    k('global_store_dwordx4 v4, v[24:27], s[32:33]')
    k('global_store_dwordx4 v6, v[28:31], s[32:33]')
    k('s_branch %s' % Lend)
    k.lab(Lfill)
    Lf1 = k.newlab('f1'); Lf2 = k.newlab('f2')
    k('s_sub_u32 s20, s2, %d' % (NMOD + NTR))
    k('v_lshlrev_b32 v2, 4, v0')
    k('s_lshl_b32 s21, s20, 13')
    k('s_add_u32 s22, s21, 0x%x' % WS['MEMF'])
    k('s_add_u32 s30, s8, s22'); k('s_addc_u32 s31, s9, 0')
    k('s_add_u32 s22, s21, 0x%x' % WS['MEMFB'])
    k('s_add_u32 s36, s8, s22'); k('s_addc_u32 s37, s9, 0')
    k('s_lshl_b32 s21, s20, 14')
    k('s_add_u32 s21, s21, 0x%x' % WS['P'])
    k('s_add_u32 s32, s8, s21'); k('s_addc_u32 s33, s9, 0')
    for r in range(4, 8): k('v_mov_b32 v%d, -1' % r)
    k('v_add_u32 v3, 4096, v2')
    k('s_cmp_eq_u32 s20, 0'); k('s_cbranch_scc1 %s' % Lf1)
    k('global_store_dwordx4 v2, v[4:7], s[30:31]')
    k('global_store_dwordx4 v3, v[4:7], s[30:31]')
    k('global_store_dwordx4 v2, v[4:7], s[36:37]')
    k('global_store_dwordx4 v3, v[4:7], s[36:37]')
    k('s_branch %s' % Lf2)
    k.lab(Lf1)
    k.addoff(24, 8, WS['CNT'])
    for r in range(12, 16): k('v_mov_b32 v%d, 0' % r)
    k('global_store_dwordx4 v2, v[12:15], s[24:25]')
    k('global_store_dwordx4 v3, v[12:15], s[24:25]')
    k.addoff(26, 8, WS['MEMF2'])
    k('v_and_b32 v8, 7, v0'); k('v_mul_u32_u24 v8, 896, v8')
    k('v_lshrrev_b32 v9, 3, v0')
    k('v_lshl_add_u32 v10, v9, 4, v8')
    k('global_load_dwordx4 v[12:15], v10, s[18:19]')
    k('s_waitcnt vmcnt(0)')
    k('global_store_dwordx4 v2, v[12:15], s[30:31]')
    k('global_store_dwordx4 v2, v[12:15], s[26:27]')
    k('global_store_dwordx4 v2, v[12:15], s[36:37]')
    k('v_cmp_gt_u32 vcc, 192, v0'); k('s_and_saveexec_b64 s[22:23], vcc')
    k('global_load_dwordx4 v[12:15], v10, s[18:19] offset:512')
    k('s_waitcnt vmcnt(0)')
    k('global_store_dwordx4 v3, v[12:15], s[30:31]')
    k('global_store_dwordx4 v3, v[12:15], s[26:27]')
    k('global_store_dwordx4 v3, v[12:15], s[36:37]')
    k('s_mov_b64 exec, s[22:23]')
    k.lab(Lf2)
    for i in range(4):
        k('global_store_dwordx4 v2, v[4:7], s[32:33]')
        if i < 3: k('v_add_u32 v2, 4096, v2')
    k.lab(Lend)
    return k

def wave_allreduce_add(k, v, t):
    for n in (8, 4, 2, 1):
        k('s_nop 1')
        k('v_add_f32_dpp v%d, v%d, v%d row_ror:%d row_mask:0xf bank_mask:0xf' % (v, v, v, n))
    for op in ('v_permlane16_swap_b32', 'v_permlane32_swap_b32'):
        k('v_mov_b32 v%d, v%d' % (t, v)); k('v_mov_b32 v%d, v%d' % (t + 1, v))
        k('s_nop 1')
        k('%s v%d, v%d' % (op, t, t + 1))
        k('s_nop 1')
        k('v_add_f32 v%d, v%d, v%d' % (v, t, t + 1))

def rnd_bf16(k, dsts, a, b, t):
    k('v_cvt_pk_bf16_f32 v%d, v%d, v%d' % (t, a, b))
    k('v_lshlrev_b32 v%d, 16, v%d' % (dsts[0], t))
    k('v_and_b32 v%d, 0xffff0000, v%d' % (dsts[1], t))

def k_ln(name, src_is_input, src_off, dst_off, sh_idx, opc_idx, extra=False, waitmod=False):
    k = Kern(name, grid=512, vgpr=64, sgpr=48)
    Lend = k.newlab('end')
    k('s_cmp_ge_u32 s2, 512'); k('s_cbranch_scc1 %s' % Lend)
    k.ldarg(4, 'x'); k.ldarg(8, 'ws')
    if waitmod: k.ldarg(26, 'dbg')
    k('v_and_b32 v1, 63, v0')
    k('v_lshrrev_b32 v2, 6, v0')
    k('s_lshl_b32 s10, s2, 2')
    k('v_add_u32 v2, s10, v2')
    k('v_mul_u32_u24 v2, 896, v2')
    k('v_min_u32 v3, 55, v1')
    k('v_lshl_add_u32 v2, v3, 4, v2')
    k('v_lshlrev_b32 v4, 5, v3')
    k('s_waitcnt lgkmcnt(0)')
    if not src_is_input:
        k.addoff(4, 8, src_off)
    k.addoff(12, 8, dst_off)
    k('global_load_dwordx4 v[8:11], v2, s[4:5]')
    k.addoff(14, 8, WS['MOD'] + sh_idx * 448 * 4)
    k.addoff(16, 8, WS['MOD'] + opc_idx * 448 * 4)
    sfx = ''
    if waitmod:
        sfx = ' sc1'
        Lw, Ld = k.newlab('mw'), k.newlab('md')
        k('s_mov_b32 s28, 0'); k('v_mov_b32 v5, 128')
        k.lab(Lw)
        k('global_load_dword v6, v5, s[26:27] sc1')
        k('s_add_u32 s28, s28, 1'); k('s_cmp_gt_u32 s28, %d' % (1 << 18)); k('s_cbranch_scc1 %s' % Ld)
        k('s_waitcnt vmcnt(0)')
        k('v_cmp_gt_u32 vcc, 21, v6'); k('s_nop 1'); k('s_cbranch_vccz %s' % Ld)
        k('s_sleep 8'); k('s_branch %s' % Lw)
        k.lab(Ld)
    k('global_load_dwordx4 v[32:35], v4, s[14:15]' + sfx)
    k('global_load_dwordx4 v[36:39], v4, s[14:15] offset:16' + sfx)
    k('global_load_dwordx4 v[40:43], v4, s[16:17]' + sfx)
    k('global_load_dwordx4 v[44:47], v4, s[16:17] offset:16' + sfx)
    k('v_cmp_gt_u32 s[20:21], 56, v1')
    k('s_waitcnt vmcnt(4)')
    for i in range(4):
        k('v_lshlrev_b32 v%d, 16, v%d' % (16 + 2 * i, 8 + i))
        k('v_and_b32 v%d, 0xffff0000, v%d' % (17 + 2 * i, 8 + i))
    k('v_add_f32 v24, v16, v17')
    for i in range(2, 8): k('v_add_f32 v24, v24, v%d' % (16 + i))
    k('v_cndmask_b32 v24, 0, v24, s[20:21]')
    wave_allreduce_add(k, 24, 26)
    k('v_mul_f32 v24, 0x%08x, v24' % 0x3b124925)
    k('v_mov_b32 v25, 0')
    for i in range(8):
        k('v_sub_f32 v28, v%d, v24' % (16 + i))
        k('v_fmac_f32 v25, v28, v28')
    k('v_cndmask_b32 v25, 0, v25, s[20:21]')
    wave_allreduce_add(k, 25, 26)
    k('v_mul_f32 v25, 0x%08x, v25' % 0x3b124925)
    rnd_bf16(k, (24, 25), 24, 25, 26)
    k('v_add_f32 v25, 0x3727c5ac, v25')
    rnd_bf16(k, (25, 26), 25, 25, 27)
    k('v_sqrt_f32 v25, v25')
    k('s_nop 0')
    rnd_bf16(k, (25, 26), 25, 25, 27)
    k('v_rcp_f32 v26, v25')
    k('s_nop 0')
    k('s_waitcnt vmcnt(0)')
    for i in range(0, 8, 2):
        a, b = 16 + i, 17 + i
        k('v_sub_f32 v%d, v%d, v24' % (a, a)); k('v_sub_f32 v%d, v%d, v24' % (b, b))
        rnd_bf16(k, (a, b), a, b, 27)
        for r in (a, b):
            k('v_mul_f32 v28, v%d, v26' % r)
            k('v_fma_f32 v29, -v28, v25, v%d' % r)
            k('v_fma_f32 v%d, v29, v26, v28' % r)
        rnd_bf16(k, (a, b), a, b, 27)
        k('v_mul_f32 v%d, v%d, v%d' % (a, a, 40 + i)); k('v_mul_f32 v%d, v%d, v%d' % (b, b, 41 + i))
        rnd_bf16(k, (a, b), a, b, 27)
        k('v_add_f32 v%d, v%d, v%d' % (a, a, 32 + i)); k('v_add_f32 v%d, v%d, v%d' % (b, b, 33 + i))
        k('v_cvt_pk_bf16_f32 v%d, v%d, v%d' % (48 + i // 2, a, b))
    if extra:
        k('v_lshrrev_b32 v52, 6, v0'); k('v_add_u32 v52, s10, v52')
        k('v_lshrrev_b32 v53, 4, v52'); k('v_and_b32 v54, 15, v52')
        k('v_mul_u32_u24 v55, 14, v53'); k('v_lshrrev_b32 v56, 2, v3'); k('v_add_u32 v55, v55, v56')
        k('v_lshlrev_b32 v55, 6, v55'); k('v_and_b32 v56, 3, v3'); k('v_lshl_add_u32 v55, v56, 4, v55'); k('v_add_u32 v55, v55, v54')
        k('v_lshlrev_b32 v55, 4, v55')
        k('v_mul_u32_u24 v57, 28, v53'); k('v_lshrrev_b32 v56, 1, v3'); k('v_add_u32 v57, v57, v56')
        k('v_lshlrev_b32 v57, 6, v57'); k('v_and_b32 v56, 1, v3'); k('v_lshl_add_u32 v57, v56, 5, v57'); k('v_add_u32 v57, v57, v54')
        k('v_lshlrev_b32 v57, 3, v57')
        k.addoff(22, 8, WS['HF']); k.addoff(24, 8, WS['HP'])
    k('s_mov_b64 exec, s[20:21]')
    k('global_store_dwordx4 v2, v[48:51], s[12:13]')
    if extra:
        k('global_store_dwordx4 v55, v[48:51], s[22:23]')
        k('global_store_dwordx2 v57, v[48:49], s[24:25]')
        k('global_store_dwordx2 v57, v[50:51], s[24:25] offset:128')
    k.lab(Lend)
    return k
```
